```python
import torch

def _softmax(x, axis=-1):
    return torch.softmax(x, dim=axis)
def _gelu(x):
    return torch.nn.functional.gelu(x, approximate="tanh")
def _silu(x):
    return torch.nn.functional.silu(x)
def _sigmoid(x):
    return torch.sigmoid(x)
def _layernorm(x, axis=-1, eps=1e-5):
    m = x.mean(dim=axis, keepdim=True)
    v = x.var(dim=axis, keepdim=True, unbiased=False)
    return (x - m) / torch.sqrt(v + eps)
def _scatter_add(tgt, idx, src, axis=0):
    return tgt.clone().index_add_(axis, idx, src)
def _segment_sum(src, seg, n):
    out = torch.zeros((n,) + src.shape[1:], dtype=src.dtype)
    return out.index_add_(0, seg, src)
def _pad(x, pw):
    flat = tuple(v for pair in reversed(pw) for v in pair)
    return torch.nn.functional.pad(x, flat)

kernel_name = 'standalone__qk_norm__prompt'

def setup_inputs():

    _w = (lambda a: (lambda t: t.to(torch.bfloat16) if t.is_floating_point() else t)(torch.as_tensor(a)))
    B, H, S, D = 2, 32, 2048, 1024
    Dh = D // H
    return {
        "q": _w((lambda *s: torch.randn(*s, dtype=torch.bfloat16) * 0.05)(B, H, S, Dh)),
        "k": _w((lambda *s: torch.randn(*s, dtype=torch.bfloat16) * 0.05)(B, H, S, Dh)),
        "v": _w((lambda *s: torch.randn(*s, dtype=torch.bfloat16) * 0.8)(B, H, S, Dh)),
        "t": _w(torch.abs((lambda *s: torch.randn(*s, dtype=torch.bfloat16) * 0.8)(H)) + 1.0),
    }

def reference(q, k, v, t):
    eps = 1e-6
    qn = q / (torch.sqrt((q * q).sum(axis=-1, keepdims=True)) + eps)
    kn = k / (torch.sqrt((k * k).sum(axis=-1, keepdims=True)) + eps)
    logits = torch.einsum('bhqd,bhkd->bhqk', qn, kn) * t[None, :, None, None]
    attn = _softmax(logits, axis=-1)
    return torch.einsum('bhqk,bhkd->bhqd', attn, v)
```

```python
import sys
HDR = '''.amdgcn_target "amdgcn-amd-amdhsa--gfx950"
.text
'''
def kernel(name, body, iters=2000, nvgpr=128, pre="", warm=False):
    s = f'''
.globl {name}
.p2align 8
.type {name},@function
{name}:
    s_load_dwordx4 s[4:7], s[0:1], 0
    v_lshrrev_b32 v1, 6, v0
    s_nop 0
    v_readfirstlane_b32 s20, v1
    v_lshlrev_b32 v2, 4, v0
    s_waitcnt lgkmcnt(0)
'''
    for r in range(8, nvgpr, 4):
        s += f"    global_load_dwordx4 v[{r}:{r+3}], v2, s[6:7]\n    v_add_u32 v2, 0x4000, v2\n"
    s += f'''    s_waitcnt vmcnt(0)
{pre}
    s_mov_b32 s21, {1 if warm else iters}
    s_mov_b32 s24, {1 if warm else 0}
{name}_again:
    s_barrier
    s_memtime s[8:9]
    s_memrealtime s[10:11]
    s_waitcnt lgkmcnt(0)
.p2align 6
{name}_loop:
{body}
    s_sub_u32 s21, s21, 1
    s_cmp_lg_u32 s21, 0
    s_cbranch_scc1 {name}_loop
    s_mov_b32 s21, {iters}
    s_sub_u32 s24, s24, 1
    s_cmp_eq_u32 s24, 0
    s_cbranch_scc1 {name}_again
    s_nop 15
    s_nop 15
    s_memtime s[12:13]
    s_memrealtime s[14:15]
    s_waitcnt lgkmcnt(0)
    s_sub_u32 s12, s12, s8
    s_subb_u32 s13, s13, s9
    s_sub_u32 s14, s14, s10
    s_subb_u32 s15, s15, s11
    v_mov_b32 v4, s12
    v_mov_b32 v5, s13
    v_mov_b32 v6, s14
    v_mov_b32 v7, s15
    s_load_dword s22, s[0:1], 0
    s_waitcnt lgkmcnt(0)
    s_mul_i32 s23, s2, WPW_{name}
    s_add_u32 s23, s23, s20
    s_lshl_b32 s23, s23, 4
    v_mov_b32 v3, s23
    global_store_dwordx4 v3, v[4:7], s[4:5]
    s_waitcnt vmcnt(0)
    s_endpgm
'''
    return s
def desc(name, nvgpr, lds=0):
    return f'''
.section .rodata,"a"
.p2align 6
.amdhsa_kernel {name}
  .amdhsa_next_free_vgpr {nvgpr}
  .amdhsa_next_free_sgpr 40
  .amdhsa_accum_offset {min(256,(nvgpr+3)//4*4)}
  .amdhsa_group_segment_fixed_size {lds}
  .amdhsa_kernarg_size 16
  .amdhsa_user_sgpr_count 2
  .amdhsa_user_sgpr_kernarg_segment_ptr 1
  .amdhsa_system_sgpr_workgroup_id_x 1
.end_amdhsa_kernel
.text
'''
def meta(names):
    s = '''
.amdgpu_metadata
---
amdhsa.version: [1, 2]
amdhsa.kernels:
'''
    for n, nv, lds in names:
        s += f'''  - .name: {n}
    .symbol: {n}.kd
    .kernarg_segment_size: 16
    .kernarg_segment_align: 8
    .group_segment_fixed_size: {lds}
    .private_segment_fixed_size: 0
    .wavefront_size: 64
    .sgpr_count: 40
    .vgpr_count: {nv}
    .max_flat_workgroup_size: 1024
    .args:
      - {{.name: kernargs, .size: 16, .offset: 0, .value_kind: by_value}}
'''
    s += '''...
.end_amdgpu_metadata
'''
    return s

def build(tests, fname, iters=2000, waves=(1,2,4), grid=256):
    out = HDR; names=[]; cmd=[]
    for t in tests:
        name, body, nv = t[0], t[1], t[2]
        pre = t[3] if len(t)>3 else ""
        lds = t[4] if len(t)>4 else 0
        for w in waves:
            if 512//(((nv+7)//8)*8) < w: continue
            n = f"{name}_w{w}"
            out += f".set WPW_{n}, {4*w}\n"
            out += kernel(n, body, iters, nv, pre) + desc(n, nv, lds)
            names.append((n,nv,lds))
            cmd.append(f"{n} {grid} {256*w}")
    out += meta(names)
    open(fname+".s","w").write(out)
    open(fname+".args","w").write(" ".join(cmd))
```

```python
from t8 import *
def body3(NQ=4, U=4, qk="bf16", rowsum=True, nops=0, cinit="0", order="q1 q2 p1 r1 p2 r2", pat=[4,4,3,1,3,1], dsafter=("r1","r2")):
    out=[]
    steps=U*NQ
    pend=[]
    for n in range(steps):
        j=n//NQ; i=n%NQ
        n1=n+1; j1=(n1//NQ); i1=n1%NQ
        n0=n-1; j0=(n0//NQ); i0=n0%NQ
        cur=SB+16*(n%4); nxt=SB+16*(n1%4); prv=SB+16*(n0%4)
        kf=KF+8*(j1%2); vf=VF+8*(j0%2)
        ex=[f"v_exp_f32 v{cur+e}, v{cur+e}" for e in range(16)]
        c0 = "0" if cinit=="0" else (r(CI,16) if cinit=="r" else cinit)
        m={"q1":f"v_mfma_f32_32x32x16_{qk} {r(nxt,16)}, {r(kf,4)}, {r(Q+8*i1,4)}, {c0}",
           "q2":f"v_mfma_f32_32x32x16_{qk} {r(nxt,16)}, {r(kf+4,4)}, {r(Q+8*i1+4,4)}, {r(nxt,16)}",
           "p1":f"v_smfmac_f32_32x32x32_bf16 {r(O+16*i0,16)}, {r(vf,4)}, {r(prv,8)}, v{IDX}",
           "r1":f"v_smfmac_f32_16x16x64_bf16 {r(RS+4*i0,4)}, {r(ONES,4)}, {r(prv,8)}, v{IDX}",
           "p2":f"v_smfmac_f32_32x32x32_bf16 {r(O+16*i0,16)}, {r(vf+4,4)}, {r(prv+8,8)}, v{IDX}",
           "r2":f"v_smfmac_f32_16x16x64_bf16 {r(RS+4*i0,4)}, {r(ONES,4)}, {r(prv+8,8)}, v{IDX}"}
        if i==NQ-1:
            kb=KF+8*(j%2); jj=(j+2)%U
            pend+= [f"ds_read_b128 {r(kb,4)}, v{AK} offset:{jj*2048}", f"ds_read_b128 {r(kb+4,4)}, v{AK} offset:{jj*2048+1024}"]
        if i==1:
            vb=VF+8*((j+1)%2); jv=(j+1)%U
            pend+=[f"ds_read_b64_tr_b16 {r(vb+2*t,2)}, v{AV} offset:{jv*2048+512*t}" for t in range(4)]
        k=0
        for key,c in zip(order.split(),pat):
            if key in m: out.append(m[key])
            if key in dsafter and pend: out.append(pend.pop(0))
            if key=="p2" and i==NQ-2: out.append("s_waitcnt lgkmcnt(3)" if NQ==4 else "s_waitcnt lgkmcnt(0)")
            if key=="p1" and i==0: out.append("s_waitcnt lgkmcnt(2)" if NQ==4 else "s_nop 0")
            out+=ex[k:k+c]; k+=c
            if key=="q1":
                for _ in range(nops): out.append("s_nop 0")
        assert k==16
    out+=pend
    out.append(f"v_add_u32 v{AK}, {U*2048}, v{AK}"); out.append(f"v_and_b32 v{AK}, 0x7fff, v{AK}")
    out.append(f"v_add_u32 v{AV}, {U*2048}, v{AV}"); out.append(f"v_and_b32 v{AV}, 0x7fff, v{AV}")
    out.append(f"v_or_b32 v{AV}, 0x8000, v{AV}")
    return "\n".join("    "+x for x in out)
if __name__=="__main__":
    T=[]
    P=pre(128,wpw=4)
    T.append(("V2w1_opt", body3(), P, 1, 16))
    T.append(("V2w1_opt_u8", body3(U=8), P, 1, 8))
    T.append(("V2w1_nop2", body3(nops=2), P, 1, 16))
    T.append(("V2w1_nop4", body3(nops=4), P, 1, 16))
    T.append(("V2w1_nop8", body3(nops=8), P, 1, 16))
    T.append(("V2w1_nop16", body3(nops=16), P, 1, 16))
    T.append(("V2w1_cm4", body3(cinit="-4.0"), P, 1, 16))
    T.append(("V2w1_cr", body3(cinit="r"), P, 1, 16))
    T.append(("V2w1_old", body("V2",NQ=4), P, 1, 16))
    T.append(("V2w2_old", body("V2"), pre(64), 2, 16))
    T.append(("V2w2_opt", body3(NQ=2,dsafter=("r1","r2","p1")), pre(64), 2, 16))
    buildx(T,"t11")
```

```python
from t11 import *
import re
T=[]
P=pre(128,wpw=4)
def insert_after(lines, pred, ins, every):
    out=[];c=0
    for i,l in enumerate(lines):
        out.append(l)
        if pred(i,l):
            c+=1
            if c%every==0: out+=["    "+x for x in ins]
    return "\n".join(out)
def withbar(b, every=24):
    lines=b.split("\n")
    isp=lambda i,l: "32x32x32" in l and "waitcnt" not in lines[i+1]
    return insert_after(lines,isp,["s_barrier"],every)
def strip_addr(b): return "\n".join(l for l in b.split("\n") if not re.search(r"v_add_u32|v_and_b32|v_or_b32",l))
b16=strip_addr(body3(cinit="4.0",U=16))
b4=body3(cinit="4.0",U=4)
full="\n".join([b16]*4)
T.append(("u4_warm", b4, P, 1, 16, True))
T.append(("u16_warm", b16, P, 1, 4, True))
T.append(("u16_cold", b16, P, 1, 4, False))
T.append(("u64_warm", full, P, 1, 1, True))
T.append(("u64_cold", full, P, 1, 1, False))
T.append(("u64_bar_warm", withbar(full), P, 1, 1, True))
T.append(("u64_bar_cold", withbar(full), P, 1, 1, False))
T.append(("u16_bar_cold", withbar(b16), P, 1, 4, False))
T.append(("u4_bar_cold", withbar(b4), P, 1, 16, False))
T.append(("u64_bar6_cold", withbar(full,6), P, 1, 1, False))
out = HDR; names=[]; cmd=[]
for (n, body_, pre_, w, iters, warm) in T:
    out += f".set WPW_{n}, {4*w}\n"
    out += kernel(n, body_, iters, 8, pre_, warm=warm) + desc(n, NV, 81920)
    names.append((n,NV,81920)); cmd.append(f"{n} 256 {256*w}")
out += meta(names)
open("t16.s","w").write(out); open("t16.args","w").write(" ".join(cmd))
```

```python
from gen import *
import sys
Q=8
KF=40
VF=56
SB=72
PK=136
O=152
RS=216
ONES=232
IDX=236
AK=237; AV=238
CI=240
NV=256
def pre(nq_rows, f16=False, wpw=8):
    s=[]
    nthr=wpw*64
    s.append("v_lshlrev_b32 v2, 4, v0")
    s.append("v_mov_b32 v3, v2")
    koff = (5<<20) if f16 else (1<<20)
    s.append(f"v_add_u32 v2, {koff}, v2")
    n=32768//(nthr*16)
    for i in range(n):
        s.append(f"global_load_dwordx4 v[4:7], v2, s[6:7]")
        s.append("s_waitcnt vmcnt(0)")
        s.append(f"ds_write_b128 v3, v[4:7] offset:{i*nthr*16}")
        s.append(f"v_add_u32 v2, {nthr*16}, v2")
    s.append("v_lshlrev_b32 v2, 4, v0")
    s.append(f"v_add_u32 v2, {2<<20}, v2")
    for i in range(n):
        s.append(f"global_load_dwordx4 v[4:7], v2, s[6:7]")
        s.append("s_waitcnt vmcnt(0)")
        s.append(f"ds_write_b128 v3, v[4:7] offset:{32768+i*nthr*16}")
        s.append(f"v_add_u32 v2, {nthr*16}, v2")
    s.append("v_lshlrev_b32 v2, 4, v0")
    qoff = (4<<20) if f16 else 0
    s.append(f"v_add_u32 v2, {qoff}, v2")
    for r in range(Q, Q+32, 4):
        s.append(f"global_load_dwordx4 v[{r}:{r+3}], v2, s[6:7]")
        s.append(f"v_add_u32 v2, 0x4000, v2")
    for r in range(KF, NV): s.append(f"v_mov_b32 v{r}, 0")
    for r in range(CI, CI+16): s.append(f"v_mov_b32 v{r}, -2.0")
    s.append(f"v_mov_b32 v{IDX}, 0xdddddddd")
    s.append("v_and_b32 v4, 7, v0")
    s.append("v_cmp_eq_u32 vcc, 0, v4")
    s.append("v_mov_b32 v5, 0x3f803f80")
    s.append("s_nop 1")
    s.append(f"v_cndmask_b32 v{ONES}, 0, v5, vcc")
    s.append(f"v_cndmask_b32 v{ONES+1}, 0, v5, vcc")
    s.append("v_cmp_eq_u32 vcc, 4, v4")
    s.append("s_nop 1")
    s.append(f"v_cndmask_b32 v{ONES+2}, 0, v5, vcc")
    s.append(f"v_cndmask_b32 v{ONES+3}, 0, v5, vcc")
    s.append("v_and_b32 v4, 63, v0")
    s.append(f"v_lshlrev_b32 v{AK}, 4, v4")
    s.append(f"v_lshlrev_b32 v{AV}, 3, v4")
    s.append(f"v_add_u32 v{AV}, 32768, v{AV}")
    s.append("s_waitcnt vmcnt(0) lgkmcnt(0)")
    return "\n".join("    "+x for x in s)

def r(a,n): return f"v[{a}:{a+n-1}]"
def interleave(mf, valu, pattern):
    out=[];k=0
    for m,c in zip(mf,pattern):
        out.append(m); out+=valu[k:k+c]; k+=c
    assert k==len(valu), (k,len(valu))
    return out

def body(variant, NQ=2, U=4, f16=False, cinit="0", rowsum=True, lds=True):
    qk = "f16" if f16 else "bf16"
    out=[]
    steps=U*NQ
    for n in range(steps):
        j=n//NQ; i=n%NQ
        n1=n+1; j1=(n1//NQ); i1=n1%NQ
        n0=n-1; j0=(n0//NQ); i0=n0%NQ
        cur=SB+16*(n%4); nxt=SB+16*(n1%4); prv=SB+16*(n0%4)
        kf=KF+8*(j1%2); vf=VF+8*(j0%2)
        ex=[f"v_exp_f32 v{cur+e}, v{cur+e}" for e in range(16)]
        c0 = "0" if cinit=="0" else None
        if variant=="V2":
            mf=[f"v_mfma_f32_32x32x16_{qk} {r(nxt,16)}, {r(kf,4)}, {r(Q+8*i1,4)}, {c0 or r(CI,16)}",
                f"v_mfma_f32_32x32x16_{qk} {r(nxt,16)}, {r(kf+4,4)}, {r(Q+8*i1+4,4)}, {r(nxt,16)}",
                f"v_smfmac_f32_32x32x32_bf16 {r(O+16*i0,16)}, {r(vf,4)}, {r(prv,8)}, v{IDX}",
                f"v_smfmac_f32_16x16x64_bf16 {r(RS+4*i0,4)}, {r(ONES,4)}, {r(prv,8)}, v{IDX}",
                f"v_smfmac_f32_32x32x32_bf16 {r(O+16*i0,16)}, {r(vf+4,4)}, {r(prv+8,8)}, v{IDX}",
                f"v_smfmac_f32_16x16x64_bf16 {r(RS+4*i0,4)}, {r(ONES,4)}, {r(prv+8,8)}, v{IDX}"]
            pat=[3,3,3,2,3,2]
            if not rowsum:
                mf=[mf[0],mf[1],mf[2],mf[4]]; pat=[4,4,4,4]
            st=interleave(mf,ex,pat)
        elif variant=="V1":
            pk=PK+8*(n%2); pk0=PK+8*(n0%2)
            va=[]
            for e in range(8):
                va+= [ex[2*e],ex[2*e+1]]
                if e>0: va.append(f"v_cvt_pk_bf16_f32 v{pk+e-1}, v{cur+2*e-2}, v{cur+2*e-1}")
            va.insert(2, f"v_cvt_pk_bf16_f32 v{pk0+7}, v{prv+14}, v{prv+15}")
            mf=[f"v_mfma_f32_32x32x16_{qk} {r(nxt,16)}, {r(kf,4)}, {r(Q+8*i1,4)}, {c0 or r(CI,16)}",
                f"v_mfma_f32_32x32x16_{qk} {r(nxt,16)}, {r(kf+4,4)}, {r(Q+8*i1+4,4)}, {r(nxt,16)}",
                f"v_mfma_f32_32x32x16_bf16 {r(O+16*i0,16)}, {r(vf,4)}, {r(pk0,4)}, {r(O+16*i0,16)}",
                f"v_mfma_f32_32x32x16_bf16 {r(O+16*i0,16)}, {r(vf+4,4)}, {r(pk0+4,4)}, {r(O+16*i0,16)}",
                f"v_smfmac_f32_16x16x64_bf16 {r(RS+4*i0,4)}, {r(ONES,4)}, {r(pk0,8)}, v{IDX}"]
            pat=[5,5,5,5,4]
            if not rowsum: mf=mf[:4]; pat=[6,6,6,6]
            st=interleave(mf,va,pat)
        elif variant=="V3":
            c4 = "0" if cinit=="0" else r(CI,4)
            mf=[]
            for u in range(2):
                mf+=[f"v_mfma_f32_16x16x32_{qk} {r(nxt+8*u,4)}, {r(kf,4)}, {r(Q+8*i1+4*u,4)}, {c4}",
                     f"v_mfma_f32_16x16x32_{qk} {r(nxt+8*u+4,4)}, {r(kf+4,4)}, {r(Q+8*i1+4*u,4)}, {c4}"]
            for u in range(2):
                mf+=[f"v_smfmac_f32_16x16x64_bf16 {r(O+16*i0+8*u,4)}, {r(vf,4)}, {r(prv+8*u,8)}, v{IDX}",
                     f"v_smfmac_f32_16x16x64_bf16 {r(O+16*i0+8*u+4,4)}, {r(vf+4,4)}, {r(prv+8*u,8)}, v{IDX}"]
                if rowsum: mf.append(f"v_smfmac_f32_16x16x64_bf16 {r(RS+8*(i0%2)+4*u,4)}, {r(ONES,4)}, {r(prv+8*u,8)}, v{IDX}")
            pat=[2,2,2,2,1,2,1,1,2,1] if rowsum else [2]*8
            st=interleave(mf,ex,pat)
        elif variant=="V4":
            c4 = "0" if cinit=="0" else r(CI,4)
            pk=PK+8*(n%2); pk0=PK+8*(n0%2)
            va=[]
            for e in range(8):
                va+= [ex[2*e],ex[2*e+1]]
                if e>0: va.append(f"v_cvt_pk_bf16_f32 v{pk+e-1}, v{cur+2*e-2}, v{cur+2*e-1}")
            va.insert(2, f"v_cvt_pk_bf16_f32 v{pk0+7}, v{prv+14}, v{prv+15}")
            mf=[]
            for u in range(2):
                mf+=[f"v_mfma_f32_16x16x32_{qk} {r(nxt+8*u,4)}, {r(kf,4)}, {r(Q+8*i1+4*u,4)}, {c4}",
                     f"v_mfma_f32_16x16x32_{qk} {r(nxt+8*u+4,4)}, {r(kf+4,4)}, {r(Q+8*i1+4*u,4)}, {c4}"]
            for u in range(2):
                mf+=[f"v_mfma_f32_16x16x32_bf16 {r(O+16*i0+8*u,4)}, {r(vf,4)}, {r(pk0+4*u,4)}, {r(O+16*i0+8*u,4)}",
                     f"v_mfma_f32_16x16x32_bf16 {r(O+16*i0+8*u+4,4)}, {r(vf+4,4)}, {r(pk0+4*u,4)}, {r(O+16*i0+8*u+4,4)}"]
            if rowsum: mf.append(f"v_smfmac_f32_16x16x64_bf16 {r(RS+4*i0,4)}, {r(ONES,4)}, {r(pk0,8)}, v{IDX}")
            pat=[3,3,3,3,3,3,2,2,2] if rowsum else [3]*8
            st=interleave(mf,va,pat)
        elif variant=="EXP":
            st=ex
        pre_=[]; ins=[]
        if lds and variant!="EXP":
            if i==NQ-1: pre_.append("s_waitcnt lgkmcnt(0)")
            if i==NQ-1:
                kb=KF+8*(j%2)
                jj=(j+2)%U
                ins+= [f"ds_read_b128 {r(kb,4)}, v{AK} offset:{jj*2048}", f"ds_read_b128 {r(kb+4,4)}, v{AK} offset:{jj*2048+1024}"]
                vb=VF+8*((j+1)%2)
                jv=(j+1)%U
                vv=[f"ds_read_b64_tr_b16 {r(vb+2*t,2)}, v{AV} offset:{jv*2048+512*t}" for t in range(4)]
                if NQ>=2: ins+=vv
                else: st=st+vv
            pos=2
            for x in ins:
                st.insert(pos,x); pos+=3
        out+=pre_+st
    if lds and variant!="EXP":
        out.append(f"v_add_u32 v{AK}, {U*2048}, v{AK}"); out.append(f"v_and_b32 v{AK}, 0x7fff, v{AK}")
        out.append(f"v_add_u32 v{AV}, {U*2048}, v{AV}"); out.append(f"v_and_b32 v{AV}, 0x7fff, v{AV}")
        out.append(f"v_or_b32 v{AV}, 0x8000, v{AV}")
    return "\n".join("    "+x for x in out)

def buildx(tests, fname):
    out = HDR; names=[]; cmd=[]
    for (n, body_, pre_, w, iters) in tests:
        out += f".set WPW_{n}, {4*w}\n"
        k = kernel(n, body_, iters, 8, pre_, warm=True)
        out += k + desc(n, NV, 65536)
        names.append((n,NV,65536))
        cmd.append(f"{n} 256 {256*w}")
    out += meta(names)
    open(fname+".s","w").write(out)
    open(fname+".args","w").write(" ".join(cmd))
if __name__=="__main__":
    T=[]
    for v in ("V1","V2","V3","V4"):
        T.append((f"{v}_w2", body(v), pre(64), 2, 16))
        T.append((f"{v}_w2_f16", body(v,f16=True), pre(64,f16=True), 2, 16))
        T.append((f"{v}_w2_ci", body(v,cinit="r"), pre(64), 2, 16))
        T.append((f"{v}_w2_nors", body(v,rowsum=False), pre(64), 2, 16))
        T.append((f"{v}_w1", body(v,NQ=4), pre(128,wpw=4), 1, 16))
    T.append(("EXP_w2", body("EXP"), pre(64), 2, 16))
    buildx(T,"t8")
```

```python
from t16 import *
T=[]
b=b16
lines=b.split("\n")
isp=lambda i,l: "32x32x32" in l and "waitcnt" not in lines[i+1]
b_w=b.replace("lgkmcnt(3)","lgkmcnt(0)").replace("lgkmcnt(2)","lgkmcnt(0)")
lines=b_w.split("\n")
cnt=[0]
def ins_ds(lines, maker):
    out=[];c=0
    for i,l in enumerate(lines):
        out.append(l)
        if isp(i,l):
            c+=1; out+=["    "+x for x in maker(c)]
    return "\n".join(out)
T.append(("base", b_w, P, 1, 4, True))
T.append(("base2", b_w, P, 1, 4, True))
T.append(("x_ds128", ins_ds(lines, lambda c:[f"ds_read_b128 v[240:243], v{AK} offset:{(c*1024)%32768}"]), P, 1, 4, True))
T.append(("x_salu", ins_ds(lines, lambda c:["s_add_u32 s30, s30, 1"]*3), P, 1, 4, True))
T.append(("no_ds", "\n".join(l for l in lines if "ds_read" not in l), P+"\n"+"\n".join(l for l in lines[:200] if "ds_read" in l), 1, 4, True))
out = HDR; names=[]; cmd=[]
for (n, body_, pre_, w, iters, warm) in T:
    out += f".set WPW_{n}, {4*w}\n"
    k=kernel(n, body_, iters, 8, pre_, warm=bool(warm))
    out += k + desc(n, NV, 81920)
    names.append((n,NV,81920)); cmd.append(f"{n} 256 {256*w}")
out += meta(names)
open("t18.s","w").write(out); open("t18.args","w").write(" ".join(cmd))
```

```python
import sys, struct
NAME = "standalone__qk_norm__prompt"

def f2u(x): return struct.unpack("<I", struct.pack("<f", x))[0]
LOG2E = 1.4426950408889634

class Opt:
    thresh = 16.0
    cinit = "4.0"
    force_help = False
    stamps = False
    ksc1 = True
    l2pf = False

SQ, SK, SV, SO, SW, SD = 4, 8, 12, 16, 20, 24
sW, sJ, sHEAD, sTS = 28, 29, 30, 31
sBASE, sVOFF, sKOFF, sCNT = 32, 33, 34, 35
sARG = 36
sT0, sT1, sT2, sT3 = 50, 51, 52, 53
sFLAG = 54
sWL = 55
sQOFF = 56
sDBG = 58
sCNT2 = 60
sEPS = 61
vOFF, vLIN, vAV, vKW, vIDX, vFO, vONE = 1, 2, 3, 4, 5, 6, 7
Q = 8
O = 40
RS = 104
SB = 120
KR = 184
ONES = 216
T = 220
NV = 236
aK = 0
aV = 16
NA = 32

def v(a, n=1): return f"v{a}" if n == 1 else f"v[{a}:{a+n-1}]"
def a(x, n=1): return f"a{x}" if n == 1 else f"a[{x}:{x+n-1}]"
def s(x, n=1): return f"s{x}" if n == 1 else f"s[{x}:{x+n-1}]"

def norm_pair(ta, tb, qa, qb, tmp):
    o = []
    x, y = tmp, tmp + 1
    ra, rb = tmp, tmp + 2
    u = tmp + 4
    for i in range(8):
        o.append(f"v_dot2_f32_bf16 {v(x)}, {v(ta+i)}, {v(ta+i)}, {'0' if i==0 else v(x)}")
        if tb is not None:
            o.append(f"v_dot2_f32_bf16 {v(y)}, {v(tb+i)}, {v(tb+i)}, {'0' if i==0 else v(y)}")
    if tb is None:
        o.append("s_nop 2")
        o.append(f"v_mov_b32 {v(y)}, {v(x)}")
        o.append("s_nop 1")
    else:
        o.append("s_nop 2")
    o.append(f"v_permlane32_swap_b32 {v(x)}, {v(y)}")
    o.append("s_nop 0")
    o.append(f"v_add_f32 {v(x)}, {v(x)}, {v(y)}")
    o.append(f"v_sqrt_f32 {v(x)}, {v(x)}")
    o.append("s_nop 0")
    o.append(f"v_add_f32 {v(x)}, {s(sEPS)}, {v(x)}")
    o.append(f"v_rcp_f32 {v(x)}, {v(x)}")
    o.append("s_nop 0")
    if tb is not None:
        if qa and qb: o.append(f"v_mul_f32 {v(x)}, {s(sTS)}, {v(x)}")
        o.append(f"v_mov_b32 {v(rb)}, {v(x)}")
        o.append("s_nop 1")
        o.append(f"v_permlane32_swap_b32 {v(ra)}, {v(rb)}")
        o.append("s_nop 0")
        if qa and not qb: o.append(f"v_mul_f32 {v(ra)}, {s(sTS)}, {v(ra)}")
        if qb and not qa: o.append(f"v_mul_f32 {v(rb)}, {s(sTS)}, {v(rb)}")
    elif qa:
        o.append(f"v_mul_f32 {v(ra)}, {s(sTS)}, {v(ra)}")
    sc = []
    for (t, r) in ((ta, ra), (tb, rb)):
        if t is None: continue
        l = []
        for i in range(8):
            l += [f"v_lshlrev_b32 {v(u)}, 16, {v(t+i)}",
                  f"v_and_b32 {v(u+1)}, 0xffff0000, {v(t+i)}",
                  f"v_pk_mul_f32 {v(u,2)}, {v(u,2)}, {v(r,2)} op_sel_hi:[1,0]",
                  f"v_cvt_pk_bf16_f32 {v(t+i)}, {v(u)}, {v(u+1)}"]
        sc.append(l)
    return o, sc

def epilogue_tile(i, tmp, oreg, rsreg, soff):
    o = [f"v_rcp_f32 {v(tmp)}, {v(rsreg)}", "s_nop 0"]
    for r in range(0, 16, 2):
        o.append(f"v_pk_mul_f32 {v(oreg+r,2)}, {v(oreg+r,2)}, {v(tmp,2)} op_sel_hi:[1,0]")
    for r in range(8):
        o.append(f"v_cvt_pk_bf16_f32 {v(oreg+r)}, {v(oreg+2*r)}, {v(oreg+2*r+1)}")
    o.append(f"buffer_store_dwordx4 {v(oreg,4)}, {v(vOFF)}, {s(SO,4)}, {soff} offen offset:{(i%2)*2048}")
    o.append(f"buffer_store_dwordx4 {v(oreg+4,4)}, {v(vOFF)}, {s(SO,4)}, {soff} offen offset:{(i%2)*2048+16}")
    return o

def mf_step(n, opt):
    n1, n0 = n + 1, n - 1
    j1, i1 = n1 // 4, n1 % 4
    j0, i0 = n0 // 4, n0 % 4
    nxt, prv = SB + 16 * (n1 % 4), SB + 16 * (n0 % 4)
    kf, vf = aK + 8 * (j1 % 2), aV + 8 * (j0 % 2)
    return {
        "q1": f"v_mfma_f32_32x32x16_bf16 {v(nxt,16)}, {a(kf,4)}, {v(Q+8*i1,4)}, {opt.cinit}",
        "q2": f"v_mfma_f32_32x32x16_bf16 {v(nxt,16)}, {a(kf+4,4)}, {v(Q+8*i1+4,4)}, {v(nxt,16)}",
        "p1": f"v_smfmac_f32_32x32x32_bf16 {v(O+16*i0,16)}, {a(vf,4)}, {v(prv,8)}, {v(vIDX)}",
        "r1": f"v_smfmac_f32_16x16x64_bf16 {v(RS+4*i0,4)}, {v(ONES,4)}, {v(prv,8)}, {v(vIDX)}",
        "p2": f"v_smfmac_f32_32x32x32_bf16 {v(O+16*i0,16)}, {a(vf+4,4)}, {v(prv+8,8)}, {v(vIDX)}",
        "r2": f"v_smfmac_f32_16x16x64_bf16 {v(RS+4*i0,4)}, {v(ONES,4)}, {v(prv+8,8)}, {v(vIDX)}"}

ORDER = ["q1", "q2", "p1", "r1", "p2", "r2"]
PAT = [4, 4, 3, 1, 3, 1]

def k_read(jj, f):
    return f"ds_read_b128 {a(aK+8*(jj%2)+4*f,4)}, {v(vLIN)} offset:{(jj%16)*2048+1024*f}"
def v_read(jj, m, t):
    return f"ds_read_b64_tr_b16 {a(aV+8*(jj%2)+4*m+2*t,2)}, {v(vAV)} offset:{32768+(jj%16)*2048+1024*m+256*t}"

def emit_steps(n_lo, n_hi, opt, slots, valu, skip=()):
    out = []
    for n in range(n_lo, n_hi):
        m = mf_step(n, opt)
        cur = SB + 16 * (n % 4)
        ex = [f"v_exp_f32 {v(cur+e)}, {v(cur+e)}" for e in range(16)]
        side = list(valu.get(n, []))
        per = -(-len(side) // 16) if side else 0
        k = 0
        for key, c in zip(ORDER, PAT):
            if (n, key) not in skip: out.append(m[key])
            out += slots.get((n, key), [])
            for e in ex[k:k+c]:
                out.append(e)
                out += side[:per]; side = side[per:]
            k += c
        assert not side
    return out

def std_slots(slots, jj_lo, jj_hi):
    def add(n, key, x): slots.setdefault((n, key), []).append(x)
    for jj in range(jj_lo, jj_hi):
        n = 4 * jj
        add(n+1, "q2", "s_waitcnt lgkmcnt(0)")
        add(n+1, "r1", k_read(jj+1, 0)); add(n+1, "r2", k_read(jj+1, 1))
        add(n+2, "r1", v_read(jj+1, 0, 0))
        add(n+2, "p2", "s_waitcnt lgkmcnt(1)")
        add(n+2, "r2", v_read(jj+1, 0, 1))
        add(n+3, "r1", v_read(jj+1, 1, 0)); add(n+3, "r2", v_read(jj+1, 1, 1))

STAMP_NAMES=[]
def gen(opt):
    L = []
    A = L.append
    STAMP_NAMES.clear()
    def stamp(name):
        if not opt.stamps: return "; stamp " + name
        i = len(STAMP_NAMES); STAMP_NAMES.append(name)
        assert i < 19
        return f"s_memrealtime {s(62+2*i,2)}"
    def E(x): L.extend(x)
    ksc = " sc1" if opt.ksc1 else ""
    A("s_cmp_ge_u32 s2, 256")
    A("s_cbranch_scc1 L_end")
    A(stamp("entry"))
    A(f"s_load_dwordx8 {s(sARG,8)}, s[0:1], 0")
    A(f"s_load_dwordx4 {s(sARG+8,4)}, s[0:1], 32")
    A(f"s_load_dwordx2 {s(sARG+12,2)}, s[0:1], 48")
    A(f"v_lshrrev_b32 {v(T)}, 6, v0")
    A(f"v_and_b32 v0, 63, v0")
    A(f"v_readfirstlane_b32 {s(sW)}, {v(T)}")
    A(f"s_and_b32 {s(sT0)}, s2, 7")
    A(f"s_lshr_b32 {s(sT1)}, s2, 3")
    A(f"s_and_b32 {s(sJ)}, {s(sT1)}, 3")
    A(f"s_lshr_b32 {s(sT1)}, {s(sT1)}, 2")
    A(f"s_lshl_b32 {s(sT0)}, {s(sT0)}, 3")
    A(f"s_add_u32 {s(sHEAD)}, {s(sT0)}, {s(sT1)}")
    A(f"s_lshl_b32 {s(sT2)}, {s(sHEAD)}, 17")
    A(f"s_lshl_b32 {s(sWL)}, {s(sW)}, 11")
    A(f"s_lshl_b32 {s(sBASE)}, {s(sJ)}, 15")
    A(f"s_lshl_b32 {s(sQOFF)}, {s(sW)}, 13")
    A(f"s_add_u32 {s(sQOFF)}, {s(sQOFF)}, {s(sBASE)}")
    A(f"s_add_u32 {s(sBASE)}, {s(sBASE)}, {s(sWL)}")
    A(f"s_and_b32 {s(sT3)}, {s(sHEAD)}, 30")
    A(f"s_lshl_b32 {s(sT3)}, {s(sT3)}, 1")
    A(f"s_mov_b32 {s(sEPS)}, {hex(f2u(1e-6))}")
    A(f"v_and_b32 {v(T)}, 31, v0")
    A(f"v_lshrrev_b32 {v(T+1)}, 5, v0")
    A(f"v_lshlrev_b32 {v(vOFF)}, 6, {v(T)}")
    A(f"v_lshl_add_u32 {v(vOFF)}, {v(T+1)}, 5, {v(vOFF)}")
    A(f"v_lshlrev_b32 {v(vLIN)}, 4, v0")
    for srd in (SQ, SK, SV, SO, SW):
        A(f"s_mov_b32 {s(srd+2)}, 0x20000")
        A(f"s_mov_b32 {s(srd+3)}, 0x20000")
    A(f"s_mov_b32 {s(SD+2)}, 256")
    A(f"s_mov_b32 {s(SD+3)}, 0x20000")
    A("s_waitcnt lgkmcnt(0)")
    A(stamp("kernarg"))
    A(f"s_load_dword {s(sTS)}, {s(sARG+6,2)}, {s(sT3)}")
    for srd, arg in ((SK, 2), (SQ, 0), (SV, 4)):
        A(f"s_add_u32 {s(srd)}, {s(sARG+arg)}, {s(sT2)}")
        A(f"s_addc_u32 {s(srd+1)}, {s(sARG+arg+1)}, 0")
    A(f"buffer_load_dwordx4 {v(KR,4)}, {v(vOFF)}, {s(SK,4)}, {s(sBASE)} offen")
    A(f"buffer_load_dwordx4 {v(KR+4,4)}, {v(vOFF)}, {s(SK,4)}, {s(sBASE)} offen offset:16")
    A(f"s_add_u32 {s(sT0)}, {s(sQOFF)}, 4096")
    for i in range(4):
        so = s(sQOFF) if i < 2 else s(sT0)
        A(f"buffer_load_dwordx4 {v(Q+8*i,4)}, {v(vOFF)}, {s(SQ,4)}, {so} offen offset:{(i%2)*2048}")
        A(f"buffer_load_dwordx4 {v(Q+8*i+4,4)}, {v(vOFF)}, {s(SQ,4)}, {so} offen offset:{(i%2)*2048+16}")
    A(f"s_add_u32 m0, {s(sWL)}, 32768")
    A(f"s_add_u32 {s(sT0)}, {s(sBASE)}, 8192")
    A(f"buffer_load_dwordx4 {v(vLIN)}, {s(SV,4)}, {s(sBASE)} offen lds")
    A(f"buffer_load_dwordx4 {v(vLIN)}, {s(SV,4)}, {s(sBASE)} offen offset:1024 lds")
    A(f"s_add_u32 {s(sT1)}, {s(sBASE)}, 16384")
    A(f"s_add_u32 {s(sKOFF)}, {s(sBASE)}, 24576")
    for t, so in ((1, sT0), (2, sT1), (3, sKOFF)):
        A(f"buffer_load_dwordx4 {v(KR+8*t,4)}, {v(vOFF)}, {s(SK,4)}, {s(so)} offen")
        A(f"buffer_load_dwordx4 {v(KR+8*t+4,4)}, {v(vOFF)}, {s(SK,4)}, {s(so)} offen offset:16")
    A(f"s_add_u32 m0, {s(sWL)}, {32768+8192}")
    A(f"s_mov_b32 {s(sVOFF)}, {s(sT0)}")
    A(f"buffer_load_dwordx4 {v(vLIN)}, {s(SV,4)}, {s(sT0)} offen lds")
    A(f"buffer_load_dwordx4 {v(vLIN)}, {s(SV,4)}, {s(sT0)} offen offset:1024 lds")
    for srd, arg in ((SO, 8), (SW, 12)):
        A(f"s_add_u32 {s(srd)}, {s(sARG+arg)}, {s(sT2)}")
        A(f"s_addc_u32 {s(srd+1)}, {s(sARG+arg+1)}, 0")
    A(f"s_mov_b32 {s(SD)}, {s(sARG+10)}")
    A(f"s_mov_b32 {s(SD+1)}, {s(sARG+11)}")
    A(f"s_lshl_b32 {s(sT2)}, {s(sHEAD)}, 2")
    A(f"s_add_u32 {s(sDBG)}, {s(sARG+10)}, {s(sT2)}")
    A(f"s_addc_u32 {s(sDBG+1)}, {s(sARG+11)}, 0")
    A(f"v_mov_b32 {v(vIDX)}, 0xdddddddd")
    A(f"v_mov_b32 {v(vONE)}, 1")
    A(f"v_add_u32 {v(vKW)}, {s(sWL)}, {v(vLIN)}")
    A(f"s_add_u32 {s(sT2)}, {s(sT2)}, {s(sJ)}")
    A(f"v_lshlrev_b32 {v(vFO)}, 4, {v(vKW)}")
    A(f"v_add_u32 {v(vFO)}, {s(sT2)}, {v(vFO)}")
    A(f"v_bfe_u32 {v(T+2)}, v0, 2, 2")
    A(f"v_lshl_add_u32 {v(T+2)}, {v(T+1)}, 3, {v(T+2)}")
    A(f"v_lshlrev_b32 {v(vAV)}, 6, {v(T+2)}")
    A(f"v_and_b32 {v(T+2)}, 1, v0")
    A(f"v_lshl_add_u32 {v(vAV)}, {v(T+2)}, 5, {v(vAV)}")
    A(f"v_bfe_u32 {v(T+2)}, v0, 4, 1")
    A(f"v_lshl_add_u32 {v(vAV)}, {v(T+2)}, 4, {v(vAV)}")
    A(f"v_bfe_u32 {v(T+2)}, v0, 1, 1")
    A(f"v_lshl_add_u32 {v(vAV)}, {v(T+2)}, 3, {v(vAV)}")
    A(f"v_and_b32 {v(T+2)}, 7, v0")
    A(f"v_mov_b32 {v(T+3)}, 0x3f803f80")
    A(f"v_cmp_eq_u32 vcc, 0, {v(T+2)}")
    A("s_nop 1")
    A(f"v_cndmask_b32 {v(ONES)}, 0, {v(T+3)}, vcc")
    A(f"v_cndmask_b32 {v(ONES+1)}, 0, {v(T+3)}, vcc")
    A(f"v_cmp_eq_u32 vcc, 4, {v(T+2)}")
    A("s_nop 1")
    A(f"v_cndmask_b32 {v(ONES+2)}, 0, {v(T+3)}, vcc")
    A(f"v_cndmask_b32 {v(ONES+3)}, 0, {v(T+3)}, vcc")
    for r in range(O, RS + 16): A(f"v_mov_b32 {v(r)}, 0")
    A("s_waitcnt lgkmcnt(0)")
    A(f"s_and_b32 {s(sT0)}, {s(sHEAD)}, 1")
    A(f"s_lshl_b32 {s(sT0)}, {s(sT0)}, 4")
    A(f"s_lshr_b32 {s(sTS)}, {s(sTS)}, {s(sT0)}")
    A(f"s_lshl_b32 {s(sTS)}, {s(sTS)}, 16")
    A(f"s_and_b32 {s(sT0)}, {s(sTS)}, 0x7fffffff")
    A(f"v_mov_b32 {v(T)}, {hex(f2u(LOG2E))}")
    A(f"v_mul_f32 {v(T)}, {s(sTS)}, {v(T)}")
    A("s_nop 0")
    A(f"v_readfirstlane_b32 {s(sTS)}, {v(T)}")
    A(f"s_cmp_gt_u32 {s(sT0)}, {hex(f2u(opt.thresh))}")
    A("s_cbranch_scc1 L_slow")
    A(stamp("t"))
    A("s_waitcnt vmcnt(16)")
    A(stamp("K0Q0"))
    h, sc = norm_pair(KR, Q, False, True, T)
    E(h); E(sc[0])
    A(f"ds_write_b128 {v(vKW)}, {v(KR,4)}")
    A(f"ds_write_b128 {v(vKW)}, {v(KR+4,4)} offset:1024")
    A(f"buffer_store_dwordx4 {v(KR,4)}, {v(vLIN)}, {s(SW,4)}, {s(sBASE)} offen sc1")
    A(f"buffer_store_dwordx4 {v(KR+4,4)}, {v(vLIN)}, {s(SW,4)}, {s(sBASE)} offen offset:1024 sc1")
    E(sc[1])
    A("s_waitcnt vmcnt(14)")
    A(stamp("Q12"))
    h, sc = norm_pair(Q + 8, Q + 16, True, True, T)
    E(h); E(sc[0])
    A("s_waitcnt vmcnt(10) lgkmcnt(0)")
    A("s_barrier")
    A(stamp("B0"))
    A(k_read(0, 0)); A(k_read(0, 1))
    for m in range(2):
        for t in range(2): A(v_read(0, m, t))
    E(sc[1])
    h, sc = norm_pair(Q + 24, None, True, False, T)
    E(h)
    A("s_waitcnt lgkmcnt(0)")
    m0 = mf_step(-1, opt)
    A(m0["q1"]); A(m0["q2"])
    E(sc[0])
    slots, valu = {}, {}
    def add(n, key, x): slots.setdefault((n, key), []).append(x)
    def strip(l): return [x for x in l]
    def vdma(n, stage_slot, half):
        if half == 0:
            add(n, "q1", f"s_add_u32 {s(sVOFF)}, {s(sVOFF)}, 8192")
            add(n, "q2", f"s_and_b32 {s(sVOFF)}, {s(sVOFF)}, 0x1ffff")
            add(n, "p1", f"s_add_u32 m0, {s(sWL)}, {32768+stage_slot*8192}")
        add(n, "r1", f"buffer_load_dwordx4 {v(vLIN)}, {s(SV,4)}, {s(sVOFF)} offen offset:{1024*half} lds")
    def kdma(n, stage_slot, half, key="r1"):
        if half == 0:
            add(n, "q1", f"s_add_u32 {s(sKOFF)}, {s(sKOFF)}, 8192")
            add(n, "q2", f"s_and_b32 {s(sKOFF)}, {s(sKOFF)}, 0x1ffff")
            add(n, "p1", f"s_add_u32 m0, {s(sWL)}, {stage_slot*8192}")
        add(n, key, f"buffer_load_dwordx4 {v(vLIN)}, {s(SW,4)}, {s(sKOFF)} offen offset:{1024*half}{ksc} lds")
    def kpub(n, t, so):
        add(n, "r1", f"ds_write_b128 {v(vKW)}, {v(KR+8*t,4)} offset:{8192*t}")
        add(n, "r2", f"ds_write_b128 {v(vKW)}, {v(KR+8*t+4,4)} offset:{8192*t+1024}")
        add(n, "p1", f"buffer_store_dwordx4 {v(KR+8*t,4)}, {v(vLIN)}, {s(SW,4)}, {so} offen sc1")
        add(n, "q2", f"buffer_store_dwordx4 {v(KR+8*t+4,4)}, {v(vLIN)}, {s(SW,4)}, {so} offen offset:1024 sc1")
    std_slots(slots, 0, 16)
    add(1, "q1", "s_waitcnt vmcnt(8)")
    h, sc = norm_pair(KR + 8, None, False, False, T)
    valu[1] = h; valu[2] = sc[0][:16]; valu[3] = sc[0][16:]
    add(3, "q1", f"s_add_u32 {s(sT0)}, {s(sBASE)}, 8192")
    kpub(4, 1, s(sT0))
    add(5, "q1", "s_waitcnt vmcnt(6)")
    h, sc = norm_pair(KR + 16, KR + 24, False, False, T)
    valu[5] = h; valu[6] = sc[0][:16]; valu[7] = sc[0][16:]
    valu[9] = sc[1][:16]; valu[10] = sc[1][16:]
    kpub(8, 2, s(sT1))
    kpub(12, 3, s(sKOFF))
    add(13, "p1", "s_waitcnt vmcnt(8) lgkmcnt(0)"); add(13, "p1", "s_barrier")
    add(18, "q1", "s_waitcnt vmcnt(0)")
    add(18, "q2", "s_barrier")
    add(18, "p1", f"buffer_store_byte {v(vONE)}, {v(vFO)}, {s(SD,4)}, 0 offen sc1")
    vdma(20, 2, 0); add(20, "r2", f"buffer_load_dwordx4 {v(vLIN)}, {s(SV,4)}, {s(sVOFF)} offen offset:1024 lds")
    vdma(24, 3, 0); vdma(28, 3, 1)
    add(29, "p1", "s_waitcnt vmcnt(2)"); add(29, "p1", "s_barrier")
    vdma(32, 0, 0); vdma(36, 0, 1)
    add(43, "q1", f"s_load_dword {s(sFLAG)}, {s(sDBG,2)}, 0")
    add(45, "p1", "s_waitcnt vmcnt(2)"); add(45, "p1", "s_barrier")
    add(46, "q1", f"s_cmp_eq_u32 {s(sFLAG)}, {'0x02020202' if opt.force_help else '0x01010101'}")
    add(46, "q2", "s_cbranch_scc0 L_wait")
    add(46, "q2", "L_back:")
    kdma(48, 0, 0); kdma(48, 0, 1, "r2")
    vdma(52, 1, 0); add(52, "r2", f"buffer_load_dwordx4 {v(vLIN)}, {s(SV,4)}, {s(sVOFF)} offen offset:1024 lds")
    kdma(56, 1, 0); kdma(60, 1, 1)
    add(61, "p1", "s_waitcnt vmcnt(4)"); add(61, "p1", "s_barrier")
    add(62, "q1", f"s_mov_b32 {s(sCNT)}, 3")
    A(stamp("step0"))
    for nn in (2, 6, 14, 19, 30, 47, 62): add(nn, "p1", stamp(f"step{nn}"))
    E(emit_steps(0, 64, opt, slots, valu, skip={(0, "p1"), (0, "r1"), (0, "p2"), (0, "r2")}))
    slots, valu = {}, {}
    std_slots(slots, 16, 32)
    for st in range(4):
        n = 64 + 16 * st
        vdma(n, (st + 2) % 4, 0); vdma(n + 4, (st + 2) % 4, 1)
        kdma(n + 8, (st + 2) % 4, 0); kdma(n + 12, (st + 2) % 4, 1)
        add(n + 13, "p1", "s_waitcnt vmcnt(4)"); add(n + 13, "p1", "s_barrier")
    add(127, "q1", f"s_sub_u32 {s(sCNT)}, {s(sCNT)}, 1")
    add(127, "q2", f"s_cmp_lg_u32 {s(sCNT)}, 0")
    A(".p2align 6")
    A("L_loop:")
    E(emit_steps(64, 128, opt, slots, valu))
    A("s_cbranch_scc1 L_loop")
    m = mf_step(256, opt)
    A(stamp("loopend"))
    A(f"s_add_u32 {s(sT0)}, {s(sQOFF)}, 4096")
    A("s_nop 0")
    A(m["p1"]); A(m["r1"]); A(m["p2"]); A(m["r2"])
    for i in range(4):
        E(epilogue_tile(i, T + 2 * i, O + 16 * i, RS + 4 * i, s(sQOFF) if i < 2 else s(sT0)))
    if opt.stamps:
        A(stamp("stored"))
        A("s_waitcnt vmcnt(0)")
        A(stamp("done"))
        A("s_waitcnt lgkmcnt(0)")
        for i in range(len(STAMP_NAMES)): A(f"v_writelane_b32 {v(T)}, {s(62+2*i)}, {i}")
        A(f"s_lshl_b32 {s(sT0)}, s2, 2")
        A(f"s_add_u32 {s(sT0)}, {s(sT0)}, {s(sW)}")
        A(f"s_lshl_b32 {s(sT0)}, {s(sT0)}, 8")
        A(f"s_add_u32 {s(sT0)}, {s(sT0)}, 0x8000000")
        A(f"v_lshlrev_b32 {v(T+1)}, 2, v0")
        A(f"v_add_u32 {v(T+1)}, {s(sT0)}, {v(T+1)}")
        A(f"global_store_dword {v(T+1)}, {v(T)}, {s(sARG+12,2)}")
        A(f"s_lshl_b32 {s(sT0)}, s2, 2")
        A(f"s_add_u32 {s(sT0)}, {s(sT0)}, {s(sW)}")
        A(f"s_cmp_lg_u32 {s(sT0)}, 148")
        A("s_cbranch_scc1 L_end")
        A(f"v_subrev_u32 {v(T)}, s62, {v(T)}")
        A(f"v_lshlrev_b32 {v(T+1)}, 2, v0")
        A(f"v_subrev_u32 {v(T+1)}, 4, {v(T+1)}")
        A(f"s_mov_b32 {s(SD+2)}, 64")
        A(f"buffer_store_dword {v(T)}, {v(T+1)}, {s(SD,4)}, 0 offen")
    A("L_end:")
    A("s_endpgm")
    A("L_wait:")
    A(f"s_mov_b32 {s(sCNT2)}, {1 if opt.force_help else 64}")
    A(f"v_mov_b32 {v(T+6)}, 0")
    A("L_spin:")
    A(f"global_load_dword {v(T)}, {v(T+6)}, {s(sDBG,2)} sc1")
    A("s_waitcnt vmcnt(0)")
    A(f"v_readfirstlane_b32 {s(sFLAG)}, {v(T)}")
    A("s_nop 3")
    A(f"s_cmp_eq_u32 {s(sFLAG)}, {'0x02020202' if opt.force_help else '0x01010101'}")
    A("s_cbranch_scc1 L_back")
    A(f"s_sub_u32 {s(sCNT2)}, {s(sCNT2)}, 1")
    A(f"s_cmp_lg_u32 {s(sCNT2)}, 0")
    A("s_cbranch_scc1 L_spin")
    A(f"s_mov_b32 {s(sCNT2)}, 12")
    A(f"s_mov_b32 {s(sT0)}, {s(sKOFF)}")
    A("L_help:")
    A(f"s_add_u32 {s(sT0)}, {s(sT0)}, 8192")
    A(f"s_and_b32 {s(sT0)}, {s(sT0)}, 0x1ffff")
    A(f"buffer_load_dwordx4 {v(KR,4)}, {v(vOFF)}, {s(SK,4)}, {s(sT0)} offen")
    A(f"buffer_load_dwordx4 {v(KR+4,4)}, {v(vOFF)}, {s(SK,4)}, {s(sT0)} offen offset:16")
    A("s_waitcnt vmcnt(0)")
    h, sc = norm_pair(KR, None, False, False, T)
    E(h); E(sc[0])
    A(f"buffer_store_dwordx4 {v(KR,4)}, {v(vLIN)}, {s(SW,4)}, {s(sT0)} offen sc1")
    A(f"buffer_store_dwordx4 {v(KR+4,4)}, {v(vLIN)}, {s(SW,4)}, {s(sT0)} offen offset:1024 sc1")
    A("s_waitcnt vmcnt(0)")
    A(f"s_sub_u32 {s(sCNT2)}, {s(sCNT2)}, 1")
    A(f"s_cmp_lg_u32 {s(sCNT2)}, 0")
    A("s_cbranch_scc1 L_help")
    A("s_branch L_back")
    A("L_slow:")
    A("s_waitcnt vmcnt(0)")
    h, sc = norm_pair(Q, Q + 8, True, True, T); E(h); E(sc[0]); E(sc[1])
    h, sc = norm_pair(Q + 16, Q + 24, True, True, T); E(h); E(sc[0]); E(sc[1])
    MX = T + 8
    for i in range(4): A(f"v_mov_b32 {v(MX+i)}, 0xff800000")
    A(f"v_add_u32 {v(vAV)}, {s(sWL)}, {v(vAV)}")
    A(f"s_add_u32 m0, {s(sWL)}, 32768")
    A(f"s_mov_b32 {s(sKOFF)}, 0")
    A("L_slow_kv:")
    A(f"buffer_load_dwordx4 {v(KR,4)}, {v(vOFF)}, {s(SK,4)}, {s(sKOFF)} offen")
    A(f"buffer_load_dwordx4 {v(KR+4,4)}, {v(vOFF)}, {s(SK,4)}, {s(sKOFF)} offen offset:16")
    A(f"buffer_load_dwordx4 {v(vLIN)}, {s(SV,4)}, {s(sKOFF)} offen lds")
    A(f"buffer_load_dwordx4 {v(vLIN)}, {s(SV,4)}, {s(sKOFF)} offen offset:1024 lds")
    A("s_waitcnt vmcnt(0)")
    for m_ in range(2):
        for t in range(2): A(v_read(0, m_, t))
    h, sc = norm_pair(KR, None, False, False, T); E(h); E(sc[0])
    A("s_waitcnt lgkmcnt(0)")
    A("s_nop 1")
    for i in range(4):
        A(f"v_mfma_f32_32x32x16_bf16 {v(SB+16*i,16)}, {v(KR,4)}, {v(Q+8*i,4)}, 0")
        A(f"v_mfma_f32_32x32x16_bf16 {v(SB+16*i,16)}, {v(KR+4,4)}, {v(Q+8*i+4,4)}, {v(SB+16*i,16)}")
    A("s_nop 15")
    for i in range(4):
        sb = SB + 16 * i
        A(f"v_max3_f32 {v(T)}, {v(sb)}, {v(sb+1)}, {v(MX+i)}")
        for r in range(2, 16, 2): A(f"v_max3_f32 {v(T)}, {v(sb+r)}, {v(sb+r+1)}, {v(T)}")
        A(f"v_mov_b32 {v(T+1)}, {v(T)}")
        A("s_nop 1")
        A(f"v_permlane32_swap_b32 {v(T)}, {v(T+1)}")
        A("s_nop 0")
        A(f"v_max_f32 {v(T)}, {v(T)}, {v(T+1)}")
        A(f"v_sub_f32 {v(T+2)}, {v(MX+i)}, {v(T)}")
        A(f"v_exp_f32 {v(T+2)}, {v(T+2)}")
        A(f"v_mov_b32 {v(MX+i)}, {v(T)}")
        for r in range(16): A(f"v_sub_f32 {v(sb+r)}, {v(sb+r)}, {v(T)}")
        for r in range(16): A(f"v_exp_f32 {v(sb+r)}, {v(sb+r)}")
        for r in range(16): A(f"v_mul_f32 {v(O+16*i+r)}, {v(O+16*i+r)}, {v(T+2)}")
        A(f"v_mul_f32 {v(RS+4*i)}, {v(RS+4*i)}, {v(T+2)}")
        A("s_nop 1")
        A(f"v_smfmac_f32_32x32x32_bf16 {v(O+16*i,16)}, {a(aV,4)}, {v(sb,8)}, {v(vIDX)}")
        A(f"v_smfmac_f32_16x16x64_bf16 {v(RS+4*i,4)}, {v(ONES,4)}, {v(sb,8)}, {v(vIDX)}")
        A(f"v_smfmac_f32_32x32x32_bf16 {v(O+16*i,16)}, {a(aV+4,4)}, {v(sb+8,8)}, {v(vIDX)}")
        A(f"v_smfmac_f32_16x16x64_bf16 {v(RS+4*i,4)}, {v(ONES,4)}, {v(sb+8,8)}, {v(vIDX)}")
    A("s_nop 15")
    A(f"s_add_u32 {s(sKOFF)}, {s(sKOFF)}, 2048")
    A(f"s_cmp_lt_u32 {s(sKOFF)}, 0x20000")
    A("s_cbranch_scc1 L_slow_kv")
    A(f"s_add_u32 {s(sT0)}, {s(sQOFF)}, 4096")
    for i in range(4):
        E(epilogue_tile(i, T + 2 * (i % 2), O + 16 * i, RS + 4 * i, s(sQOFF) if i < 2 else s(sT0)))
    A("s_endpgm")
    return L

HEAD = open("standalone__qk_norm__prompt.s.ref").read().split("; Override launch")[0]

def render(opt):
    body = gen(opt)
    o = HEAD
    o += "; Override launch geometry by editing the next line (default: block=256,\n"
    o += "; @launch grid=(256,1,1) block=(256,1,1) lds=65536\n"
    o += f""".amdgcn_target "amdgcn-amd-amdhsa--gfx950"
.text
.globl {NAME}_kernel
.p2align 8
.type {NAME}_kernel,@function
{NAME}_kernel:
"""
    for x in body:
        o += (x if x.endswith(":") or x.startswith(".") else "    " + x) + "\n"
    o += f""".section .rodata,"a"
.p2align 6
.amdhsa_kernel {NAME}_kernel
  .amdhsa_next_free_vgpr {NV+NA}
  .amdhsa_next_free_sgpr 102
  .amdhsa_accum_offset {NV}
  .amdhsa_group_segment_fixed_size 0
  .amdhsa_kernarg_size 56
  .amdhsa_user_sgpr_count 2
  .amdhsa_user_sgpr_kernarg_segment_ptr 1
  .amdhsa_system_sgpr_workgroup_id_x 1
.end_amdhsa_kernel
"""
    return o

if __name__ == "__main__":
    opt = Opt()
    out = sys.argv[1]
    for kv in sys.argv[2:]:
        k, val = kv.split("=")
        cur = getattr(opt, k)
        setattr(opt, k, type(cur)(val) if not isinstance(cur, bool) else val in ("1", "True"))
    open(out, "w").write(render(opt))
    if opt.stamps: open(out + ".stamps", "w").write(" ".join(STAMP_NAMES))
```

```python
import sys, struct
NAME = "standalone__qk_norm__prompt"

def f2u(x): return struct.unpack("<I", struct.pack("<f", x))[0]
LOG2E = 1.4426950408889634

class Opt:
    thresh = 16.0
    cinit = "4.0"
    force_help = False
    stamps = False
    ksc1 = True
    l2pf = False
    spin = 0

SQ, SK, SV, SO, SW, SD = 4, 8, 12, 16, 20, 24
sW, sJ, sHEAD, sTS = 28, 29, 30, 31
sBASE, sVOFF, sKOFF, sCNT = 32, 33, 34, 35
sARG = 36
sT0, sT1, sT2, sT3 = 50, 51, 52, 53
sFLAG = 54
sWL = 55
sQOFF = 56
sDBG = 58
sCNT2 = 60
sEPS = 61
vOFF, vLIN, vAV, vKW, vIDX, vFO, vONE = 1, 2, 3, 4, 5, 6, 7
Q = 8
O = 40
RS = 104
SB = 120
KR = 184
ONES = 216
T = 220
NV = 236
aK = 0
aV = 16
NA = 32

def v(a, n=1): return f"v{a}" if n == 1 else f"v[{a}:{a+n-1}]"
def a(x, n=1): return f"a{x}" if n == 1 else f"a[{x}:{x+n-1}]"
def s(x, n=1): return f"s{x}" if n == 1 else f"s[{x}:{x+n-1}]"

def norm_pair(ta, tb, qa, qb, tmp):
    o = []
    x, y = tmp, tmp + 1
    ra, rb = tmp, tmp + 2
    u = tmp + 4
    for i in range(8):
        o.append(f"v_dot2_f32_bf16 {v(x)}, {v(ta+i)}, {v(ta+i)}, {'0' if i==0 else v(x)}")
        if tb is not None:
            o.append(f"v_dot2_f32_bf16 {v(y)}, {v(tb+i)}, {v(tb+i)}, {'0' if i==0 else v(y)}")
    if tb is None:
        o.append("s_nop 2")
        o.append(f"v_mov_b32 {v(y)}, {v(x)}")
        o.append("s_nop 1")
    else:
        o.append("s_nop 2")
    o.append(f"v_permlane32_swap_b32 {v(x)}, {v(y)}")
    o.append("s_nop 0")
    o.append(f"v_add_f32 {v(x)}, {v(x)}, {v(y)}")
    o.append(f"v_sqrt_f32 {v(x)}, {v(x)}")
    o.append("s_nop 0")
    o.append(f"v_add_f32 {v(x)}, {s(sEPS)}, {v(x)}")
    o.append(f"v_rcp_f32 {v(x)}, {v(x)}")
    o.append("s_nop 0")
    if tb is not None:
        if qa and qb: o.append(f"v_mul_f32 {v(x)}, {s(sTS)}, {v(x)}")
        o.append(f"v_mov_b32 {v(rb)}, {v(x)}")
        o.append("s_nop 1")
        o.append(f"v_permlane32_swap_b32 {v(ra)}, {v(rb)}")
        o.append("s_nop 0")
        if qa and not qb: o.append(f"v_mul_f32 {v(ra)}, {s(sTS)}, {v(ra)}")
        if qb and not qa: o.append(f"v_mul_f32 {v(rb)}, {s(sTS)}, {v(rb)}")
    elif qa:
        o.append(f"v_mul_f32 {v(ra)}, {s(sTS)}, {v(ra)}")
    sc = []
    for (t, r) in ((ta, ra), (tb, rb)):
        if t is None: continue
        l = []
        for i in range(8):
            l += [f"v_lshlrev_b32 {v(u)}, 16, {v(t+i)}",
                  f"v_and_b32 {v(u+1)}, 0xffff0000, {v(t+i)}",
                  f"v_pk_mul_f32 {v(u,2)}, {v(u,2)}, {v(r,2)} op_sel_hi:[1,0]",
                  f"v_cvt_pk_bf16_f32 {v(t+i)}, {v(u)}, {v(u+1)}"]
        sc.append(l)
    return o, sc

def epilogue_tile(i, tmp, oreg, rsreg, soff):
    o = [f"v_rcp_f32 {v(tmp)}, {v(rsreg)}", "s_nop 0"]
    for r in range(0, 16, 2):
        o.append(f"v_pk_mul_f32 {v(oreg+r,2)}, {v(oreg+r,2)}, {v(tmp,2)} op_sel_hi:[1,0]")
    for r in range(8):
        o.append(f"v_cvt_pk_bf16_f32 {v(oreg+r)}, {v(oreg+2*r)}, {v(oreg+2*r+1)}")
    o.append(f"buffer_store_dwordx4 {v(oreg,4)}, {v(vOFF)}, {s(SO,4)}, {soff} offen offset:{(i%2)*2048}")
    o.append(f"buffer_store_dwordx4 {v(oreg+4,4)}, {v(vOFF)}, {s(SO,4)}, {soff} offen offset:{(i%2)*2048+16}")
    return o

def mf_step(n, opt):
    n1, n0 = n + 1, n - 1
    j1, i1 = n1 // 4, n1 % 4
    j0, i0 = n0 // 4, n0 % 4
    nxt, prv = SB + 16 * (n1 % 4), SB + 16 * (n0 % 4)
    kf, vf = aK + 8 * (j1 % 2), aV + 8 * (j0 % 2)
    return {
        "q1": f"v_mfma_f32_32x32x16_bf16 {v(nxt,16)}, {a(kf,4)}, {v(Q+8*i1,4)}, {opt.cinit}",
        "q2": f"v_mfma_f32_32x32x16_bf16 {v(nxt,16)}, {a(kf+4,4)}, {v(Q+8*i1+4,4)}, {v(nxt,16)}",
        "p1": f"v_smfmac_f32_32x32x32_bf16 {v(O+16*i0,16)}, {a(vf,4)}, {v(prv,8)}, {v(vIDX)}",
        "r1": f"v_smfmac_f32_16x16x64_bf16 {v(RS+4*i0,4)}, {v(ONES,4)}, {v(prv,8)}, {v(vIDX)}",
        "p2": f"v_smfmac_f32_32x32x32_bf16 {v(O+16*i0,16)}, {a(vf+4,4)}, {v(prv+8,8)}, {v(vIDX)}",
        "r2": f"v_smfmac_f32_16x16x64_bf16 {v(RS+4*i0,4)}, {v(ONES,4)}, {v(prv+8,8)}, {v(vIDX)}"}

ORDER = ["q1", "q2", "p1", "r1", "p2", "r2"]
PAT = [4, 4, 3, 1, 3, 1]

def k_read(jj, f):
    return f"ds_read_b128 {a(aK+8*(jj%2)+4*f,4)}, {v(vLIN)} offset:{(jj%16)*2048+1024*f}"
def v_read(jj, m, t):
    return f"ds_read_b64_tr_b16 {a(aV+8*(jj%2)+4*m+2*t,2)}, {v(vAV)} offset:{32768+(jj%16)*2048+1024*m+256*t}"

def emit_steps(n_lo, n_hi, opt, slots, valu, skip=()):
    out = []
    for n in range(n_lo, n_hi):
        m = mf_step(n, opt)
        cur = SB + 16 * (n % 4)
        ex = [f"v_exp_f32 {v(cur+e)}, {v(cur+e)}" for e in range(16)]
        side = list(valu.get(n, []))
        per = -(-len(side) // 16) if side else 0
        k = 0
        for key, c in zip(ORDER, PAT):
            if (n, key) not in skip: out.append(m[key])
            out += slots.get((n, key), [])
            for e in ex[k:k+c]:
                out.append(e)
                out += side[:per]; side = side[per:]
            k += c
        assert not side
    return out

def std_slots(slots, jj_lo, jj_hi):
    def add(n, key, x): slots.setdefault((n, key), []).append(x)
    for jj in range(jj_lo, jj_hi):
        n = 4 * jj
        add(n+1, "q2", "s_waitcnt lgkmcnt(0)")
        add(n+1, "r1", k_read(jj+1, 0)); add(n+1, "r2", k_read(jj+1, 1))
        add(n+2, "r1", v_read(jj+1, 0, 0))
        add(n+2, "p2", "s_waitcnt lgkmcnt(1)")
        add(n+2, "r2", v_read(jj+1, 0, 1))
        add(n+3, "r1", v_read(jj+1, 1, 0)); add(n+3, "r2", v_read(jj+1, 1, 1))

STAMP_NAMES=[]
def gen(opt):
    L = []
    A = L.append
    STAMP_NAMES.clear()
    def stamp(name):
        if not opt.stamps: return "; stamp " + name
        i = len(STAMP_NAMES); STAMP_NAMES.append(name)
        assert i < 19
        return f"s_memrealtime {s(62+2*i,2)}"
    def E(x): L.extend(x)
    ksc = " sc1" if opt.ksc1 else ""
    A("s_cmp_ge_u32 s2, 256")
    A("s_cbranch_scc1 L_end")
    A(stamp("entry"))
    if opt.spin: A("s_memrealtime s[98:99]")
    A(f"s_load_dwordx8 {s(sARG,8)}, s[0:1], 0")
    A(f"s_load_dwordx4 {s(sARG+8,4)}, s[0:1], 32")
    A(f"s_load_dwordx2 {s(sARG+12,2)}, s[0:1], 48")
    A(f"v_lshrrev_b32 {v(T)}, 6, v0")
    A(f"v_and_b32 v0, 63, v0")
    A(f"v_readfirstlane_b32 {s(sW)}, {v(T)}")
    A(f"s_and_b32 {s(sT0)}, s2, 7")
    A(f"s_lshr_b32 {s(sT1)}, s2, 3")
    A(f"s_and_b32 {s(sJ)}, {s(sT1)}, 3")
    A(f"s_lshr_b32 {s(sT1)}, {s(sT1)}, 2")
    A(f"s_lshl_b32 {s(sT0)}, {s(sT0)}, 3")
    A(f"s_add_u32 {s(sHEAD)}, {s(sT0)}, {s(sT1)}")
    A(f"s_lshl_b32 {s(sT2)}, {s(sHEAD)}, 17")
    A(f"s_lshl_b32 {s(sWL)}, {s(sW)}, 11")
    A(f"s_lshl_b32 {s(sBASE)}, {s(sJ)}, 15")
    A(f"s_lshl_b32 {s(sQOFF)}, {s(sW)}, 13")
    A(f"s_add_u32 {s(sQOFF)}, {s(sQOFF)}, {s(sBASE)}")
    A(f"s_add_u32 {s(sBASE)}, {s(sBASE)}, {s(sWL)}")
    A(f"s_and_b32 {s(sT3)}, {s(sHEAD)}, 30")
    A(f"s_lshl_b32 {s(sT3)}, {s(sT3)}, 1")
    A(f"s_mov_b32 {s(sEPS)}, {hex(f2u(1e-6))}")
    A(f"v_and_b32 {v(T)}, 31, v0")
    A(f"v_lshrrev_b32 {v(T+1)}, 5, v0")
    A(f"v_lshlrev_b32 {v(vOFF)}, 6, {v(T)}")
    A(f"v_lshl_add_u32 {v(vOFF)}, {v(T+1)}, 5, {v(vOFF)}")
    A(f"v_lshlrev_b32 {v(vLIN)}, 4, v0")
    for srd in (SQ, SK, SV, SO, SW):
        A(f"s_mov_b32 {s(srd+2)}, 0x20000")
        A(f"s_mov_b32 {s(srd+3)}, 0x20000")
    A(f"s_mov_b32 {s(SD+2)}, 256")
    A(f"s_mov_b32 {s(SD+3)}, 0x20000")
    A("s_waitcnt lgkmcnt(0)")
    A(stamp("kernarg"))
    A(f"s_load_dword {s(sTS)}, {s(sARG+6,2)}, {s(sT3)}")
    for srd, arg in ((SK, 2), (SQ, 0), (SV, 4)):
        A(f"s_add_u32 {s(srd)}, {s(sARG+arg)}, {s(sT2)}")
        A(f"s_addc_u32 {s(srd+1)}, {s(sARG+arg+1)}, 0")
    A(f"buffer_load_dwordx4 {v(KR,4)}, {v(vOFF)}, {s(SK,4)}, {s(sBASE)} offen")
    A(f"buffer_load_dwordx4 {v(KR+4,4)}, {v(vOFF)}, {s(SK,4)}, {s(sBASE)} offen offset:16")
    A(f"s_add_u32 {s(sT0)}, {s(sQOFF)}, 4096")
    for i in range(4):
        so = s(sQOFF) if i < 2 else s(sT0)
        A(f"buffer_load_dwordx4 {v(Q+8*i,4)}, {v(vOFF)}, {s(SQ,4)}, {so} offen offset:{(i%2)*2048}")
        A(f"buffer_load_dwordx4 {v(Q+8*i+4,4)}, {v(vOFF)}, {s(SQ,4)}, {so} offen offset:{(i%2)*2048+16}")
    A(f"s_add_u32 m0, {s(sWL)}, 32768")
    A(f"s_add_u32 {s(sT0)}, {s(sBASE)}, 8192")
    A(f"buffer_load_dwordx4 {v(vLIN)}, {s(SV,4)}, {s(sBASE)} offen lds")
    A(f"buffer_load_dwordx4 {v(vLIN)}, {s(SV,4)}, {s(sBASE)} offen offset:1024 lds")
    A(f"s_add_u32 {s(sT1)}, {s(sBASE)}, 16384")
    A(f"s_add_u32 {s(sKOFF)}, {s(sBASE)}, 24576")
    for t, so in ((1, sT0), (2, sT1), (3, sKOFF)):
        A(f"buffer_load_dwordx4 {v(KR+8*t,4)}, {v(vOFF)}, {s(SK,4)}, {s(so)} offen")
        A(f"buffer_load_dwordx4 {v(KR+8*t+4,4)}, {v(vOFF)}, {s(SK,4)}, {s(so)} offen offset:16")
    A(f"s_add_u32 m0, {s(sWL)}, {32768+8192}")
    A(f"s_mov_b32 {s(sVOFF)}, {s(sT0)}")
    A(f"buffer_load_dwordx4 {v(vLIN)}, {s(SV,4)}, {s(sT0)} offen lds")
    A(f"buffer_load_dwordx4 {v(vLIN)}, {s(SV,4)}, {s(sT0)} offen offset:1024 lds")
    for srd, arg in ((SO, 8), (SW, 12)):
        A(f"s_add_u32 {s(srd)}, {s(sARG+arg)}, {s(sT2)}")
        A(f"s_addc_u32 {s(srd+1)}, {s(sARG+arg+1)}, 0")
    A(f"s_mov_b32 {s(SD)}, {s(sARG+10)}")
    A(f"s_mov_b32 {s(SD+1)}, {s(sARG+11)}")
    A(f"s_lshl_b32 {s(sT2)}, {s(sHEAD)}, 2")
    A(f"s_add_u32 {s(sDBG)}, {s(sARG+10)}, {s(sT2)}")
    A(f"s_addc_u32 {s(sDBG+1)}, {s(sARG+11)}, 0")
    A(f"v_mov_b32 {v(vIDX)}, 0xdddddddd")
    A(f"v_mov_b32 {v(vONE)}, 1")
    A(f"v_add_u32 {v(vKW)}, {s(sWL)}, {v(vLIN)}")
    A(f"s_add_u32 {s(sT2)}, {s(sT2)}, {s(sJ)}")
    A(f"v_lshlrev_b32 {v(vFO)}, 4, {v(vKW)}")
    A(f"v_add_u32 {v(vFO)}, {s(sT2)}, {v(vFO)}")
    A(f"v_bfe_u32 {v(T+2)}, v0, 2, 2")
    A(f"v_lshl_add_u32 {v(T+2)}, {v(T+1)}, 3, {v(T+2)}")
    A(f"v_lshlrev_b32 {v(vAV)}, 6, {v(T+2)}")
    A(f"v_and_b32 {v(T+2)}, 1, v0")
    A(f"v_lshl_add_u32 {v(vAV)}, {v(T+2)}, 5, {v(vAV)}")
    A(f"v_bfe_u32 {v(T+2)}, v0, 4, 1")
    A(f"v_lshl_add_u32 {v(vAV)}, {v(T+2)}, 4, {v(vAV)}")
    A(f"v_bfe_u32 {v(T+2)}, v0, 1, 1")
    A(f"v_lshl_add_u32 {v(vAV)}, {v(T+2)}, 3, {v(vAV)}")
    A(f"v_and_b32 {v(T+2)}, 7, v0")
    A(f"v_mov_b32 {v(T+3)}, 0x3f803f80")
    A(f"v_cmp_eq_u32 vcc, 0, {v(T+2)}")
    A("s_nop 1")
    A(f"v_cndmask_b32 {v(ONES)}, 0, {v(T+3)}, vcc")
    A(f"v_cndmask_b32 {v(ONES+1)}, 0, {v(T+3)}, vcc")
    A(f"v_cmp_eq_u32 vcc, 4, {v(T+2)}")
    A("s_nop 1")
    A(f"v_cndmask_b32 {v(ONES+2)}, 0, {v(T+3)}, vcc")
    A(f"v_cndmask_b32 {v(ONES+3)}, 0, {v(T+3)}, vcc")
    for r in range(O, RS + 16): A(f"v_mov_b32 {v(r)}, 0")
    A("s_waitcnt lgkmcnt(0)")
    A(f"s_and_b32 {s(sT0)}, {s(sHEAD)}, 1")
    A(f"s_lshl_b32 {s(sT0)}, {s(sT0)}, 4")
    A(f"s_lshr_b32 {s(sTS)}, {s(sTS)}, {s(sT0)}")
    A(f"s_lshl_b32 {s(sTS)}, {s(sTS)}, 16")
    A(f"s_and_b32 {s(sT0)}, {s(sTS)}, 0x7fffffff")
    A(f"v_mov_b32 {v(T)}, {hex(f2u(LOG2E))}")
    A(f"v_mul_f32 {v(T)}, {s(sTS)}, {v(T)}")
    A("s_nop 0")
    A(f"v_readfirstlane_b32 {s(sTS)}, {v(T)}")
    A(f"s_cmp_gt_u32 {s(sT0)}, {hex(f2u(opt.thresh))}")
    A("s_cbranch_scc1 L_slow")
    A(stamp("t"))
    A("s_waitcnt vmcnt(16)")
    A(stamp("K0Q0"))
    h, sc = norm_pair(KR, Q, False, True, T)
    E(h); E(sc[0])
    A(f"ds_write_b128 {v(vKW)}, {v(KR,4)}")
    A(f"ds_write_b128 {v(vKW)}, {v(KR+4,4)} offset:1024")
    A(f"buffer_store_dwordx4 {v(KR,4)}, {v(vLIN)}, {s(SW,4)}, {s(sBASE)} offen sc1")
    A(f"buffer_store_dwordx4 {v(KR+4,4)}, {v(vLIN)}, {s(SW,4)}, {s(sBASE)} offen offset:1024 sc1")
    E(sc[1])
    A("s_waitcnt vmcnt(14)")
    A(stamp("Q12"))
    h, sc = norm_pair(Q + 8, Q + 16, True, True, T)
    E(h); E(sc[0])
    A("s_waitcnt vmcnt(10) lgkmcnt(0)")
    A("s_barrier")
    A(stamp("B0"))
    A(k_read(0, 0)); A(k_read(0, 1))
    for m in range(2):
        for t in range(2): A(v_read(0, m, t))
    E(sc[1])
    h, sc = norm_pair(Q + 24, None, True, False, T)
    E(h)
    A("s_waitcnt lgkmcnt(0)")
    m0 = mf_step(-1, opt)
    A(m0["q1"]); A(m0["q2"])
    E(sc[0])
    slots, valu = {}, {}
    def add(n, key, x): slots.setdefault((n, key), []).append(x)
    def strip(l): return [x for x in l]
    def vdma(n, stage_slot, half):
        if half == 0:
            add(n, "q1", f"s_add_u32 {s(sVOFF)}, {s(sVOFF)}, 8192")
            add(n, "q2", f"s_and_b32 {s(sVOFF)}, {s(sVOFF)}, 0x1ffff")
            add(n, "p1", f"s_add_u32 m0, {s(sWL)}, {32768+stage_slot*8192}")
        add(n, "r1", f"buffer_load_dwordx4 {v(vLIN)}, {s(SV,4)}, {s(sVOFF)} offen offset:{1024*half} lds")
    def kdma(n, stage_slot, half, key="r1"):
        if half == 0:
            add(n, "q1", f"s_add_u32 {s(sKOFF)}, {s(sKOFF)}, 8192")
            add(n, "q2", f"s_and_b32 {s(sKOFF)}, {s(sKOFF)}, 0x1ffff")
            add(n, "p1", f"s_add_u32 m0, {s(sWL)}, {stage_slot*8192}")
        add(n, key, f"buffer_load_dwordx4 {v(vLIN)}, {s(SW,4)}, {s(sKOFF)} offen offset:{1024*half}{ksc} lds")
    def kpub(n, t, so):
        add(n, "r1", f"ds_write_b128 {v(vKW)}, {v(KR+8*t,4)} offset:{8192*t}")
        add(n, "r2", f"ds_write_b128 {v(vKW)}, {v(KR+8*t+4,4)} offset:{8192*t+1024}")
        add(n, "p1", f"buffer_store_dwordx4 {v(KR+8*t,4)}, {v(vLIN)}, {s(SW,4)}, {so} offen sc1")
        add(n, "q2", f"buffer_store_dwordx4 {v(KR+8*t+4,4)}, {v(vLIN)}, {s(SW,4)}, {so} offen offset:1024 sc1")
    std_slots(slots, 0, 16)
    add(1, "q1", "s_waitcnt vmcnt(8)")
    h, sc = norm_pair(KR + 8, None, False, False, T)
    valu[1] = h; valu[2] = sc[0][:16]; valu[3] = sc[0][16:]
    add(3, "q1", f"s_add_u32 {s(sT0)}, {s(sBASE)}, 8192")
    kpub(4, 1, s(sT0))
    add(5, "q1", "s_waitcnt vmcnt(6)")
    h, sc = norm_pair(KR + 16, KR + 24, False, False, T)
    valu[5] = h; valu[6] = sc[0][:16]; valu[7] = sc[0][16:]
    valu[9] = sc[1][:16]; valu[10] = sc[1][16:]
    kpub(8, 2, s(sT1))
    kpub(12, 3, s(sKOFF))
    add(13, "p1", "s_waitcnt vmcnt(8) lgkmcnt(0)"); add(13, "p1", "s_barrier")
    add(18, "q1", "s_waitcnt vmcnt(0)")
    add(18, "q2", "s_barrier")
    add(18, "p1", f"buffer_store_byte {v(vONE)}, {v(vFO)}, {s(SD,4)}, 0 offen sc1")
    vdma(20, 2, 0); add(20, "r2", f"buffer_load_dwordx4 {v(vLIN)}, {s(SV,4)}, {s(sVOFF)} offen offset:1024 lds")
    vdma(24, 3, 0); vdma(28, 3, 1)
    add(29, "p1", "s_waitcnt vmcnt(2)"); add(29, "p1", "s_barrier")
    vdma(32, 0, 0); vdma(36, 0, 1)
    add(43, "q1", f"s_load_dword {s(sFLAG)}, {s(sDBG,2)}, 0")
    add(45, "p1", "s_waitcnt vmcnt(2)"); add(45, "p1", "s_barrier")
    add(46, "q1", f"s_cmp_eq_u32 {s(sFLAG)}, {'0x02020202' if opt.force_help else '0x01010101'}")
    add(46, "q2", "s_cbranch_scc0 L_wait")
    add(46, "q2", "L_back:")
    kdma(48, 0, 0); kdma(48, 0, 1, "r2")
    vdma(52, 1, 0); add(52, "r2", f"buffer_load_dwordx4 {v(vLIN)}, {s(SV,4)}, {s(sVOFF)} offen offset:1024 lds")
    kdma(56, 1, 0); kdma(60, 1, 1)
    add(61, "p1", "s_waitcnt vmcnt(4)"); add(61, "p1", "s_barrier")
    add(62, "q1", f"s_mov_b32 {s(sCNT)}, 3")
    A(stamp("step0"))
    for nn in (2, 6, 14, 19, 30, 47, 62): add(nn, "p1", stamp(f"step{nn}"))
    E(emit_steps(0, 64, opt, slots, valu, skip={(0, "p1"), (0, "r1"), (0, "p2"), (0, "r2")}))
    slots, valu = {}, {}
    std_slots(slots, 16, 32)
    for st in range(4):
        n = 64 + 16 * st
        vdma(n, (st + 2) % 4, 0); vdma(n + 4, (st + 2) % 4, 1)
        kdma(n + 8, (st + 2) % 4, 0); kdma(n + 12, (st + 2) % 4, 1)
        add(n + 13, "p1", "s_waitcnt vmcnt(4)"); add(n + 13, "p1", "s_barrier")
    add(127, "q1", f"s_sub_u32 {s(sCNT)}, {s(sCNT)}, 1")
    add(127, "q2", f"s_cmp_lg_u32 {s(sCNT)}, 0")
    A(".p2align 6")
    A("L_loop:")
    E(emit_steps(64, 128, opt, slots, valu))
    A("s_cbranch_scc1 L_loop")
    m = mf_step(256, opt)
    A(stamp("loopend"))
    A(f"s_add_u32 {s(sT0)}, {s(sQOFF)}, 4096")
    A("s_nop 0")
    A(m["p1"]); A(m["r1"]); A(m["p2"]); A(m["r2"])
    for i in range(4):
        E(epilogue_tile(i, T + 2 * i, O + 16 * i, RS + 4 * i, s(sQOFF) if i < 2 else s(sT0)))
    if opt.stamps:
        A(stamp("stored"))
        A("s_waitcnt vmcnt(0)")
        A(stamp("done"))
        A("s_waitcnt lgkmcnt(0)")
        for i in range(len(STAMP_NAMES)): A(f"v_writelane_b32 {v(T)}, {s(62+2*i)}, {i}")
        A(f"s_lshl_b32 {s(sT0)}, s2, 2")
        A(f"s_add_u32 {s(sT0)}, {s(sT0)}, {s(sW)}")
        A(f"s_lshl_b32 {s(sT0)}, {s(sT0)}, 8")
        A(f"s_add_u32 {s(sT0)}, {s(sT0)}, 0x8000000")
        A(f"v_lshlrev_b32 {v(T+1)}, 2, v0")
        A(f"v_add_u32 {v(T+1)}, {s(sT0)}, {v(T+1)}")
        A(f"global_store_dword {v(T+1)}, {v(T)}, {s(sARG+12,2)}")
        A(f"s_lshl_b32 {s(sT0)}, s2, 2")
        A(f"s_add_u32 {s(sT0)}, {s(sT0)}, {s(sW)}")
        A(f"s_cmp_lg_u32 {s(sT0)}, 148")
        A("s_cbranch_scc1 L_end")
        A(f"v_subrev_u32 {v(T)}, s62, {v(T)}")
        A(f"v_lshlrev_b32 {v(T+1)}, 2, v0")
        A(f"v_subrev_u32 {v(T+1)}, 4, {v(T+1)}")
        A(f"s_mov_b32 {s(SD+2)}, 64")
        A(f"buffer_store_dword {v(T)}, {v(T+1)}, {s(SD,4)}, 0 offen")
    if opt.spin:
        A("L_dspin:")
        A("s_memrealtime s[100:101]")
        A("s_waitcnt lgkmcnt(0)")
        A("s_sub_u32 s100, s100, s98")
        A(f"s_cmp_lt_u32 s100, {opt.spin}")
        A("s_cbranch_scc1 L_dspin")
    A("L_end:")
    A("s_endpgm")
    A("L_wait:")
    A(f"s_mov_b32 {s(sCNT2)}, {1 if opt.force_help else 64}")
    A(f"v_mov_b32 {v(T+6)}, 0")
    A("L_spin:")
    A(f"global_load_dword {v(T)}, {v(T+6)}, {s(sDBG,2)} sc1")
    A("s_waitcnt vmcnt(0)")
    A(f"v_readfirstlane_b32 {s(sFLAG)}, {v(T)}")
    A("s_nop 3")
    A(f"s_cmp_eq_u32 {s(sFLAG)}, {'0x02020202' if opt.force_help else '0x01010101'}")
    A("s_cbranch_scc1 L_back")
    A(f"s_sub_u32 {s(sCNT2)}, {s(sCNT2)}, 1")
    A(f"s_cmp_lg_u32 {s(sCNT2)}, 0")
    A("s_cbranch_scc1 L_spin")
    A(f"s_mov_b32 {s(sCNT2)}, 12")
    A(f"s_mov_b32 {s(sT0)}, {s(sKOFF)}")
    A("L_help:")
    A(f"s_add_u32 {s(sT0)}, {s(sT0)}, 8192")
    A(f"s_and_b32 {s(sT0)}, {s(sT0)}, 0x1ffff")
    A(f"buffer_load_dwordx4 {v(KR,4)}, {v(vOFF)}, {s(SK,4)}, {s(sT0)} offen")
    A(f"buffer_load_dwordx4 {v(KR+4,4)}, {v(vOFF)}, {s(SK,4)}, {s(sT0)} offen offset:16")
    A("s_waitcnt vmcnt(0)")
    h, sc = norm_pair(KR, None, False, False, T)
    E(h); E(sc[0])
    A(f"buffer_store_dwordx4 {v(KR,4)}, {v(vLIN)}, {s(SW,4)}, {s(sT0)} offen sc1")
    A(f"buffer_store_dwordx4 {v(KR+4,4)}, {v(vLIN)}, {s(SW,4)}, {s(sT0)} offen offset:1024 sc1")
    A("s_waitcnt vmcnt(0)")
    A(f"s_sub_u32 {s(sCNT2)}, {s(sCNT2)}, 1")
    A(f"s_cmp_lg_u32 {s(sCNT2)}, 0")
    A("s_cbranch_scc1 L_help")
    A("s_branch L_back")
    A("L_slow:")
    A("s_waitcnt vmcnt(0)")
    h, sc = norm_pair(Q, Q + 8, True, True, T); E(h); E(sc[0]); E(sc[1])
    h, sc = norm_pair(Q + 16, Q + 24, True, True, T); E(h); E(sc[0]); E(sc[1])
    MX = T + 8
    for i in range(4): A(f"v_mov_b32 {v(MX+i)}, 0xff800000")
    A(f"v_add_u32 {v(vAV)}, {s(sWL)}, {v(vAV)}")
    A(f"s_add_u32 m0, {s(sWL)}, 32768")
    A(f"s_mov_b32 {s(sKOFF)}, 0")
    A("L_slow_kv:")
    A(f"buffer_load_dwordx4 {v(KR,4)}, {v(vOFF)}, {s(SK,4)}, {s(sKOFF)} offen")
    A(f"buffer_load_dwordx4 {v(KR+4,4)}, {v(vOFF)}, {s(SK,4)}, {s(sKOFF)} offen offset:16")
    A(f"buffer_load_dwordx4 {v(vLIN)}, {s(SV,4)}, {s(sKOFF)} offen lds")
    A(f"buffer_load_dwordx4 {v(vLIN)}, {s(SV,4)}, {s(sKOFF)} offen offset:1024 lds")
    A("s_waitcnt vmcnt(0)")
    for m_ in range(2):
        for t in range(2): A(v_read(0, m_, t))
    h, sc = norm_pair(KR, None, False, False, T); E(h); E(sc[0])
    A("s_waitcnt lgkmcnt(0)")
    A("s_nop 1")
    for i in range(4):
        A(f"v_mfma_f32_32x32x16_bf16 {v(SB+16*i,16)}, {v(KR,4)}, {v(Q+8*i,4)}, 0")
        A(f"v_mfma_f32_32x32x16_bf16 {v(SB+16*i,16)}, {v(KR+4,4)}, {v(Q+8*i+4,4)}, {v(SB+16*i,16)}")
    A("s_nop 15")
    for i in range(4):
        sb = SB + 16 * i
        A(f"v_max3_f32 {v(T)}, {v(sb)}, {v(sb+1)}, {v(MX+i)}")
        for r in range(2, 16, 2): A(f"v_max3_f32 {v(T)}, {v(sb+r)}, {v(sb+r+1)}, {v(T)}")
        A(f"v_mov_b32 {v(T+1)}, {v(T)}")
        A("s_nop 1")
        A(f"v_permlane32_swap_b32 {v(T)}, {v(T+1)}")
        A("s_nop 0")
        A(f"v_max_f32 {v(T)}, {v(T)}, {v(T+1)}")
        A(f"v_sub_f32 {v(T+2)}, {v(MX+i)}, {v(T)}")
        A(f"v_exp_f32 {v(T+2)}, {v(T+2)}")
        A(f"v_mov_b32 {v(MX+i)}, {v(T)}")
        for r in range(16): A(f"v_sub_f32 {v(sb+r)}, {v(sb+r)}, {v(T)}")
        for r in range(16): A(f"v_exp_f32 {v(sb+r)}, {v(sb+r)}")
        for r in range(16): A(f"v_mul_f32 {v(O+16*i+r)}, {v(O+16*i+r)}, {v(T+2)}")
        A(f"v_mul_f32 {v(RS+4*i)}, {v(RS+4*i)}, {v(T+2)}")
        A("s_nop 1")
        A(f"v_smfmac_f32_32x32x32_bf16 {v(O+16*i,16)}, {a(aV,4)}, {v(sb,8)}, {v(vIDX)}")
        A(f"v_smfmac_f32_16x16x64_bf16 {v(RS+4*i,4)}, {v(ONES,4)}, {v(sb,8)}, {v(vIDX)}")
        A(f"v_smfmac_f32_32x32x32_bf16 {v(O+16*i,16)}, {a(aV+4,4)}, {v(sb+8,8)}, {v(vIDX)}")
        A(f"v_smfmac_f32_16x16x64_bf16 {v(RS+4*i,4)}, {v(ONES,4)}, {v(sb+8,8)}, {v(vIDX)}")
    A("s_nop 15")
    A(f"s_add_u32 {s(sKOFF)}, {s(sKOFF)}, 2048")
    A(f"s_cmp_lt_u32 {s(sKOFF)}, 0x20000")
    A("s_cbranch_scc1 L_slow_kv")
    A(f"s_add_u32 {s(sT0)}, {s(sQOFF)}, 4096")
    for i in range(4):
        E(epilogue_tile(i, T + 2 * (i % 2), O + 16 * i, RS + 4 * i, s(sQOFF) if i < 2 else s(sT0)))
    A("s_endpgm")
    return L

HEAD = open("standalone__qk_norm__prompt.s.ref").read().split("; Override launch")[0]

def render(opt):
    body = gen(opt)
    o = HEAD
    o += "; Override launch geometry by editing the next line (default: block=256,\n"
    o += "; @launch grid=(256,1,1) block=(256,1,1) lds=65536\n"
    o += f""".amdgcn_target "amdgcn-amd-amdhsa--gfx950"
.text
.globl {NAME}_kernel
.p2align 8
.type {NAME}_kernel,@function
{NAME}_kernel:
"""
    for x in body:
        o += (x if x.endswith(":") or x.startswith(".") else "    " + x) + "\n"
    o += f""".section .rodata,"a"
.p2align 6
.amdhsa_kernel {NAME}_kernel
  .amdhsa_next_free_vgpr {NV+NA}
  .amdhsa_next_free_sgpr 102
  .amdhsa_accum_offset {NV}
  .amdhsa_group_segment_fixed_size 0
  .amdhsa_kernarg_size 56
  .amdhsa_user_sgpr_count 2
  .amdhsa_user_sgpr_kernarg_segment_ptr 1
  .amdhsa_system_sgpr_workgroup_id_x 1
.end_amdhsa_kernel
"""
    return o

if __name__ == "__main__":
    opt = Opt()
    out = sys.argv[1]
    for kv in sys.argv[2:]:
        k, val = kv.split("=")
        cur = getattr(opt, k)
        setattr(opt, k, type(cur)(val) if not isinstance(cur, bool) else val in ("1", "True"))
    open(out, "w").write(render(opt))
    if opt.stamps: open(out + ".stamps", "w").write(" ".join(STAMP_NAMES))
```

```python
import sys, struct
NAME = "standalone__qk_norm__prompt"

def f2u(x): return struct.unpack("<I", struct.pack("<f", x))[0]
LOG2E = 1.4426950408889634

class Opt:
    thresh = 16.0
    cinit = "4.0"
    force_help = False
    stamps = False
    ksc1 = True
    l2pf = False
    osc = ''
    spin = 0

SQ, SK, SV, SO, SW, SD = 4, 8, 12, 16, 20, 24
sW, sJ, sHEAD, sTS = 28, 29, 30, 31
sBASE, sVOFF, sKOFF, sCNT = 32, 33, 34, 35
sARG = 36
sT0, sT1, sT2, sT3 = 50, 51, 52, 53
sFLAG = 54
sWL = 55
sQOFF = 56
sDBG = 58
sCNT2 = 60
sEPS = 61
vOFF, vLIN, vAV, vKW, vIDX, vFO, vONE = 1, 2, 3, 4, 5, 6, 7
Q = 8
O = 40
RS = 104
SB = 120
KR = 184
ONES = 216
T = 220
NV = 236
aK = 0
aV = 16
NA = 32

def v(a, n=1): return f"v{a}" if n == 1 else f"v[{a}:{a+n-1}]"
def a(x, n=1): return f"a{x}" if n == 1 else f"a[{x}:{x+n-1}]"
def s(x, n=1): return f"s{x}" if n == 1 else f"s[{x}:{x+n-1}]"

def norm_pair(ta, tb, qa, qb, tmp):
    o = []
    x, y = tmp, tmp + 1
    ra, rb = tmp, tmp + 2
    u = tmp + 4
    for i in range(8):
        o.append(f"v_dot2_f32_bf16 {v(x)}, {v(ta+i)}, {v(ta+i)}, {'0' if i==0 else v(x)}")
        if tb is not None:
            o.append(f"v_dot2_f32_bf16 {v(y)}, {v(tb+i)}, {v(tb+i)}, {'0' if i==0 else v(y)}")
    if tb is None:
        o.append("s_nop 2")
        o.append(f"v_mov_b32 {v(y)}, {v(x)}")
        o.append("s_nop 1")
    else:
        o.append("s_nop 2")
    o.append(f"v_permlane32_swap_b32 {v(x)}, {v(y)}")
    o.append("s_nop 0")
    o.append(f"v_add_f32 {v(x)}, {v(x)}, {v(y)}")
    o.append(f"v_sqrt_f32 {v(x)}, {v(x)}")
    o.append("s_nop 0")
    o.append(f"v_add_f32 {v(x)}, {s(sEPS)}, {v(x)}")
    o.append(f"v_rcp_f32 {v(x)}, {v(x)}")
    o.append("s_nop 0")
    if tb is not None:
        if qa and qb: o.append(f"v_mul_f32 {v(x)}, {s(sTS)}, {v(x)}")
        o.append(f"v_mov_b32 {v(rb)}, {v(x)}")
        o.append("s_nop 1")
        o.append(f"v_permlane32_swap_b32 {v(ra)}, {v(rb)}")
        o.append("s_nop 0")
        if qa and not qb: o.append(f"v_mul_f32 {v(ra)}, {s(sTS)}, {v(ra)}")
        if qb and not qa: o.append(f"v_mul_f32 {v(rb)}, {s(sTS)}, {v(rb)}")
    elif qa:
        o.append(f"v_mul_f32 {v(ra)}, {s(sTS)}, {v(ra)}")
    sc = []
    for (t, r) in ((ta, ra), (tb, rb)):
        if t is None: continue
        l = []
        for i in range(8):
            l += [f"v_lshlrev_b32 {v(u)}, 16, {v(t+i)}",
                  f"v_and_b32 {v(u+1)}, 0xffff0000, {v(t+i)}",
                  f"v_pk_mul_f32 {v(u,2)}, {v(u,2)}, {v(r,2)} op_sel_hi:[1,0]",
                  f"v_cvt_pk_bf16_f32 {v(t+i)}, {v(u)}, {v(u+1)}"]
        sc.append(l)
    return o, sc

def epilogue_tile(i, tmp, oreg, rsreg, soff, osc=''):
    o = [f"v_rcp_f32 {v(tmp)}, {v(rsreg)}", "s_nop 0"]
    for r in range(0, 16, 2):
        o.append(f"v_pk_mul_f32 {v(oreg+r,2)}, {v(oreg+r,2)}, {v(tmp,2)} op_sel_hi:[1,0]")
    for r in range(8):
        o.append(f"v_cvt_pk_bf16_f32 {v(oreg+r)}, {v(oreg+2*r)}, {v(oreg+2*r+1)}")
    o.append(f"buffer_store_dwordx4 {v(oreg,4)}, {v(vOFF)}, {s(SO,4)}, {soff} offen offset:{(i%2)*2048} {osc}")
    o.append(f"buffer_store_dwordx4 {v(oreg+4,4)}, {v(vOFF)}, {s(SO,4)}, {soff} offen offset:{(i%2)*2048+16} {osc}")
    return o

def mf_step(n, opt):
    n1, n0 = n + 1, n - 1
    j1, i1 = n1 // 4, n1 % 4
    j0, i0 = n0 // 4, n0 % 4
    nxt, prv = SB + 16 * (n1 % 4), SB + 16 * (n0 % 4)
    kf, vf = aK + 8 * (j1 % 2), aV + 8 * (j0 % 2)
    return {
        "q1": f"v_mfma_f32_32x32x16_bf16 {v(nxt,16)}, {a(kf,4)}, {v(Q+8*i1,4)}, {opt.cinit}",
        "q2": f"v_mfma_f32_32x32x16_bf16 {v(nxt,16)}, {a(kf+4,4)}, {v(Q+8*i1+4,4)}, {v(nxt,16)}",
        "p1": f"v_smfmac_f32_32x32x32_bf16 {v(O+16*i0,16)}, {a(vf,4)}, {v(prv,8)}, {v(vIDX)}",
        "r1": f"v_smfmac_f32_16x16x64_bf16 {v(RS+4*i0,4)}, {v(ONES,4)}, {v(prv,8)}, {v(vIDX)}",
        "p2": f"v_smfmac_f32_32x32x32_bf16 {v(O+16*i0,16)}, {a(vf+4,4)}, {v(prv+8,8)}, {v(vIDX)}",
        "r2": f"v_smfmac_f32_16x16x64_bf16 {v(RS+4*i0,4)}, {v(ONES,4)}, {v(prv+8,8)}, {v(vIDX)}"}

ORDER = ["q1", "q2", "p1", "r1", "p2", "r2"]
PAT = [4, 4, 3, 1, 3, 1]

def k_read(jj, f):
    return f"ds_read_b128 {a(aK+8*(jj%2)+4*f,4)}, {v(vLIN)} offset:{(jj%16)*2048+1024*f}"
def v_read(jj, m, t):
    return f"ds_read_b64_tr_b16 {a(aV+8*(jj%2)+4*m+2*t,2)}, {v(vAV)} offset:{32768+(jj%16)*2048+1024*m+256*t}"

def emit_steps(n_lo, n_hi, opt, slots, valu, skip=()):
    out = []
    for n in range(n_lo, n_hi):
        m = mf_step(n, opt)
        cur = SB + 16 * (n % 4)
        ex = [f"v_exp_f32 {v(cur+e)}, {v(cur+e)}" for e in range(16)]
        side = list(valu.get(n, []))
        per = -(-len(side) // 16) if side else 0
        k = 0
        for key, c in zip(ORDER, PAT):
            if (n, key) not in skip: out.append(m[key])
            out += slots.get((n, key), [])
            for e in ex[k:k+c]:
                out.append(e)
                out += side[:per]; side = side[per:]
            k += c
        assert not side
    return out

def std_slots(slots, jj_lo, jj_hi):
    def add(n, key, x): slots.setdefault((n, key), []).append(x)
    for jj in range(jj_lo, jj_hi):
        n = 4 * jj
        add(n+1, "q2", "s_waitcnt lgkmcnt(0)")
        add(n+1, "r1", k_read(jj+1, 0)); add(n+1, "r2", k_read(jj+1, 1))
        add(n+2, "r1", v_read(jj+1, 0, 0))
        add(n+2, "p2", "s_waitcnt lgkmcnt(1)")
        add(n+2, "r2", v_read(jj+1, 0, 1))
        add(n+3, "r1", v_read(jj+1, 1, 0)); add(n+3, "r2", v_read(jj+1, 1, 1))

STAMP_NAMES=[]
def gen(opt):
    L = []
    A = L.append
    STAMP_NAMES.clear()
    def stamp(name):
        if not opt.stamps: return "; stamp " + name
        i = len(STAMP_NAMES); STAMP_NAMES.append(name)
        assert i < 19
        return f"s_memrealtime {s(62+2*i,2)}"
    def E(x): L.extend(x)
    ksc = " sc1" if opt.ksc1 else ""
    A("s_cmp_ge_u32 s2, 256")
    A("s_cbranch_scc1 L_end")
    A(stamp("entry"))
    if opt.spin: A("s_memrealtime s[98:99]")
    A(f"s_load_dwordx8 {s(sARG,8)}, s[0:1], 0")
    A(f"s_load_dwordx4 {s(sARG+8,4)}, s[0:1], 32")
    A(f"s_load_dwordx2 {s(sARG+12,2)}, s[0:1], 48")
    A(f"v_lshrrev_b32 {v(T)}, 6, v0")
    A(f"v_and_b32 v0, 63, v0")
    A(f"v_readfirstlane_b32 {s(sW)}, {v(T)}")
    A(f"s_and_b32 {s(sT0)}, s2, 7")
    A(f"s_lshr_b32 {s(sT1)}, s2, 3")
    A(f"s_and_b32 {s(sJ)}, {s(sT1)}, 3")
    A(f"s_lshr_b32 {s(sT1)}, {s(sT1)}, 2")
    A(f"s_lshl_b32 {s(sT0)}, {s(sT0)}, 3")
    A(f"s_add_u32 {s(sHEAD)}, {s(sT0)}, {s(sT1)}")
    A(f"s_lshl_b32 {s(sT2)}, {s(sHEAD)}, 17")
    A(f"s_lshl_b32 {s(sWL)}, {s(sW)}, 11")
    A(f"s_lshl_b32 {s(sBASE)}, {s(sJ)}, 15")
    A(f"s_lshl_b32 {s(sQOFF)}, {s(sW)}, 13")
    A(f"s_add_u32 {s(sQOFF)}, {s(sQOFF)}, {s(sBASE)}")
    A(f"s_add_u32 {s(sBASE)}, {s(sBASE)}, {s(sWL)}")
    A(f"s_and_b32 {s(sT3)}, {s(sHEAD)}, 30")
    A(f"s_lshl_b32 {s(sT3)}, {s(sT3)}, 1")
    A(f"s_mov_b32 {s(sEPS)}, {hex(f2u(1e-6))}")
    A(f"v_and_b32 {v(T)}, 31, v0")
    A(f"v_lshrrev_b32 {v(T+1)}, 5, v0")
    A(f"v_lshlrev_b32 {v(vOFF)}, 6, {v(T)}")
    A(f"v_lshl_add_u32 {v(vOFF)}, {v(T+1)}, 5, {v(vOFF)}")
    A(f"v_lshlrev_b32 {v(vLIN)}, 4, v0")
    for srd in (SQ, SK, SV, SO, SW):
        A(f"s_mov_b32 {s(srd+2)}, 0x20000")
        A(f"s_mov_b32 {s(srd+3)}, 0x20000")
    A(f"s_mov_b32 {s(SD+2)}, 256")
    A(f"s_mov_b32 {s(SD+3)}, 0x20000")
    A("s_waitcnt lgkmcnt(0)")
    A(stamp("kernarg"))
    A(f"s_load_dword {s(sTS)}, {s(sARG+6,2)}, {s(sT3)}")
    for srd, arg in ((SK, 2), (SQ, 0), (SV, 4)):
        A(f"s_add_u32 {s(srd)}, {s(sARG+arg)}, {s(sT2)}")
        A(f"s_addc_u32 {s(srd+1)}, {s(sARG+arg+1)}, 0")
    A(f"buffer_load_dwordx4 {v(KR,4)}, {v(vOFF)}, {s(SK,4)}, {s(sBASE)} offen")
    A(f"buffer_load_dwordx4 {v(KR+4,4)}, {v(vOFF)}, {s(SK,4)}, {s(sBASE)} offen offset:16")
    A(f"s_add_u32 {s(sT0)}, {s(sQOFF)}, 4096")
    for i in range(4):
        so = s(sQOFF) if i < 2 else s(sT0)
        A(f"buffer_load_dwordx4 {v(Q+8*i,4)}, {v(vOFF)}, {s(SQ,4)}, {so} offen offset:{(i%2)*2048}")
        A(f"buffer_load_dwordx4 {v(Q+8*i+4,4)}, {v(vOFF)}, {s(SQ,4)}, {so} offen offset:{(i%2)*2048+16}")
    A(f"s_add_u32 m0, {s(sWL)}, 32768")
    A(f"s_add_u32 {s(sT0)}, {s(sBASE)}, 8192")
    A(f"buffer_load_dwordx4 {v(vLIN)}, {s(SV,4)}, {s(sBASE)} offen lds")
    A(f"buffer_load_dwordx4 {v(vLIN)}, {s(SV,4)}, {s(sBASE)} offen offset:1024 lds")
    A(f"s_add_u32 {s(sT1)}, {s(sBASE)}, 16384")
    A(f"s_add_u32 {s(sKOFF)}, {s(sBASE)}, 24576")
    for t, so in ((1, sT0), (2, sT1), (3, sKOFF)):
        A(f"buffer_load_dwordx4 {v(KR+8*t,4)}, {v(vOFF)}, {s(SK,4)}, {s(so)} offen")
        A(f"buffer_load_dwordx4 {v(KR+8*t+4,4)}, {v(vOFF)}, {s(SK,4)}, {s(so)} offen offset:16")
    A(f"s_add_u32 m0, {s(sWL)}, {32768+8192}")
    A(f"s_mov_b32 {s(sVOFF)}, {s(sT0)}")
    A(f"buffer_load_dwordx4 {v(vLIN)}, {s(SV,4)}, {s(sT0)} offen lds")
    A(f"buffer_load_dwordx4 {v(vLIN)}, {s(SV,4)}, {s(sT0)} offen offset:1024 lds")
    for srd, arg in ((SO, 8), (SW, 12)):
        A(f"s_add_u32 {s(srd)}, {s(sARG+arg)}, {s(sT2)}")
        A(f"s_addc_u32 {s(srd+1)}, {s(sARG+arg+1)}, 0")
    A(f"s_mov_b32 {s(SD)}, {s(sARG+10)}")
    A(f"s_mov_b32 {s(SD+1)}, {s(sARG+11)}")
    A(f"s_lshl_b32 {s(sT2)}, {s(sHEAD)}, 2")
    A(f"s_add_u32 {s(sDBG)}, {s(sARG+10)}, {s(sT2)}")
    A(f"s_addc_u32 {s(sDBG+1)}, {s(sARG+11)}, 0")
    A(f"v_mov_b32 {v(vIDX)}, 0xdddddddd")
    A(f"v_mov_b32 {v(vONE)}, 1")
    A(f"v_add_u32 {v(vKW)}, {s(sWL)}, {v(vLIN)}")
    A(f"s_add_u32 {s(sT2)}, {s(sT2)}, {s(sJ)}")
    A(f"v_lshlrev_b32 {v(vFO)}, 4, {v(vKW)}")
    A(f"v_add_u32 {v(vFO)}, {s(sT2)}, {v(vFO)}")
    A(f"v_bfe_u32 {v(T+2)}, v0, 2, 2")
    A(f"v_lshl_add_u32 {v(T+2)}, {v(T+1)}, 3, {v(T+2)}")
    A(f"v_lshlrev_b32 {v(vAV)}, 6, {v(T+2)}")
    A(f"v_and_b32 {v(T+2)}, 1, v0")
    A(f"v_lshl_add_u32 {v(vAV)}, {v(T+2)}, 5, {v(vAV)}")
    A(f"v_bfe_u32 {v(T+2)}, v0, 4, 1")
    A(f"v_lshl_add_u32 {v(vAV)}, {v(T+2)}, 4, {v(vAV)}")
    A(f"v_bfe_u32 {v(T+2)}, v0, 1, 1")
    A(f"v_lshl_add_u32 {v(vAV)}, {v(T+2)}, 3, {v(vAV)}")
    A(f"v_and_b32 {v(T+2)}, 7, v0")
    A(f"v_mov_b32 {v(T+3)}, 0x3f803f80")
    A(f"v_cmp_eq_u32 vcc, 0, {v(T+2)}")
    A("s_nop 1")
    A(f"v_cndmask_b32 {v(ONES)}, 0, {v(T+3)}, vcc")
    A(f"v_cndmask_b32 {v(ONES+1)}, 0, {v(T+3)}, vcc")
    A(f"v_cmp_eq_u32 vcc, 4, {v(T+2)}")
    A("s_nop 1")
    A(f"v_cndmask_b32 {v(ONES+2)}, 0, {v(T+3)}, vcc")
    A(f"v_cndmask_b32 {v(ONES+3)}, 0, {v(T+3)}, vcc")
    for r in range(O, RS + 16): A(f"v_mov_b32 {v(r)}, 0")
    A("s_waitcnt lgkmcnt(0)")
    A(f"s_and_b32 {s(sT0)}, {s(sHEAD)}, 1")
    A(f"s_lshl_b32 {s(sT0)}, {s(sT0)}, 4")
    A(f"s_lshr_b32 {s(sTS)}, {s(sTS)}, {s(sT0)}")
    A(f"s_lshl_b32 {s(sTS)}, {s(sTS)}, 16")
    A(f"s_and_b32 {s(sT0)}, {s(sTS)}, 0x7fffffff")
    A(f"v_mov_b32 {v(T)}, {hex(f2u(LOG2E))}")
    A(f"v_mul_f32 {v(T)}, {s(sTS)}, {v(T)}")
    A("s_nop 0")
    A(f"v_readfirstlane_b32 {s(sTS)}, {v(T)}")
    A(f"s_cmp_gt_u32 {s(sT0)}, {hex(f2u(opt.thresh))}")
    A("s_cbranch_scc1 L_slow")
    A(stamp("t"))
    A("s_waitcnt vmcnt(16)")
    A(stamp("K0Q0"))
    h, sc = norm_pair(KR, Q, False, True, T)
    E(h); E(sc[0])
    A(f"ds_write_b128 {v(vKW)}, {v(KR,4)}")
    A(f"ds_write_b128 {v(vKW)}, {v(KR+4,4)} offset:1024")
    A(f"buffer_store_dwordx4 {v(KR,4)}, {v(vLIN)}, {s(SW,4)}, {s(sBASE)} offen sc1")
    A(f"buffer_store_dwordx4 {v(KR+4,4)}, {v(vLIN)}, {s(SW,4)}, {s(sBASE)} offen offset:1024 sc1")
    E(sc[1])
    A("s_waitcnt vmcnt(14)")
    A(stamp("Q12"))
    h, sc = norm_pair(Q + 8, Q + 16, True, True, T)
    E(h); E(sc[0])
    A("s_waitcnt vmcnt(10) lgkmcnt(0)")
    A("s_barrier")
    A(stamp("B0"))
    A(k_read(0, 0)); A(k_read(0, 1))
    for m in range(2):
        for t in range(2): A(v_read(0, m, t))
    E(sc[1])
    h, sc = norm_pair(Q + 24, None, True, False, T)
    E(h)
    A("s_waitcnt lgkmcnt(0)")
    m0 = mf_step(-1, opt)
    A(m0["q1"]); A(m0["q2"])
    E(sc[0])
    slots, valu = {}, {}
    def add(n, key, x): slots.setdefault((n, key), []).append(x)
    def strip(l): return [x for x in l]
    def vdma(n, stage_slot, half):
        if half == 0:
            add(n, "q1", f"s_add_u32 {s(sVOFF)}, {s(sVOFF)}, 8192")
            add(n, "q2", f"s_and_b32 {s(sVOFF)}, {s(sVOFF)}, 0x1ffff")
            add(n, "p1", f"s_add_u32 m0, {s(sWL)}, {32768+stage_slot*8192}")
        add(n, "r1", f"buffer_load_dwordx4 {v(vLIN)}, {s(SV,4)}, {s(sVOFF)} offen offset:{1024*half} lds")
    def kdma(n, stage_slot, half, key="r1"):
        if half == 0:
            add(n, "q1", f"s_add_u32 {s(sKOFF)}, {s(sKOFF)}, 8192")
            add(n, "q2", f"s_and_b32 {s(sKOFF)}, {s(sKOFF)}, 0x1ffff")
            add(n, "p1", f"s_add_u32 m0, {s(sWL)}, {stage_slot*8192}")
        add(n, key, f"buffer_load_dwordx4 {v(vLIN)}, {s(SW,4)}, {s(sKOFF)} offen offset:{1024*half}{ksc} lds")
    def kpub(n, t, so):
        add(n, "r1", f"ds_write_b128 {v(vKW)}, {v(KR+8*t,4)} offset:{8192*t}")
        add(n, "r2", f"ds_write_b128 {v(vKW)}, {v(KR+8*t+4,4)} offset:{8192*t+1024}")
        add(n, "p1", f"buffer_store_dwordx4 {v(KR+8*t,4)}, {v(vLIN)}, {s(SW,4)}, {so} offen sc1")
        add(n, "q2", f"buffer_store_dwordx4 {v(KR+8*t+4,4)}, {v(vLIN)}, {s(SW,4)}, {so} offen offset:1024 sc1")
    std_slots(slots, 0, 16)
    add(1, "q1", "s_waitcnt vmcnt(8)")
    h, sc = norm_pair(KR + 8, None, False, False, T)
    valu[1] = h; valu[2] = sc[0][:16]; valu[3] = sc[0][16:]
    add(3, "q1", f"s_add_u32 {s(sT0)}, {s(sBASE)}, 8192")
    kpub(4, 1, s(sT0))
    add(5, "q1", "s_waitcnt vmcnt(6)")
    h, sc = norm_pair(KR + 16, KR + 24, False, False, T)
    valu[5] = h; valu[6] = sc[0][:16]; valu[7] = sc[0][16:]
    valu[9] = sc[1][:16]; valu[10] = sc[1][16:]
    kpub(8, 2, s(sT1))
    kpub(12, 3, s(sKOFF))
    add(13, "p1", "s_waitcnt vmcnt(8) lgkmcnt(0)"); add(13, "p1", "s_barrier")
    add(18, "q1", "s_waitcnt vmcnt(0)")
    add(18, "q2", "s_barrier")
    add(18, "p1", f"buffer_store_byte {v(vONE)}, {v(vFO)}, {s(SD,4)}, 0 offen sc1")
    vdma(20, 2, 0); add(20, "r2", f"buffer_load_dwordx4 {v(vLIN)}, {s(SV,4)}, {s(sVOFF)} offen offset:1024 lds")
    vdma(24, 3, 0); vdma(28, 3, 1)
    add(29, "p1", "s_waitcnt vmcnt(2)"); add(29, "p1", "s_barrier")
    vdma(32, 0, 0); vdma(36, 0, 1)
    add(43, "q1", f"s_load_dword {s(sFLAG)}, {s(sDBG,2)}, 0")
    add(45, "p1", "s_waitcnt vmcnt(2)"); add(45, "p1", "s_barrier")
    add(46, "q1", f"s_cmp_eq_u32 {s(sFLAG)}, {'0x02020202' if opt.force_help else '0x01010101'}")
    add(46, "q2", "s_cbranch_scc0 L_wait")
    add(46, "q2", "L_back:")
    kdma(48, 0, 0); kdma(48, 0, 1, "r2")
    vdma(52, 1, 0); add(52, "r2", f"buffer_load_dwordx4 {v(vLIN)}, {s(SV,4)}, {s(sVOFF)} offen offset:1024 lds")
    kdma(56, 1, 0); kdma(60, 1, 1)
    add(61, "p1", "s_waitcnt vmcnt(4)"); add(61, "p1", "s_barrier")
    add(62, "q1", f"s_mov_b32 {s(sCNT)}, 3")
    A(stamp("step0"))
    for nn in (2, 6, 14, 19, 30, 47, 62): add(nn, "p1", stamp(f"step{nn}"))
    E(emit_steps(0, 64, opt, slots, valu, skip={(0, "p1"), (0, "r1"), (0, "p2"), (0, "r2")}))
    slots, valu = {}, {}
    std_slots(slots, 16, 32)
    for st in range(4):
        n = 64 + 16 * st
        vdma(n, (st + 2) % 4, 0); vdma(n + 4, (st + 2) % 4, 1)
        kdma(n + 8, (st + 2) % 4, 0); kdma(n + 12, (st + 2) % 4, 1)
        add(n + 13, "p1", "s_waitcnt vmcnt(4)"); add(n + 13, "p1", "s_barrier")
    add(127, "q1", f"s_sub_u32 {s(sCNT)}, {s(sCNT)}, 1")
    add(127, "q2", f"s_cmp_lg_u32 {s(sCNT)}, 0")
    A(".p2align 6")
    A("L_loop:")
    E(emit_steps(64, 128, opt, slots, valu))
    A("s_cbranch_scc1 L_loop")
    m = mf_step(256, opt)
    A(stamp("loopend"))
    A(f"s_add_u32 {s(sT0)}, {s(sQOFF)}, 4096")
    A("s_nop 0")
    A(m["p1"]); A(m["r1"]); A(m["p2"]); A(m["r2"])
    for i in range(4):
        E(epilogue_tile(i, T + 2 * i, O + 16 * i, RS + 4 * i, s(sQOFF) if i < 2 else s(sT0), opt.osc.replace('_',' ')))
    if opt.stamps:
        A(stamp("stored"))
        A("s_waitcnt vmcnt(0)")
        A(stamp("done"))
        A("s_waitcnt lgkmcnt(0)")
        for i in range(len(STAMP_NAMES)): A(f"v_writelane_b32 {v(T)}, {s(62+2*i)}, {i}")
        A(f"s_lshl_b32 {s(sT0)}, s2, 2")
        A(f"s_add_u32 {s(sT0)}, {s(sT0)}, {s(sW)}")
        A(f"s_lshl_b32 {s(sT0)}, {s(sT0)}, 8")
        A(f"s_add_u32 {s(sT0)}, {s(sT0)}, 0x8000000")
        A(f"v_lshlrev_b32 {v(T+1)}, 2, v0")
        A(f"v_add_u32 {v(T+1)}, {s(sT0)}, {v(T+1)}")
        A(f"global_store_dword {v(T+1)}, {v(T)}, {s(sARG+12,2)}")
        A(f"s_lshl_b32 {s(sT0)}, s2, 2")
        A(f"s_add_u32 {s(sT0)}, {s(sT0)}, {s(sW)}")
        A(f"s_cmp_lg_u32 {s(sT0)}, 148")
        A("s_cbranch_scc1 L_end")
        A(f"v_subrev_u32 {v(T)}, s62, {v(T)}")
        A(f"v_lshlrev_b32 {v(T+1)}, 2, v0")
        A(f"v_subrev_u32 {v(T+1)}, 4, {v(T+1)}")
        A(f"s_mov_b32 {s(SD+2)}, 64")
        A(f"buffer_store_dword {v(T)}, {v(T+1)}, {s(SD,4)}, 0 offen")
    if opt.spin:
        A("L_dspin:")
        A("s_memrealtime s[100:101]")
        A("s_waitcnt lgkmcnt(0)")
        A("s_sub_u32 s100, s100, s98")
        A(f"s_cmp_lt_u32 s100, {opt.spin}")
        A("s_cbranch_scc1 L_dspin")
    A("L_end:")
    A("s_endpgm")
    A("L_wait:")
    A(f"s_mov_b32 {s(sCNT2)}, {1 if opt.force_help else 64}")
    A(f"v_mov_b32 {v(T+6)}, 0")
    A("L_spin:")
    A(f"global_load_dword {v(T)}, {v(T+6)}, {s(sDBG,2)} sc1")
    A("s_waitcnt vmcnt(0)")
    A(f"v_readfirstlane_b32 {s(sFLAG)}, {v(T)}")
    A("s_nop 3")
    A(f"s_cmp_eq_u32 {s(sFLAG)}, {'0x02020202' if opt.force_help else '0x01010101'}")
    A("s_cbranch_scc1 L_back")
    A(f"s_sub_u32 {s(sCNT2)}, {s(sCNT2)}, 1")
    A(f"s_cmp_lg_u32 {s(sCNT2)}, 0")
    A("s_cbranch_scc1 L_spin")
    A(f"s_mov_b32 {s(sCNT2)}, 12")
    A(f"s_mov_b32 {s(sT0)}, {s(sKOFF)}")
    A("L_help:")
    A(f"s_add_u32 {s(sT0)}, {s(sT0)}, 8192")
    A(f"s_and_b32 {s(sT0)}, {s(sT0)}, 0x1ffff")
    A(f"buffer_load_dwordx4 {v(KR,4)}, {v(vOFF)}, {s(SK,4)}, {s(sT0)} offen")
    A(f"buffer_load_dwordx4 {v(KR+4,4)}, {v(vOFF)}, {s(SK,4)}, {s(sT0)} offen offset:16")
    A("s_waitcnt vmcnt(0)")
    h, sc = norm_pair(KR, None, False, False, T)
    E(h); E(sc[0])
    A(f"buffer_store_dwordx4 {v(KR,4)}, {v(vLIN)}, {s(SW,4)}, {s(sT0)} offen sc1")
    A(f"buffer_store_dwordx4 {v(KR+4,4)}, {v(vLIN)}, {s(SW,4)}, {s(sT0)} offen offset:1024 sc1")
    A("s_waitcnt vmcnt(0)")
    A(f"s_sub_u32 {s(sCNT2)}, {s(sCNT2)}, 1")
    A(f"s_cmp_lg_u32 {s(sCNT2)}, 0")
    A("s_cbranch_scc1 L_help")
    A("s_branch L_back")
    A("L_slow:")
    A("s_waitcnt vmcnt(0)")
    h, sc = norm_pair(Q, Q + 8, True, True, T); E(h); E(sc[0]); E(sc[1])
    h, sc = norm_pair(Q + 16, Q + 24, True, True, T); E(h); E(sc[0]); E(sc[1])
    MX = T + 8
    for i in range(4): A(f"v_mov_b32 {v(MX+i)}, 0xff800000")
    A(f"v_add_u32 {v(vAV)}, {s(sWL)}, {v(vAV)}")
    A(f"s_add_u32 m0, {s(sWL)}, 32768")
    A(f"s_mov_b32 {s(sKOFF)}, 0")
    A("L_slow_kv:")
    A(f"buffer_load_dwordx4 {v(KR,4)}, {v(vOFF)}, {s(SK,4)}, {s(sKOFF)} offen")
    A(f"buffer_load_dwordx4 {v(KR+4,4)}, {v(vOFF)}, {s(SK,4)}, {s(sKOFF)} offen offset:16")
    A(f"buffer_load_dwordx4 {v(vLIN)}, {s(SV,4)}, {s(sKOFF)} offen lds")
    A(f"buffer_load_dwordx4 {v(vLIN)}, {s(SV,4)}, {s(sKOFF)} offen offset:1024 lds")
    A("s_waitcnt vmcnt(0)")
    for m_ in range(2):
        for t in range(2): A(v_read(0, m_, t))
    h, sc = norm_pair(KR, None, False, False, T); E(h); E(sc[0])
    A("s_waitcnt lgkmcnt(0)")
    A("s_nop 1")
    for i in range(4):
        A(f"v_mfma_f32_32x32x16_bf16 {v(SB+16*i,16)}, {v(KR,4)}, {v(Q+8*i,4)}, 0")
        A(f"v_mfma_f32_32x32x16_bf16 {v(SB+16*i,16)}, {v(KR+4,4)}, {v(Q+8*i+4,4)}, {v(SB+16*i,16)}")
    A("s_nop 15")
    for i in range(4):
        sb = SB + 16 * i
        A(f"v_max3_f32 {v(T)}, {v(sb)}, {v(sb+1)}, {v(MX+i)}")
        for r in range(2, 16, 2): A(f"v_max3_f32 {v(T)}, {v(sb+r)}, {v(sb+r+1)}, {v(T)}")
        A(f"v_mov_b32 {v(T+1)}, {v(T)}")
        A("s_nop 1")
        A(f"v_permlane32_swap_b32 {v(T)}, {v(T+1)}")
        A("s_nop 0")
        A(f"v_max_f32 {v(T)}, {v(T)}, {v(T+1)}")
        A(f"v_sub_f32 {v(T+2)}, {v(MX+i)}, {v(T)}")
        A(f"v_exp_f32 {v(T+2)}, {v(T+2)}")
        A(f"v_mov_b32 {v(MX+i)}, {v(T)}")
        for r in range(16): A(f"v_sub_f32 {v(sb+r)}, {v(sb+r)}, {v(T)}")
        for r in range(16): A(f"v_exp_f32 {v(sb+r)}, {v(sb+r)}")
        for r in range(16): A(f"v_mul_f32 {v(O+16*i+r)}, {v(O+16*i+r)}, {v(T+2)}")
        A(f"v_mul_f32 {v(RS+4*i)}, {v(RS+4*i)}, {v(T+2)}")
        A("s_nop 1")
        A(f"v_smfmac_f32_32x32x32_bf16 {v(O+16*i,16)}, {a(aV,4)}, {v(sb,8)}, {v(vIDX)}")
        A(f"v_smfmac_f32_16x16x64_bf16 {v(RS+4*i,4)}, {v(ONES,4)}, {v(sb,8)}, {v(vIDX)}")
        A(f"v_smfmac_f32_32x32x32_bf16 {v(O+16*i,16)}, {a(aV+4,4)}, {v(sb+8,8)}, {v(vIDX)}")
        A(f"v_smfmac_f32_16x16x64_bf16 {v(RS+4*i,4)}, {v(ONES,4)}, {v(sb+8,8)}, {v(vIDX)}")
    A("s_nop 15")
    A(f"s_add_u32 {s(sKOFF)}, {s(sKOFF)}, 2048")
    A(f"s_cmp_lt_u32 {s(sKOFF)}, 0x20000")
    A("s_cbranch_scc1 L_slow_kv")
    A(f"s_add_u32 {s(sT0)}, {s(sQOFF)}, 4096")
    for i in range(4):
        E(epilogue_tile(i, T + 2 * (i % 2), O + 16 * i, RS + 4 * i, s(sQOFF) if i < 2 else s(sT0)))
    A("s_endpgm")
    return L

HEAD = open("standalone__qk_norm__prompt.s.ref").read().split("; Override launch")[0]

def render(opt):
    body = gen(opt)
    o = HEAD
    o += "; Override launch geometry by editing the next line (default: block=256,\n"
    o += "; @launch grid=(256,1,1) block=(256,1,1) lds=65536\n"
    o += f""".amdgcn_target "amdgcn-amd-amdhsa--gfx950"
.text
.globl {NAME}_kernel
.p2align 8
.type {NAME}_kernel,@function
{NAME}_kernel:
"""
    for x in body:
        o += (x if x.endswith(":") or x.startswith(".") else "    " + x) + "\n"
    o += f""".section .rodata,"a"
.p2align 6
.amdhsa_kernel {NAME}_kernel
  .amdhsa_next_free_vgpr {NV+NA}
  .amdhsa_next_free_sgpr 102
  .amdhsa_accum_offset {NV}
  .amdhsa_group_segment_fixed_size 0
  .amdhsa_kernarg_size 56
  .amdhsa_user_sgpr_count 2
  .amdhsa_user_sgpr_kernarg_segment_ptr 1
  .amdhsa_system_sgpr_workgroup_id_x 1
.end_amdhsa_kernel
"""
    return o

if __name__ == "__main__":
    opt = Opt()
    out = sys.argv[1]
    for kv in sys.argv[2:]:
        k, val = kv.split("=")
        cur = getattr(opt, k)
        setattr(opt, k, type(cur)(val) if not isinstance(cur, bool) else val in ("1", "True"))
    open(out, "w").write(render(opt))
    if opt.stamps: open(out + ".stamps", "w").write(" ".join(STAMP_NAMES))
```

```python
import sys, struct
NAME = "standalone__qk_norm__prompt"

def f2u(x): return struct.unpack("<I", struct.pack("<f", x))[0]
LOG2E = 1.4426950408889634

class Opt:
    thresh = 16.0
    cinit = "4.0"
    force_help = False
    stamps = False
    ksc1 = True
    l2pf = False
    spin0 = 0
    osc = ''
    spin = 0

SQ, SK, SV, SO, SW, SD = 4, 8, 12, 16, 20, 24
sW, sJ, sHEAD, sTS = 28, 29, 30, 31
sBASE, sVOFF, sKOFF, sCNT = 32, 33, 34, 35
sARG = 36
sT0, sT1, sT2, sT3 = 50, 51, 52, 53
sFLAG = 54
sWL = 55
sQOFF = 56
sDBG = 58
sCNT2 = 60
sEPS = 61
vOFF, vLIN, vAV, vKW, vIDX, vFO, vONE = 1, 2, 3, 4, 5, 6, 7
Q = 8
O = 40
RS = 104
SB = 120
KR = 184
ONES = 216
T = 220
NV = 236
aK = 0
aV = 16
NA = 32

def v(a, n=1): return f"v{a}" if n == 1 else f"v[{a}:{a+n-1}]"
def a(x, n=1): return f"a{x}" if n == 1 else f"a[{x}:{x+n-1}]"
def s(x, n=1): return f"s{x}" if n == 1 else f"s[{x}:{x+n-1}]"

def norm_pair(ta, tb, qa, qb, tmp):
    o = []
    x, y = tmp, tmp + 1
    ra, rb = tmp, tmp + 2
    u = tmp + 4
    for i in range(8):
        o.append(f"v_dot2_f32_bf16 {v(x)}, {v(ta+i)}, {v(ta+i)}, {'0' if i==0 else v(x)}")
        if tb is not None:
            o.append(f"v_dot2_f32_bf16 {v(y)}, {v(tb+i)}, {v(tb+i)}, {'0' if i==0 else v(y)}")
    if tb is None:
        o.append("s_nop 2")
        o.append(f"v_mov_b32 {v(y)}, {v(x)}")
        o.append("s_nop 1")
    else:
        o.append("s_nop 2")
    o.append(f"v_permlane32_swap_b32 {v(x)}, {v(y)}")
    o.append("s_nop 0")
    o.append(f"v_add_f32 {v(x)}, {v(x)}, {v(y)}")
    o.append(f"v_sqrt_f32 {v(x)}, {v(x)}")
    o.append("s_nop 0")
    o.append(f"v_add_f32 {v(x)}, {s(sEPS)}, {v(x)}")
    o.append(f"v_rcp_f32 {v(x)}, {v(x)}")
    o.append("s_nop 0")
    if tb is not None:
        if qa and qb: o.append(f"v_mul_f32 {v(x)}, {s(sTS)}, {v(x)}")
        o.append(f"v_mov_b32 {v(rb)}, {v(x)}")
        o.append("s_nop 1")
        o.append(f"v_permlane32_swap_b32 {v(ra)}, {v(rb)}")
        o.append("s_nop 0")
        if qa and not qb: o.append(f"v_mul_f32 {v(ra)}, {s(sTS)}, {v(ra)}")
        if qb and not qa: o.append(f"v_mul_f32 {v(rb)}, {s(sTS)}, {v(rb)}")
    elif qa:
        o.append(f"v_mul_f32 {v(ra)}, {s(sTS)}, {v(ra)}")
    sc = []
    for (t, r) in ((ta, ra), (tb, rb)):
        if t is None: continue
        l = []
        for i in range(8):
            l += [f"v_lshlrev_b32 {v(u)}, 16, {v(t+i)}",
                  f"v_and_b32 {v(u+1)}, 0xffff0000, {v(t+i)}",
                  f"v_pk_mul_f32 {v(u,2)}, {v(u,2)}, {v(r,2)} op_sel_hi:[1,0]",
                  f"v_cvt_pk_bf16_f32 {v(t+i)}, {v(u)}, {v(u+1)}"]
        sc.append(l)
    return o, sc

def epilogue_tile(i, tmp, oreg, rsreg, soff, osc=''):
    o = [f"v_rcp_f32 {v(tmp)}, {v(rsreg)}", "s_nop 0"]
    for r in range(0, 16, 2):
        o.append(f"v_pk_mul_f32 {v(oreg+r,2)}, {v(oreg+r,2)}, {v(tmp,2)} op_sel_hi:[1,0]")
    for r in range(8):
        o.append(f"v_cvt_pk_bf16_f32 {v(oreg+r)}, {v(oreg+2*r)}, {v(oreg+2*r+1)}")
    o.append(f"buffer_store_dwordx4 {v(oreg,4)}, {v(vOFF)}, {s(SO,4)}, {soff} offen offset:{(i%2)*2048} {osc}")
    o.append(f"buffer_store_dwordx4 {v(oreg+4,4)}, {v(vOFF)}, {s(SO,4)}, {soff} offen offset:{(i%2)*2048+16} {osc}")
    return o

def mf_step(n, opt):
    n1, n0 = n + 1, n - 1
    j1, i1 = n1 // 4, n1 % 4
    j0, i0 = n0 // 4, n0 % 4
    nxt, prv = SB + 16 * (n1 % 4), SB + 16 * (n0 % 4)
    kf, vf = aK + 8 * (j1 % 2), aV + 8 * (j0 % 2)
    return {
        "q1": f"v_mfma_f32_32x32x16_bf16 {v(nxt,16)}, {a(kf,4)}, {v(Q+8*i1,4)}, {opt.cinit}",
        "q2": f"v_mfma_f32_32x32x16_bf16 {v(nxt,16)}, {a(kf+4,4)}, {v(Q+8*i1+4,4)}, {v(nxt,16)}",
        "p1": f"v_smfmac_f32_32x32x32_bf16 {v(O+16*i0,16)}, {a(vf,4)}, {v(prv,8)}, {v(vIDX)}",
        "r1": f"v_smfmac_f32_16x16x64_bf16 {v(RS+4*i0,4)}, {v(ONES,4)}, {v(prv,8)}, {v(vIDX)}",
        "p2": f"v_smfmac_f32_32x32x32_bf16 {v(O+16*i0,16)}, {a(vf+4,4)}, {v(prv+8,8)}, {v(vIDX)}",
        "r2": f"v_smfmac_f32_16x16x64_bf16 {v(RS+4*i0,4)}, {v(ONES,4)}, {v(prv+8,8)}, {v(vIDX)}"}

ORDER = ["q1", "q2", "p1", "r1", "p2", "r2"]
PAT = [4, 4, 3, 1, 3, 1]

def k_read(jj, f):
    return f"ds_read_b128 {a(aK+8*(jj%2)+4*f,4)}, {v(vLIN)} offset:{(jj%16)*2048+1024*f}"
def v_read(jj, m, t):
    return f"ds_read_b64_tr_b16 {a(aV+8*(jj%2)+4*m+2*t,2)}, {v(vAV)} offset:{32768+(jj%16)*2048+1024*m+256*t}"

def emit_steps(n_lo, n_hi, opt, slots, valu, skip=()):
    out = []
    for n in range(n_lo, n_hi):
        m = mf_step(n, opt)
        cur = SB + 16 * (n % 4)
        ex = [f"v_exp_f32 {v(cur+e)}, {v(cur+e)}" for e in range(16)]
        side = list(valu.get(n, []))
        per = -(-len(side) // 16) if side else 0
        k = 0
        for key, c in zip(ORDER, PAT):
            if (n, key) not in skip: out.append(m[key])
            out += slots.get((n, key), [])
            for e in ex[k:k+c]:
                out.append(e)
                out += side[:per]; side = side[per:]
            k += c
        assert not side
    return out

def std_slots(slots, jj_lo, jj_hi):
    def add(n, key, x): slots.setdefault((n, key), []).append(x)
    for jj in range(jj_lo, jj_hi):
        n = 4 * jj
        add(n+1, "q2", "s_waitcnt lgkmcnt(0)")
        add(n+1, "r1", k_read(jj+1, 0)); add(n+1, "r2", k_read(jj+1, 1))
        add(n+2, "r1", v_read(jj+1, 0, 0))
        add(n+2, "p2", "s_waitcnt lgkmcnt(1)")
        add(n+2, "r2", v_read(jj+1, 0, 1))
        add(n+3, "r1", v_read(jj+1, 1, 0)); add(n+3, "r2", v_read(jj+1, 1, 1))

STAMP_NAMES=[]
def gen(opt):
    L = []
    A = L.append
    STAMP_NAMES.clear()
    def stamp(name):
        if not opt.stamps: return "; stamp " + name
        i = len(STAMP_NAMES); STAMP_NAMES.append(name)
        assert i < 19
        return f"s_memrealtime {s(62+2*i,2)}"
    def E(x): L.extend(x)
    ksc = " sc1" if opt.ksc1 else ""
    A("s_cmp_ge_u32 s2, 256")
    A("s_cbranch_scc1 L_end")
    A(stamp("entry"))
    if opt.spin or opt.spin0: A("s_memrealtime s[98:99]")
    A(f"s_load_dwordx8 {s(sARG,8)}, s[0:1], 0")
    A(f"s_load_dwordx4 {s(sARG+8,4)}, s[0:1], 32")
    A(f"s_load_dwordx2 {s(sARG+12,2)}, s[0:1], 48")
    A(f"v_lshrrev_b32 {v(T)}, 6, v0")
    A(f"v_and_b32 v0, 63, v0")
    A(f"v_readfirstlane_b32 {s(sW)}, {v(T)}")
    A(f"s_and_b32 {s(sT0)}, s2, 7")
    A(f"s_lshr_b32 {s(sT1)}, s2, 3")
    A(f"s_and_b32 {s(sJ)}, {s(sT1)}, 3")
    A(f"s_lshr_b32 {s(sT1)}, {s(sT1)}, 2")
    A(f"s_lshl_b32 {s(sT0)}, {s(sT0)}, 3")
    A(f"s_add_u32 {s(sHEAD)}, {s(sT0)}, {s(sT1)}")
    A(f"s_lshl_b32 {s(sT2)}, {s(sHEAD)}, 17")
    A(f"s_lshl_b32 {s(sWL)}, {s(sW)}, 11")
    A(f"s_lshl_b32 {s(sBASE)}, {s(sJ)}, 15")
    A(f"s_lshl_b32 {s(sQOFF)}, {s(sW)}, 13")
    A(f"s_add_u32 {s(sQOFF)}, {s(sQOFF)}, {s(sBASE)}")
    A(f"s_add_u32 {s(sBASE)}, {s(sBASE)}, {s(sWL)}")
    A(f"s_and_b32 {s(sT3)}, {s(sHEAD)}, 30")
    A(f"s_lshl_b32 {s(sT3)}, {s(sT3)}, 1")
    A(f"s_mov_b32 {s(sEPS)}, {hex(f2u(1e-6))}")
    A(f"v_and_b32 {v(T)}, 31, v0")
    A(f"v_lshrrev_b32 {v(T+1)}, 5, v0")
    A(f"v_lshlrev_b32 {v(vOFF)}, 6, {v(T)}")
    A(f"v_lshl_add_u32 {v(vOFF)}, {v(T+1)}, 5, {v(vOFF)}")
    A(f"v_lshlrev_b32 {v(vLIN)}, 4, v0")
    for srd in (SQ, SK, SV, SO, SW):
        A(f"s_mov_b32 {s(srd+2)}, 0x20000")
        A(f"s_mov_b32 {s(srd+3)}, 0x20000")
    A(f"s_mov_b32 {s(SD+2)}, 256")
    A(f"s_mov_b32 {s(SD+3)}, 0x20000")
    A("s_waitcnt lgkmcnt(0)")
    A(stamp("kernarg"))
    A(f"s_load_dword {s(sTS)}, {s(sARG+6,2)}, {s(sT3)}")
    for srd, arg in ((SK, 2), (SQ, 0), (SV, 4)):
        A(f"s_add_u32 {s(srd)}, {s(sARG+arg)}, {s(sT2)}")
        A(f"s_addc_u32 {s(srd+1)}, {s(sARG+arg+1)}, 0")
    A(f"buffer_load_dwordx4 {v(KR,4)}, {v(vOFF)}, {s(SK,4)}, {s(sBASE)} offen")
    A(f"buffer_load_dwordx4 {v(KR+4,4)}, {v(vOFF)}, {s(SK,4)}, {s(sBASE)} offen offset:16")
    A(f"s_add_u32 {s(sT0)}, {s(sQOFF)}, 4096")
    for i in range(4):
        so = s(sQOFF) if i < 2 else s(sT0)
        A(f"buffer_load_dwordx4 {v(Q+8*i,4)}, {v(vOFF)}, {s(SQ,4)}, {so} offen offset:{(i%2)*2048}")
        A(f"buffer_load_dwordx4 {v(Q+8*i+4,4)}, {v(vOFF)}, {s(SQ,4)}, {so} offen offset:{(i%2)*2048+16}")
    A(f"s_add_u32 m0, {s(sWL)}, 32768")
    A(f"s_add_u32 {s(sT0)}, {s(sBASE)}, 8192")
    A(f"buffer_load_dwordx4 {v(vLIN)}, {s(SV,4)}, {s(sBASE)} offen lds")
    A(f"buffer_load_dwordx4 {v(vLIN)}, {s(SV,4)}, {s(sBASE)} offen offset:1024 lds")
    A(f"s_add_u32 {s(sT1)}, {s(sBASE)}, 16384")
    A(f"s_add_u32 {s(sKOFF)}, {s(sBASE)}, 24576")
    for t, so in ((1, sT0), (2, sT1), (3, sKOFF)):
        A(f"buffer_load_dwordx4 {v(KR+8*t,4)}, {v(vOFF)}, {s(SK,4)}, {s(so)} offen")
        A(f"buffer_load_dwordx4 {v(KR+8*t+4,4)}, {v(vOFF)}, {s(SK,4)}, {s(so)} offen offset:16")
    A(f"s_add_u32 m0, {s(sWL)}, {32768+8192}")
    A(f"s_mov_b32 {s(sVOFF)}, {s(sT0)}")
    A(f"buffer_load_dwordx4 {v(vLIN)}, {s(SV,4)}, {s(sT0)} offen lds")
    A(f"buffer_load_dwordx4 {v(vLIN)}, {s(SV,4)}, {s(sT0)} offen offset:1024 lds")
    for srd, arg in ((SO, 8), (SW, 12)):
        A(f"s_add_u32 {s(srd)}, {s(sARG+arg)}, {s(sT2)}")
        A(f"s_addc_u32 {s(srd+1)}, {s(sARG+arg+1)}, 0")
    A(f"s_mov_b32 {s(SD)}, {s(sARG+10)}")
    A(f"s_mov_b32 {s(SD+1)}, {s(sARG+11)}")
    A(f"s_lshl_b32 {s(sT2)}, {s(sHEAD)}, 2")
    A(f"s_add_u32 {s(sDBG)}, {s(sARG+10)}, {s(sT2)}")
    A(f"s_addc_u32 {s(sDBG+1)}, {s(sARG+11)}, 0")
    A(f"v_mov_b32 {v(vIDX)}, 0xdddddddd")
    A(f"v_mov_b32 {v(vONE)}, 1")
    A(f"v_add_u32 {v(vKW)}, {s(sWL)}, {v(vLIN)}")
    A(f"s_add_u32 {s(sT2)}, {s(sT2)}, {s(sJ)}")
    A(f"v_lshlrev_b32 {v(vFO)}, 4, {v(vKW)}")
    A(f"v_add_u32 {v(vFO)}, {s(sT2)}, {v(vFO)}")
    A(f"v_bfe_u32 {v(T+2)}, v0, 2, 2")
    A(f"v_lshl_add_u32 {v(T+2)}, {v(T+1)}, 3, {v(T+2)}")
    A(f"v_lshlrev_b32 {v(vAV)}, 6, {v(T+2)}")
    A(f"v_and_b32 {v(T+2)}, 1, v0")
    A(f"v_lshl_add_u32 {v(vAV)}, {v(T+2)}, 5, {v(vAV)}")
    A(f"v_bfe_u32 {v(T+2)}, v0, 4, 1")
    A(f"v_lshl_add_u32 {v(vAV)}, {v(T+2)}, 4, {v(vAV)}")
    A(f"v_bfe_u32 {v(T+2)}, v0, 1, 1")
    A(f"v_lshl_add_u32 {v(vAV)}, {v(T+2)}, 3, {v(vAV)}")
    A(f"v_and_b32 {v(T+2)}, 7, v0")
    A(f"v_mov_b32 {v(T+3)}, 0x3f803f80")
    A(f"v_cmp_eq_u32 vcc, 0, {v(T+2)}")
    A("s_nop 1")
    A(f"v_cndmask_b32 {v(ONES)}, 0, {v(T+3)}, vcc")
    A(f"v_cndmask_b32 {v(ONES+1)}, 0, {v(T+3)}, vcc")
    A(f"v_cmp_eq_u32 vcc, 4, {v(T+2)}")
    A("s_nop 1")
    A(f"v_cndmask_b32 {v(ONES+2)}, 0, {v(T+3)}, vcc")
    A(f"v_cndmask_b32 {v(ONES+3)}, 0, {v(T+3)}, vcc")
    for r in range(O, RS + 16): A(f"v_mov_b32 {v(r)}, 0")
    A("s_waitcnt lgkmcnt(0)")
    A(f"s_and_b32 {s(sT0)}, {s(sHEAD)}, 1")
    A(f"s_lshl_b32 {s(sT0)}, {s(sT0)}, 4")
    A(f"s_lshr_b32 {s(sTS)}, {s(sTS)}, {s(sT0)}")
    A(f"s_lshl_b32 {s(sTS)}, {s(sTS)}, 16")
    A(f"s_and_b32 {s(sT0)}, {s(sTS)}, 0x7fffffff")
    A(f"v_mov_b32 {v(T)}, {hex(f2u(LOG2E))}")
    A(f"v_mul_f32 {v(T)}, {s(sTS)}, {v(T)}")
    A("s_nop 0")
    A(f"v_readfirstlane_b32 {s(sTS)}, {v(T)}")
    A(f"s_cmp_gt_u32 {s(sT0)}, {hex(f2u(opt.thresh))}")
    A("s_cbranch_scc1 L_slow")
    A(stamp("t"))
    A("s_waitcnt vmcnt(16)")
    A(stamp("K0Q0"))
    h, sc = norm_pair(KR, Q, False, True, T)
    E(h); E(sc[0])
    A(f"ds_write_b128 {v(vKW)}, {v(KR,4)}")
    A(f"ds_write_b128 {v(vKW)}, {v(KR+4,4)} offset:1024")
    A(f"buffer_store_dwordx4 {v(KR,4)}, {v(vLIN)}, {s(SW,4)}, {s(sBASE)} offen sc1")
    A(f"buffer_store_dwordx4 {v(KR+4,4)}, {v(vLIN)}, {s(SW,4)}, {s(sBASE)} offen offset:1024 sc1")
    E(sc[1])
    A("s_waitcnt vmcnt(14)")
    A(stamp("Q12"))
    h, sc = norm_pair(Q + 8, Q + 16, True, True, T)
    E(h); E(sc[0])
    A("s_waitcnt vmcnt(10) lgkmcnt(0)")
    A("s_barrier")
    A(stamp("B0"))
    A(k_read(0, 0)); A(k_read(0, 1))
    for m in range(2):
        for t in range(2): A(v_read(0, m, t))
    E(sc[1])
    h, sc = norm_pair(Q + 24, None, True, False, T)
    E(h)
    A("s_waitcnt lgkmcnt(0)")
    m0 = mf_step(-1, opt)
    A(m0["q1"]); A(m0["q2"])
    E(sc[0])
    slots, valu = {}, {}
    def add(n, key, x): slots.setdefault((n, key), []).append(x)
    def strip(l): return [x for x in l]
    def vdma(n, stage_slot, half):
        if half == 0:
            add(n, "q1", f"s_add_u32 {s(sVOFF)}, {s(sVOFF)}, 8192")
            add(n, "q2", f"s_and_b32 {s(sVOFF)}, {s(sVOFF)}, 0x1ffff")
            add(n, "p1", f"s_add_u32 m0, {s(sWL)}, {32768+stage_slot*8192}")
        add(n, "r1", f"buffer_load_dwordx4 {v(vLIN)}, {s(SV,4)}, {s(sVOFF)} offen offset:{1024*half} lds")
    def kdma(n, stage_slot, half, key="r1"):
        if half == 0:
            add(n, "q1", f"s_add_u32 {s(sKOFF)}, {s(sKOFF)}, 8192")
            add(n, "q2", f"s_and_b32 {s(sKOFF)}, {s(sKOFF)}, 0x1ffff")
            add(n, "p1", f"s_add_u32 m0, {s(sWL)}, {stage_slot*8192}")
        add(n, key, f"buffer_load_dwordx4 {v(vLIN)}, {s(SW,4)}, {s(sKOFF)} offen offset:{1024*half}{ksc} lds")
    def kpub(n, t, so):
        add(n, "r1", f"ds_write_b128 {v(vKW)}, {v(KR+8*t,4)} offset:{8192*t}")
        add(n, "r2", f"ds_write_b128 {v(vKW)}, {v(KR+8*t+4,4)} offset:{8192*t+1024}")
        add(n, "p1", f"buffer_store_dwordx4 {v(KR+8*t,4)}, {v(vLIN)}, {s(SW,4)}, {so} offen sc1")
        add(n, "q2", f"buffer_store_dwordx4 {v(KR+8*t+4,4)}, {v(vLIN)}, {s(SW,4)}, {so} offen offset:1024 sc1")
    std_slots(slots, 0, 16)
    add(1, "q1", "s_waitcnt vmcnt(8)")
    h, sc = norm_pair(KR + 8, None, False, False, T)
    valu[1] = h; valu[2] = sc[0][:16]; valu[3] = sc[0][16:]
    add(3, "q1", f"s_add_u32 {s(sT0)}, {s(sBASE)}, 8192")
    kpub(4, 1, s(sT0))
    add(5, "q1", "s_waitcnt vmcnt(6)")
    h, sc = norm_pair(KR + 16, KR + 24, False, False, T)
    valu[5] = h; valu[6] = sc[0][:16]; valu[7] = sc[0][16:]
    valu[9] = sc[1][:16]; valu[10] = sc[1][16:]
    kpub(8, 2, s(sT1))
    kpub(12, 3, s(sKOFF))
    add(13, "p1", "s_waitcnt vmcnt(8) lgkmcnt(0)"); add(13, "p1", "s_barrier")
    add(18, "q1", "s_waitcnt vmcnt(0)")
    add(18, "q2", "s_barrier")
    add(18, "p1", f"buffer_store_byte {v(vONE)}, {v(vFO)}, {s(SD,4)}, 0 offen sc1")
    vdma(20, 2, 0); add(20, "r2", f"buffer_load_dwordx4 {v(vLIN)}, {s(SV,4)}, {s(sVOFF)} offen offset:1024 lds")
    vdma(24, 3, 0); vdma(28, 3, 1)
    add(29, "p1", "s_waitcnt vmcnt(2)"); add(29, "p1", "s_barrier")
    vdma(32, 0, 0); vdma(36, 0, 1)
    add(43, "q1", f"s_load_dword {s(sFLAG)}, {s(sDBG,2)}, 0")
    add(45, "p1", "s_waitcnt vmcnt(2)"); add(45, "p1", "s_barrier")
    add(46, "q1", f"s_cmp_eq_u32 {s(sFLAG)}, {'0x02020202' if opt.force_help else '0x01010101'}")
    add(46, "q2", "s_cbranch_scc0 L_wait")
    add(46, "q2", "L_back:")
    kdma(48, 0, 0); kdma(48, 0, 1, "r2")
    vdma(52, 1, 0); add(52, "r2", f"buffer_load_dwordx4 {v(vLIN)}, {s(SV,4)}, {s(sVOFF)} offen offset:1024 lds")
    kdma(56, 1, 0); kdma(60, 1, 1)
    add(61, "p1", "s_waitcnt vmcnt(4)"); add(61, "p1", "s_barrier")
    add(62, "q1", f"s_mov_b32 {s(sCNT)}, 3")
    if opt.spin0:
        A("L_dspin0:")
        A("s_memrealtime s[100:101]")
        A("s_waitcnt lgkmcnt(0)")
        A("s_sub_u32 s100, s100, s98")
        A(f"s_cmp_lt_u32 s100, {opt.spin0}")
        A("s_cbranch_scc1 L_dspin0")
    A(stamp("step0"))
    for nn in (2, 6, 14, 19, 30, 47, 62): add(nn, "p1", stamp(f"step{nn}"))
    E(emit_steps(0, 64, opt, slots, valu, skip={(0, "p1"), (0, "r1"), (0, "p2"), (0, "r2")}))
    slots, valu = {}, {}
    std_slots(slots, 16, 32)
    for st in range(4):
        n = 64 + 16 * st
        vdma(n, (st + 2) % 4, 0); vdma(n + 4, (st + 2) % 4, 1)
        kdma(n + 8, (st + 2) % 4, 0); kdma(n + 12, (st + 2) % 4, 1)
        add(n + 13, "p1", "s_waitcnt vmcnt(4)"); add(n + 13, "p1", "s_barrier")
    add(127, "q1", f"s_sub_u32 {s(sCNT)}, {s(sCNT)}, 1")
    add(127, "q2", f"s_cmp_lg_u32 {s(sCNT)}, 0")
    A(".p2align 6")
    A("L_loop:")
    E(emit_steps(64, 128, opt, slots, valu))
    A("s_cbranch_scc1 L_loop")
    m = mf_step(256, opt)
    A(stamp("loopend"))
    A(f"s_add_u32 {s(sT0)}, {s(sQOFF)}, 4096")
    A("s_nop 0")
    A(m["p1"]); A(m["r1"]); A(m["p2"]); A(m["r2"])
    for i in range(4):
        E(epilogue_tile(i, T + 2 * i, O + 16 * i, RS + 4 * i, s(sQOFF) if i < 2 else s(sT0), opt.osc.replace('_',' ')))
    if opt.stamps:
        A(stamp("stored"))
        A("s_waitcnt vmcnt(0)")
        A(stamp("done"))
        A("s_waitcnt lgkmcnt(0)")
        for i in range(len(STAMP_NAMES)): A(f"v_writelane_b32 {v(T)}, {s(62+2*i)}, {i}")
        A(f"s_lshl_b32 {s(sT0)}, s2, 2")
        A(f"s_add_u32 {s(sT0)}, {s(sT0)}, {s(sW)}")
        A(f"s_lshl_b32 {s(sT0)}, {s(sT0)}, 8")
        A(f"s_add_u32 {s(sT0)}, {s(sT0)}, 0x8000000")
        A(f"v_lshlrev_b32 {v(T+1)}, 2, v0")
        A(f"v_add_u32 {v(T+1)}, {s(sT0)}, {v(T+1)}")
        A(f"global_store_dword {v(T+1)}, {v(T)}, {s(sARG+12,2)}")
        A(f"s_lshl_b32 {s(sT0)}, s2, 2")
        A(f"s_add_u32 {s(sT0)}, {s(sT0)}, {s(sW)}")
        A(f"s_cmp_lg_u32 {s(sT0)}, 148")
        A("s_cbranch_scc1 L_end")
        A(f"v_subrev_u32 {v(T)}, s62, {v(T)}")
        A(f"v_lshlrev_b32 {v(T+1)}, 2, v0")
        A(f"v_subrev_u32 {v(T+1)}, 4, {v(T+1)}")
        A(f"s_mov_b32 {s(SD+2)}, 64")
        A(f"buffer_store_dword {v(T)}, {v(T+1)}, {s(SD,4)}, 0 offen")
    if opt.spin:
        A("L_dspin:")
        A("s_memrealtime s[100:101]")
        A("s_waitcnt lgkmcnt(0)")
        A("s_sub_u32 s100, s100, s98")
        A(f"s_cmp_lt_u32 s100, {opt.spin}")
        A("s_cbranch_scc1 L_dspin")
    A("L_end:")
    A("s_endpgm")
    A("L_wait:")
    A(f"s_mov_b32 {s(sCNT2)}, {1 if opt.force_help else 64}")
    A(f"v_mov_b32 {v(T+6)}, 0")
    A("L_spin:")
    A(f"global_load_dword {v(T)}, {v(T+6)}, {s(sDBG,2)} sc1")
    A("s_waitcnt vmcnt(0)")
    A(f"v_readfirstlane_b32 {s(sFLAG)}, {v(T)}")
    A("s_nop 3")
    A(f"s_cmp_eq_u32 {s(sFLAG)}, {'0x02020202' if opt.force_help else '0x01010101'}")
    A("s_cbranch_scc1 L_back")
    A(f"s_sub_u32 {s(sCNT2)}, {s(sCNT2)}, 1")
    A(f"s_cmp_lg_u32 {s(sCNT2)}, 0")
    A("s_cbranch_scc1 L_spin")
    A(f"s_mov_b32 {s(sCNT2)}, 12")
    A(f"s_mov_b32 {s(sT0)}, {s(sKOFF)}")
    A("L_help:")
    A(f"s_add_u32 {s(sT0)}, {s(sT0)}, 8192")
    A(f"s_and_b32 {s(sT0)}, {s(sT0)}, 0x1ffff")
    A(f"buffer_load_dwordx4 {v(KR,4)}, {v(vOFF)}, {s(SK,4)}, {s(sT0)} offen")
    A(f"buffer_load_dwordx4 {v(KR+4,4)}, {v(vOFF)}, {s(SK,4)}, {s(sT0)} offen offset:16")
    A("s_waitcnt vmcnt(0)")
    h, sc = norm_pair(KR, None, False, False, T)
    E(h); E(sc[0])
    A(f"buffer_store_dwordx4 {v(KR,4)}, {v(vLIN)}, {s(SW,4)}, {s(sT0)} offen sc1")
    A(f"buffer_store_dwordx4 {v(KR+4,4)}, {v(vLIN)}, {s(SW,4)}, {s(sT0)} offen offset:1024 sc1")
    A("s_waitcnt vmcnt(0)")
    A(f"s_sub_u32 {s(sCNT2)}, {s(sCNT2)}, 1")
    A(f"s_cmp_lg_u32 {s(sCNT2)}, 0")
    A("s_cbranch_scc1 L_help")
    A("s_branch L_back")
    A("L_slow:")
    A("s_waitcnt vmcnt(0)")
    h, sc = norm_pair(Q, Q + 8, True, True, T); E(h); E(sc[0]); E(sc[1])
    h, sc = norm_pair(Q + 16, Q + 24, True, True, T); E(h); E(sc[0]); E(sc[1])
    MX = T + 8
    for i in range(4): A(f"v_mov_b32 {v(MX+i)}, 0xff800000")
    A(f"v_add_u32 {v(vAV)}, {s(sWL)}, {v(vAV)}")
    A(f"s_add_u32 m0, {s(sWL)}, 32768")
    A(f"s_mov_b32 {s(sKOFF)}, 0")
    A("L_slow_kv:")
    A(f"buffer_load_dwordx4 {v(KR,4)}, {v(vOFF)}, {s(SK,4)}, {s(sKOFF)} offen")
    A(f"buffer_load_dwordx4 {v(KR+4,4)}, {v(vOFF)}, {s(SK,4)}, {s(sKOFF)} offen offset:16")
    A(f"buffer_load_dwordx4 {v(vLIN)}, {s(SV,4)}, {s(sKOFF)} offen lds")
    A(f"buffer_load_dwordx4 {v(vLIN)}, {s(SV,4)}, {s(sKOFF)} offen offset:1024 lds")
    A("s_waitcnt vmcnt(0)")
    for m_ in range(2):
        for t in range(2): A(v_read(0, m_, t))
    h, sc = norm_pair(KR, None, False, False, T); E(h); E(sc[0])
    A("s_waitcnt lgkmcnt(0)")
    A("s_nop 1")
    for i in range(4):
        A(f"v_mfma_f32_32x32x16_bf16 {v(SB+16*i,16)}, {v(KR,4)}, {v(Q+8*i,4)}, 0")
        A(f"v_mfma_f32_32x32x16_bf16 {v(SB+16*i,16)}, {v(KR+4,4)}, {v(Q+8*i+4,4)}, {v(SB+16*i,16)}")
    A("s_nop 15")
    for i in range(4):
        sb = SB + 16 * i
        A(f"v_max3_f32 {v(T)}, {v(sb)}, {v(sb+1)}, {v(MX+i)}")
        for r in range(2, 16, 2): A(f"v_max3_f32 {v(T)}, {v(sb+r)}, {v(sb+r+1)}, {v(T)}")
        A(f"v_mov_b32 {v(T+1)}, {v(T)}")
        A("s_nop 1")
        A(f"v_permlane32_swap_b32 {v(T)}, {v(T+1)}")
        A("s_nop 0")
        A(f"v_max_f32 {v(T)}, {v(T)}, {v(T+1)}")
        A(f"v_sub_f32 {v(T+2)}, {v(MX+i)}, {v(T)}")
        A(f"v_exp_f32 {v(T+2)}, {v(T+2)}")
        A(f"v_mov_b32 {v(MX+i)}, {v(T)}")
        for r in range(16): A(f"v_sub_f32 {v(sb+r)}, {v(sb+r)}, {v(T)}")
        for r in range(16): A(f"v_exp_f32 {v(sb+r)}, {v(sb+r)}")
        for r in range(16): A(f"v_mul_f32 {v(O+16*i+r)}, {v(O+16*i+r)}, {v(T+2)}")
        A(f"v_mul_f32 {v(RS+4*i)}, {v(RS+4*i)}, {v(T+2)}")
        A("s_nop 1")
        A(f"v_smfmac_f32_32x32x32_bf16 {v(O+16*i,16)}, {a(aV,4)}, {v(sb,8)}, {v(vIDX)}")
        A(f"v_smfmac_f32_16x16x64_bf16 {v(RS+4*i,4)}, {v(ONES,4)}, {v(sb,8)}, {v(vIDX)}")
        A(f"v_smfmac_f32_32x32x32_bf16 {v(O+16*i,16)}, {a(aV+4,4)}, {v(sb+8,8)}, {v(vIDX)}")
        A(f"v_smfmac_f32_16x16x64_bf16 {v(RS+4*i,4)}, {v(ONES,4)}, {v(sb+8,8)}, {v(vIDX)}")
    A("s_nop 15")
    A(f"s_add_u32 {s(sKOFF)}, {s(sKOFF)}, 2048")
    A(f"s_cmp_lt_u32 {s(sKOFF)}, 0x20000")
    A("s_cbranch_scc1 L_slow_kv")
    A(f"s_add_u32 {s(sT0)}, {s(sQOFF)}, 4096")
    for i in range(4):
        E(epilogue_tile(i, T + 2 * (i % 2), O + 16 * i, RS + 4 * i, s(sQOFF) if i < 2 else s(sT0)))
    A("s_endpgm")
    return L

HEAD = open("standalone__qk_norm__prompt.s.ref").read().split("; Override launch")[0]

def render(opt):
    body = gen(opt)
    o = HEAD
    o += "; Override launch geometry by editing the next line (default: block=256,\n"
    o += "; @launch grid=(256,1,1) block=(256,1,1) lds=65536\n"
    o += f""".amdgcn_target "amdgcn-amd-amdhsa--gfx950"
.text
.globl {NAME}_kernel
.p2align 8
.type {NAME}_kernel,@function
{NAME}_kernel:
"""
    for x in body:
        o += (x if x.endswith(":") or x.startswith(".") else "    " + x) + "\n"
    o += f""".section .rodata,"a"
.p2align 6
.amdhsa_kernel {NAME}_kernel
  .amdhsa_next_free_vgpr {NV+NA}
  .amdhsa_next_free_sgpr 102
  .amdhsa_accum_offset {NV}
  .amdhsa_group_segment_fixed_size 0
  .amdhsa_kernarg_size 56
  .amdhsa_user_sgpr_count 2
  .amdhsa_user_sgpr_kernarg_segment_ptr 1
  .amdhsa_system_sgpr_workgroup_id_x 1
.end_amdhsa_kernel
"""
    return o

if __name__ == "__main__":
    opt = Opt()
    out = sys.argv[1]
    for kv in sys.argv[2:]:
        k, val = kv.split("=")
        cur = getattr(opt, k)
        setattr(opt, k, type(cur)(val) if not isinstance(cur, bool) else val in ("1", "True"))
    open(out, "w").write(render(opt))
    if opt.stamps: open(out + ".stamps", "w").write(" ".join(STAMP_NAMES))
```

```python
import sys, struct
NAME = "standalone__qk_norm__prompt"

def f2u(x): return struct.unpack("<I", struct.pack("<f", x))[0]
LOG2E = 1.4426950408889634

class Opt:
    thresh = 16.0
    cinit = "4.0"
    force_help = False
    stamps = False
    ksc1 = True
    l2pf = True
    spin = 0
    spin0 = 0
    stepstamps = "6,14,30,47,58"

SQ, SK, SV, SO, SW, SD = 4, 8, 12, 16, 20, 24
sW, sJ, sHEAD, sTS = 28, 29, 30, 31
sBASE, sVOFF, sKOFF, sCNT = 32, 33, 34, 35
sARG = 36
sT0, sT1, sT2, sT3 = 50, 51, 52, 53
sFLAG = 54
sWL = 55
sQOFF = 56
sQOF2 = 57
sB1, sB2 = 58, 59
sCNT2 = 60
sEPS = 61
vQL, vLIN, vAV, vKW, vIDX, vFO, vONE, vKL, vAK0, vAK1, vOO, vFL = 1, 2, 3, 4, 5, 6, 7, 8, 9, 10, 11, 12
vFR = 13
Q = 16
O = 48
RS = 112
SB = 128
KR = 192
ONES = 224
T = 228
NV = 244
aK = 0
aV = 16
NA = 32

def v(a, n=1): return f"v{a}" if n == 1 else f"v[{a}:{a+n-1}]"
def a(x, n=1): return f"a{x}" if n == 1 else f"a[{x}:{x+n-1}]"
def s(x, n=1): return f"s{x}" if n == 1 else f"s[{x}:{x+n-1}]"

def scale_tile(t, r, u):
    l = []
    for i in range(8):
        w = u + 2 * (i % 2)
        l += [f"v_lshlrev_b32 {v(w)}, 16, {v(t+i)}",
              f"v_and_b32 {v(w+1)}, 0xffff0000, {v(t+i)}",
              f"v_pk_mul_f32 {v(w,2)}, {v(w,2)}, {v(r,2)} op_sel_hi:[1,0]",
              f"v_cvt_pk_bf16_f32 {v(t+i)}, {v(w)}, {v(w+1)}"]
    return l

def norm_head(t, mode, isq, tmp):
    x, y = tmp, tmp + 1
    o = [f"v_dot2_f32_bf16 {v(x)}, {v(t+i)}, {v(t+i)}, {'0' if i==0 else v(x)}" for i in range(8)]
    o.append("s_nop 2")
    if mode == "swap":
        o += [f"v_mov_b32 {v(y)}, {v(x)}", "s_nop 1", f"v_permlane32_swap_b32 {v(x)}, {v(y)}", "s_nop 0",
              f"v_add_f32 {v(x)}, {v(x)}, {v(y)}"]
    else:
        o.append(f"v_add_f32_dpp {v(x)}, {v(x)}, {v(x)} quad_perm:[1,0,3,2] row_mask:0xf bank_mask:0xf")
    o += [f"v_sqrt_f32 {v(x)}, {v(x)}", "s_nop 0", f"v_add_f32 {v(x)}, {s(sEPS)}, {v(x)}", f"v_rcp_f32 {v(x)}, {v(x)}"]
    if isq: o += ["s_nop 0", f"v_mul_f32 {v(x)}, {s(sTS)}, {v(x)}"]
    return o

def norm_tile(t, mode, isq, tmp):
    return norm_head(t, mode, isq, tmp) + scale_tile(t, tmp, tmp + 2)

def fill_nops(seq, filler):
    out = []
    for x in seq:
        if x.startswith("s_nop"):
            need = int(x.split()[1]) + 1
            while need and filler:
                out.append(filler.pop(0)); need -= 1
            if need: out.append(f"s_nop {need-1}")
        else:
            out.append(x)
    return out

def epi_valu(tmp, oreg, rsreg):
    o = [f"v_rcp_f32 {v(tmp)}, {v(rsreg)}", "s_nop 0"]
    for r in range(0, 16, 2):
        o.append(f"v_pk_mul_f32 {v(oreg+r,2)}, {v(oreg+r,2)}, {v(tmp,2)} op_sel_hi:[1,0]")
    for r in range(8):
        o.append(f"v_cvt_pk_bf16_f32 {v(oreg+r)}, {v(oreg+2*r)}, {v(oreg+2*r+1)}")
    return o
def epi_store(i, oreg):
    so = s(sQOFF) if i < 2 else s(sQOF2)
    return [f"buffer_store_dwordx4 {v(oreg,4)}, {v(vOO)}, {s(SO,4)}, {so} offen offset:{(i%2)*2048}",
            f"buffer_store_dwordx4 {v(oreg+4,4)}, {v(vOO)}, {s(SO,4)}, {so} offen offset:{(i%2)*2048+16}"]

def mf_step(n, opt):
    n1, n0 = n + 1, n - 1
    j1, i1 = n1 // 4, n1 % 4
    j0, i0 = n0 // 4, n0 % 4
    nxt, prv = SB + 16 * (n1 % 4), SB + 16 * (n0 % 4)
    kf, vf = aK + 8 * (j1 % 2), aV + 8 * (j0 % 2)
    return {
        "q1": f"v_mfma_f32_32x32x16_bf16 {v(nxt,16)}, {a(kf,4)}, {v(Q+8*i1,4)}, {opt.cinit}",
        "q2": f"v_mfma_f32_32x32x16_bf16 {v(nxt,16)}, {a(kf+4,4)}, {v(Q+8*i1+4,4)}, {v(nxt,16)}",
        "p1": f"v_smfmac_f32_32x32x32_bf16 {v(O+16*i0,16)}, {a(vf,4)}, {v(prv,8)}, {v(vIDX)}",
        "r1": f"v_smfmac_f32_16x16x64_bf16 {v(RS+4*i0,4)}, {v(ONES,4)}, {v(prv,8)}, {v(vIDX)}",
        "p2": f"v_smfmac_f32_32x32x32_bf16 {v(O+16*i0,16)}, {a(vf+4,4)}, {v(prv+8,8)}, {v(vIDX)}",
        "r2": f"v_smfmac_f32_16x16x64_bf16 {v(RS+4*i0,4)}, {v(ONES,4)}, {v(prv+8,8)}, {v(vIDX)}"}

ORDER = ["q1", "q2", "p1", "r1", "p2", "r2"]
PAT = [4, 4, 3, 1, 3, 1]

def k_read(jj, f):
    return f"ds_read_b128 {a(aK+8*(jj%2)+4*f,4)}, {v(vAK0+f)} offset:{(jj%16)*2048}"
def v_read(jj, m, t):
    return f"ds_read_b64_tr_b16 {a(aV+8*(jj%2)+4*m+2*t,2)}, {v(vAV)} offset:{32768+(jj%16)*2048+1024*m+256*t}"
def exps(n):
    cur = SB + 16 * (n % 4)
    return [f"v_exp_f32 {v(cur+e)}, {v(cur+e)}" for e in range(16)]

def emit_steps(n_lo, n_hi, opt, slots, blocks, skip=()):
    out = []
    for n in range(n_lo, n_hi):
        m = mf_step(n, opt)
        ex = exps(n)
        k = 0
        for key, c in zip(ORDER, PAT):
            out += blocks.get((n, key), [])
            if (n, key) not in skip: out.append(m[key])
            out += slots.get((n, key), [])
            out += ex[k:k+c]
            k += c
    return out

def std_slots(slots, jj_lo, jj_hi):
    def add(n, key, x): slots.setdefault((n, key), []).append(x)
    for jj in range(jj_lo, jj_hi):
        n = 4 * jj
        add(n+1, "q2", "s_waitcnt lgkmcnt(0)")
        if jj == 63: continue
        add(n+1, "r1", k_read(jj+1, 0)); add(n+1, "r2", k_read(jj+1, 1))
        add(n+2, "r1", v_read(jj+1, 0, 0))
        add(n+2, "p2", "s_waitcnt lgkmcnt(1)")
        add(n+2, "r2", v_read(jj+1, 0, 1))
        add(n+3, "r1", v_read(jj+1, 1, 0)); add(n+3, "r2", v_read(jj+1, 1, 1))

STAMP_NAMES = []
def gen(opt):
    L = []
    A = L.append
    def E(x): L.extend(x)
    STAMP_NAMES.clear()
    def stamp(name):
        if not opt.stamps: return "; stamp " + name
        i = len(STAMP_NAMES); STAMP_NAMES.append(name)
        assert i < 18
        return f"s_memrealtime {s(62+2*i,2)}"
    def dspin(lbl, ticks):
        E([f"{lbl}:", "s_memrealtime s[100:101]", "s_waitcnt lgkmcnt(0)", "s_sub_u32 s100, s100, s98",
           f"s_cmp_lt_u32 s100, {ticks}", f"s_cbranch_scc1 {lbl}"])
    ksc = " sc1" if opt.ksc1 else ""
    FLAGOK = '0x02020202' if opt.force_help else '0x01010101'
    def kload(t, so):
        return [f"buffer_load_dwordx4 {v(KR+8*t,4)}, {v(vKL)}, {s(SK,4)}, {so} offen",
                f"buffer_load_dwordx4 {v(KR+8*t+4,4)}, {v(vKL)}, {s(SK,4)}, {so} offen offset:16"]
    def qload(i):
        so = s(sQOFF) if i < 2 else s(sQOF2)
        return [f"buffer_load_dwordx4 {v(Q+8*i,4)}, {v(vQL)}, {s(SQ,4)}, {so} offen offset:{(i%2)*2048}",
                f"buffer_load_dwordx4 {v(Q+8*i+4,4)}, {v(vQL)}, {s(SQ,4)}, {so} offen offset:{(i%2)*2048+32}"]
    def vdma2(so):
        return [f"buffer_load_dwordx4 {v(vLIN)}, {s(SV,4)}, {so} offen lds",
                f"buffer_load_dwordx4 {v(vLIN)}, {s(SV,4)}, {so} offen offset:1024 lds"]
    def kwrite(t):
        return [f"ds_write_b128 {v(vKW)}, {v(KR+8*t,4)} offset:{8192*t}",
                f"ds_write_b128 {v(vKW)}, {v(KR+8*t+4,4)} offset:{8192*t+1024}"]
    def kstore(t, so):
        return [f"buffer_store_dwordx4 {v(KR+8*t,4)}, {v(vLIN)}, {s(SW,4)}, {so} offen sc1",
                f"buffer_store_dwordx4 {v(KR+8*t+4,4)}, {v(vLIN)}, {s(SW,4)}, {so} offen offset:1024 sc1"]
    A("s_cmp_ge_u32 s2, 256")
    A("s_cbranch_scc1 L_end")
    A(stamp("entry"))
    if opt.spin or opt.spin0: A("s_memrealtime s[98:99]")
    A(f"s_load_dwordx8 {s(sARG,8)}, s[0:1], 0")
    A(f"s_load_dwordx4 {s(sARG+8,4)}, s[0:1], 32")
    A(f"s_load_dwordx2 {s(sARG+12,2)}, s[0:1], 48")
    A(f"v_lshrrev_b32 {v(T)}, 6, v0")
    A(f"v_and_b32 v0, 63, v0")
    A(f"v_readfirstlane_b32 {s(sW)}, {v(T)}")
    npf = 0
    if opt.l2pf:
        A(f"s_getpc_b64 {s(sT0,2)}")
        A(f"v_lshlrev_b32 {v(T+2)}, 7, v0")
        A(f"v_lshl_add_u32 {v(T+2)}, {v(T)}, 13, {v(T+2)}")
        A(f"v_min_u32 {v(T+2)}, L_code_end-L_pc0-4, {v(T+2)}")
        A(f"v_mov_b32 {v(T+3)}, {s(sT1)}")
        A(f"v_add_co_u32 {v(T+2)}, vcc, {s(sT0)}, {v(T+2)}")
        A("s_nop 1")
        A(f"v_addc_co_u32 {v(T+3)}, vcc, 0, {v(T+3)}, vcc")
        A(f"global_load_dword {v(vFR)}, {v(T+2,2)}, off")
        idx = L.index(f"s_getpc_b64 {s(sT0,2)}"); L.insert(idx + 1, "L_pc0:")
        npf = 1
    A(f"s_and_b32 {s(sT0)}, s2, 7")
    A(f"s_lshr_b32 {s(sT1)}, s2, 3")
    A(f"s_and_b32 {s(sJ)}, {s(sT1)}, 3")
    A(f"s_lshr_b32 {s(sT1)}, {s(sT1)}, 2")
    A(f"s_lshl_b32 {s(sT0)}, {s(sT0)}, 3")
    A(f"s_add_u32 {s(sHEAD)}, {s(sT0)}, {s(sT1)}")
    A(f"s_lshl_b32 {s(sT2)}, {s(sHEAD)}, 17")
    A(f"s_lshl_b32 {s(sWL)}, {s(sW)}, 11")
    A(f"s_lshl_b32 {s(sBASE)}, {s(sJ)}, 15")
    A(f"s_lshl_b32 {s(sQOFF)}, {s(sW)}, 13")
    A(f"s_add_u32 {s(sQOFF)}, {s(sQOFF)}, {s(sBASE)}")
    A(f"s_add_u32 {s(sQOF2)}, {s(sQOFF)}, 4096")
    A(f"s_add_u32 {s(sBASE)}, {s(sBASE)}, {s(sWL)}")
    A(f"s_and_b32 {s(sT3)}, {s(sHEAD)}, 30")
    A(f"s_lshl_b32 {s(sT3)}, {s(sT3)}, 1")
    A(f"s_add_u32 m0, {s(sWL)}, 32768")
    A(f"v_and_b32 {v(T)}, 31, v0")
    A(f"v_lshrrev_b32 {v(T+1)}, 5, v0")
    A(f"v_lshlrev_b32 {v(vOO)}, 6, {v(T)}")
    A(f"v_lshl_add_u32 {v(vQL)}, {v(T+1)}, 4, {v(vOO)}")
    A(f"v_bfe_u32 {v(T+2)}, v0, 4, 1")
    A(f"v_xor_b32 {v(T+2)}, {v(T+2)}, v0")
    A(f"v_lshlrev_b32 {v(vKL)}, 5, {v(T+2)}")
    A(f"v_lshlrev_b32 {v(vLIN)}, 4, v0")
    for srd in (SK, SQ, SV):
        A(f"s_mov_b32 {s(srd+2)}, 0x20000")
        A(f"s_mov_b32 {s(srd+3)}, 0x20000")
    A("s_waitcnt lgkmcnt(0)")
    A(stamp("kernarg"))
    A(f"s_add_u32 {s(SK)}, {s(sARG+2)}, {s(sT2)}")
    A(f"s_addc_u32 {s(SK+1)}, {s(sARG+3)}, 0")
    E(kload(0, s(sBASE)))
    A(f"s_add_u32 {s(SQ)}, {s(sARG)}, {s(sT2)}")
    A(f"s_addc_u32 {s(SQ+1)}, {s(sARG+1)}, 0")
    E(qload(0)); E(qload(1))
    A(f"s_load_dword {s(sTS)}, {s(sARG+6,2)}, {s(sT3)}")
    A(f"s_add_u32 {s(SV)}, {s(sARG+4)}, {s(sT2)}")
    A(f"s_addc_u32 {s(SV+1)}, {s(sARG+5)}, 0")
    E(vdma2(s(sBASE)))
    E(qload(2)); E(qload(3))
    A(stamp("issued"))
    for srd, arg in ((SO, 8), (SW, 12)):
        A(f"s_add_u32 {s(srd)}, {s(sARG+arg)}, {s(sT2)}")
        A(f"s_addc_u32 {s(srd+1)}, {s(sARG+arg+1)}, 0")
        A(f"s_mov_b32 {s(srd+2)}, 0x20000")
        A(f"s_mov_b32 {s(srd+3)}, 0x20000")
    A(f"s_mov_b32 {s(SD)}, {s(sARG+10)}")
    A(f"s_mov_b32 {s(SD+1)}, {s(sARG+11)}")
    A(f"s_mov_b32 {s(SD+2)}, 256")
    A(f"s_mov_b32 {s(SD+3)}, 0x20000")
    A(f"s_mov_b32 {s(sEPS)}, {hex(f2u(1e-6))}")
    A(f"s_add_u32 {s(sB1)}, {s(sBASE)}, 8192")
    A(f"s_add_u32 {s(sB2)}, {s(sBASE)}, 16384")
    A(f"s_add_u32 {s(sKOFF)}, {s(sBASE)}, 24576")
    A(f"s_mov_b32 {s(sVOFF)}, {s(sB2)}")
    A(f"s_lshl_b32 {s(sT2)}, {s(sHEAD)}, 2")
    A(f"v_lshl_add_u32 {v(vOO)}, {v(T+1)}, 5, {v(vOO)}")
    A(f"v_mov_b32 {v(vIDX)}, 0xdddddddd")
    A(f"v_mov_b32 {v(vONE)}, 1")
    A(f"v_add_u32 {v(vKW)}, {s(sWL)}, {v(vLIN)}")
    A(f"v_mov_b32 {v(vFL)}, {s(sT2)}")
    A(f"s_add_u32 {s(sT2)}, {s(sT2)}, {s(sJ)}")
    A(f"v_lshlrev_b32 {v(vFO)}, 4, {v(vKW)}")
    A(f"v_add_u32 {v(vFO)}, {s(sT2)}, {v(vFO)}")
    A(f"v_bfe_u32 {v(T+2)}, v0, 3, 1")
    A(f"v_lshl_add_u32 {v(T+2)}, {v(T)}, 1, {v(T+2)}")
    A(f"v_lshlrev_b32 {v(T+2)}, 4, {v(T+2)}")
    A(f"v_lshl_add_u32 {v(vAK0)}, {v(T+1)}, 10, {v(T+2)}")
    A(f"v_xor_b32 {v(vAK1)}, 16, {v(vAK0)}")
    A(f"v_bfe_u32 {v(T+2)}, v0, 2, 2")
    A(f"v_lshl_add_u32 {v(T+2)}, {v(T+1)}, 3, {v(T+2)}")
    A(f"v_lshlrev_b32 {v(vAV)}, 6, {v(T+2)}")
    A(f"v_and_b32 {v(T+2)}, 1, v0")
    A(f"v_lshl_add_u32 {v(vAV)}, {v(T+2)}, 5, {v(vAV)}")
    A(f"v_bfe_u32 {v(T+2)}, v0, 4, 1")
    A(f"v_lshl_add_u32 {v(vAV)}, {v(T+2)}, 4, {v(vAV)}")
    A(f"v_bfe_u32 {v(T+2)}, v0, 1, 1")
    A(f"v_lshl_add_u32 {v(vAV)}, {v(T+2)}, 3, {v(vAV)}")
    A(f"v_and_b32 {v(T+2)}, 7, v0")
    A(f"v_lshlrev_b32 {v(T+2)}, {v(T+2)}, {v(vONE)}")
    A(f"v_bfe_i32 {v(T+3)}, {v(T+2)}, 0, 1")
    A(f"v_and_b32 {v(ONES)}, 0x3f803f80, {v(T+3)}")
    A(f"v_and_b32 {v(ONES+1)}, 0x3f803f80, {v(T+3)}")
    A(f"v_bfe_i32 {v(T+3)}, {v(T+2)}, 4, 1")
    A(f"v_and_b32 {v(ONES+2)}, 0x3f803f80, {v(T+3)}")
    A(f"v_and_b32 {v(ONES+3)}, 0x3f803f80, {v(T+3)}")
    for r in range(O, RS + 16): A(f"v_mov_b32 {v(r)}, 0")
    A(stamp("init"))
    A("s_waitcnt lgkmcnt(0)")
    A(f"s_and_b32 {s(sT0)}, {s(sHEAD)}, 1")
    A(f"s_lshl_b32 {s(sT0)}, {s(sT0)}, 4")
    A(f"s_lshr_b32 {s(sTS)}, {s(sTS)}, {s(sT0)}")
    A(f"s_lshl_b32 {s(sTS)}, {s(sTS)}, 16")
    A(f"s_and_b32 {s(sT0)}, {s(sTS)}, 0x7fffffff")
    A(f"v_mov_b32 {v(T)}, {hex(f2u(LOG2E))}")
    A(f"v_mul_f32 {v(T)}, {s(sTS)}, {v(T)}")
    A(f"s_cmp_gt_u32 {s(sT0)}, {hex(f2u(opt.thresh))}")
    A(f"v_readfirstlane_b32 {s(sTS)}, {v(T)}")
    A("s_cbranch_scc1 L_slow")
    A(stamp("t"))
    A("s_waitcnt vmcnt(10)")
    A(stamp("K0"))
    E(norm_tile(KR, "dpp", False, T))
    E(kwrite(0))
    A("s_waitcnt vmcnt(8)")
    A(stamp("Q0"))
    E(norm_head(Q, "swap", True, T))
    A("s_waitcnt lgkmcnt(0)")
    A("s_barrier")
    A(k_read(0, 0)); A(k_read(0, 1))
    E(scale_tile(Q, T, T + 2))
    E(kload(1, s(sB1)))
    A("s_waitcnt vmcnt(8) lgkmcnt(0)")
    A(stamp("Q1"))
    m0 = mf_step(-1, opt)
    h = norm_head(Q + 8, "swap", True, T)
    E(h[:8]); A(m0["q1"]); E(h[8:]); A(m0["q2"])
    A(f"s_add_u32 m0, {s(sWL)}, {32768+8192}")
    E(kstore(0, s(sBASE)))
    E(vdma2(s(sB1)))
    E(scale_tile(Q + 8, T, T + 2))
    A("s_nop 1")
    if opt.spin0: dspin("L_dspin0", opt.spin0)
    A(stamp("step0"))
    slots, blocks = {}, {}
    def add(n, key, x): slots.setdefault((n, key), []).append(x)
    def blk(n, key, x): blocks.setdefault((n, key), []).extend(x)
    def vdma(n, slot):
        add(n, "q1", f"s_add_u32 {s(sVOFF)}, {s(sVOFF)}, 8192")
        add(n, "q2", f"s_and_b32 {s(sVOFF)}, {s(sVOFF)}, 0x1ffff")
        add(n, "p1", f"s_add_u32 m0, {s(sWL)}, {32768+slot*8192}")
        for x in vdma2(s(sVOFF)): add(n, "r1", x)
    def kdma(n, slot):
        add(n, "q1", f"s_add_u32 {s(sKOFF)}, {s(sKOFF)}, 8192")
        add(n, "q2", f"s_and_b32 {s(sKOFF)}, {s(sKOFF)}, 0x1ffff")
        add(n, "p1", f"s_add_u32 m0, {s(sWL)}, {slot*8192}")
        for h_ in range(2):
            add(n, "r1", f"buffer_load_dwordx4 {v(vLIN)}, {s(SW,4)}, {s(sKOFF)} offen offset:{1024*h_}{ksc} lds")
    def kpub(n, t, so):
        w = kwrite(t); st = kstore(t, so)
        add(n, "r1", w[0]); add(n, "r2", w[1]); add(n, "p1", st[0]); add(n, "p2", st[1])
    std_slots(slots, 0, 15)
    add(0, "q2", "s_waitcnt vmcnt(8)")
    blk(0, "p1", ["s_barrier"] + [v_read(0, m_, t_) for m_ in range(2) for t_ in range(2)] + norm_tile(Q + 16, "swap", True, T))
    add(1, "q1", "s_waitcnt vmcnt(6)")
    blk(1, "p1", norm_tile(Q + 24, "swap", True, T))
    for x in kload(2, s(sB2)): add(2, "p1", x)
    for x in kload(3, s(sKOFF)): add(3, "p1", x)
    add(3, "q1", "s_waitcnt vmcnt(6)")
    blk(3, "p1", norm_tile(KR + 8, "dpp", False, T))
    kpub(4, 1, s(sB1))
    add(5, "q1", f"s_add_u32 m0, {s(sWL)}, {32768+2*8192}")
    for x in vdma2(s(sB2)): add(5, "p1", x)
    add(7, "q1", "s_waitcnt vmcnt(6)")
    blk(7, "p1", norm_tile(KR + 16, "dpp", False, T))
    kpub(8, 2, s(sB2))
    add(10, "q1", "s_waitcnt vmcnt(6)")
    blk(11, "p1", norm_tile(KR + 24, "dpp", False, T))
    kpub(12, 3, s(sKOFF))
    add(13, "p1", "s_barrier")
    vdma(16, 3)
    add(20, "p1", "s_waitcnt vmcnt(2)")
    add(20, "p1", "s_barrier")
    add(20, "r1", f"buffer_store_byte {v(vONE)}, {v(vFO)}, {s(SD,4)}, 0 offen sc1")
    vdma(32, 0)
    add(40, "r1", f"buffer_load_dword {v(vFR)}, {v(vFL)}, {s(SD,4)}, 0 offen sc1")
    add(45, "p1", "s_waitcnt vmcnt(0)"); add(45, "p1", "s_barrier")
    blk(46, "q1", [f"v_readfirstlane_b32 {s(sFLAG)}, {v(vFR)}"])
    add(46, "q2", f"s_cmp_eq_u32 {s(sFLAG)}, {FLAGOK}")
    add(46, "p1", "s_cbranch_scc0 L_wait")
    add(46, "p1", "L_back:")
    kdma(48, 0); vdma(52, 1); kdma(56, 1)
    add(58, "q1", f"s_mov_b32 {s(sCNT)}, 3")
    for nn in opt.stepstamps.split(","): add(int(nn), "p2", stamp(f"step{nn}"))
    E(emit_steps(0, 60, opt, slots, blocks, skip={(0, "p1"), (0, "r1"), (0, "p2"), (0, "r2")}))
    slots, blocks = {}, {}
    std_slots(slots, 15, 31)
    for st in range(4):
        n = 64 + 16 * st
        add(n - 3, "p1", "s_waitcnt vmcnt(4)"); add(n - 3, "p1", "s_barrier")
        vdma(n, (st + 2) % 4); kdma(n + 8, (st + 2) % 4)
    add(123, "q1", f"s_sub_u32 {s(sCNT)}, {s(sCNT)}, 1")
    add(123, "q2", f"s_cmp_lg_u32 {s(sCNT)}, 0")
    A(".p2align 6")
    A("L_loop:")
    E(emit_steps(60, 124, opt, slots, blocks))
    A("s_cbranch_scc1 L_loop")
    A(stamp("loopend"))
    slots, blocks = {}, {}
    std_slots(slots, 63, 64)
    blk(254, "p1", ["s_nop 0"] + epi_valu(T, O, RS))
    st = epi_store(0, O); add(254, "p1", st[0]); add(254, "r1", st[1])
    E(emit_steps(252, 255, opt, slots, blocks))
    m = mf_step(255, opt); m2 = mf_step(256, opt); ex = exps(255)
    A("; ---- step 255")
    A(m["p1"]); E(ex[0:3]); A(m["r1"]); E(ex[3:4]); A(m["p2"]); E(ex[4:7]); A(m["r2"]); E(ex[7:10])
    E(epi_valu(T + 2, O + 16, RS + 4))
    st = epi_store(1, O + 16)
    A(m2["p1"]); A(st[0]); E(ex[10:13]); A(m2["r1"]); A(st[1]); E(ex[13:16])
    e2 = epi_valu(T + 4, O + 32, RS + 8)
    E(e2[:10])
    A(m2["r2"]); E(e2[10:12]); A(m2["p2"]); E(e2[12:])
    E(epi_store(2, O + 32))
    e3 = epi_valu(T + 6, O + 48, RS + 12)
    A(e3[0]); A("s_nop 3")
    E(e3[2:6]); E(e3[10:14])
    st = epi_store(3, O + 48)
    A(st[0])
    E(e3[6:10]); E(e3[14:18])
    A(st[1])
    if opt.stamps:
        A(stamp("stored"))
        A("s_waitcnt vmcnt(0)")
        A(stamp("done"))
        A("s_waitcnt lgkmcnt(0)")
        for i in range(len(STAMP_NAMES)): A(f"v_writelane_b32 {v(T)}, {s(62+2*i)}, {i}")
        A(f"s_lshl_b32 {s(sT0)}, s2, 2")
        A(f"s_add_u32 {s(sT0)}, {s(sT0)}, {s(sW)}")
        A(f"s_lshl_b32 {s(sT0)}, {s(sT0)}, 8")
        A(f"s_add_u32 {s(sT0)}, {s(sT0)}, 0x8000000")
        A(f"v_lshlrev_b32 {v(T+1)}, 2, v0")
        A(f"v_add_u32 {v(T+1)}, {s(sT0)}, {v(T+1)}")
        A(f"global_store_dword {v(T+1)}, {v(T)}, {s(sARG+12,2)}")
    if opt.spin: dspin("L_dspin", opt.spin)
    A("L_end:")
    A("s_endpgm")
    A("L_code_end:")
    A("L_wait:")
    A(f"s_mov_b32 {s(sCNT2)}, {1 if opt.force_help else 64}")
    A("L_spin:")
    A(f"buffer_load_dword {v(vFR)}, {v(vFL)}, {s(SD,4)}, 0 offen sc1")
    A("s_waitcnt vmcnt(0)")
    A(f"v_readfirstlane_b32 {s(sFLAG)}, {v(vFR)}")
    A("s_nop 3")
    A(f"s_cmp_eq_u32 {s(sFLAG)}, {FLAGOK}")
    A("s_cbranch_scc1 L_back")
    A(f"s_sub_u32 {s(sCNT2)}, {s(sCNT2)}, 1")
    A(f"s_cmp_lg_u32 {s(sCNT2)}, 0")
    A("s_cbranch_scc1 L_spin")
    A(f"s_mov_b32 {s(sCNT2)}, 12")
    A(f"s_mov_b32 {s(sT0)}, {s(sKOFF)}")
    A("L_help:")
    A(f"s_add_u32 {s(sT0)}, {s(sT0)}, 8192")
    A(f"s_and_b32 {s(sT0)}, {s(sT0)}, 0x1ffff")
    E(kload(0, s(sT0)))
    A("s_waitcnt vmcnt(0)")
    E(norm_tile(KR, "dpp", False, T))
    E(kstore(0, s(sT0)))
    A("s_waitcnt vmcnt(0)")
    A(f"s_sub_u32 {s(sCNT2)}, {s(sCNT2)}, 1")
    A(f"s_cmp_lg_u32 {s(sCNT2)}, 0")
    A("s_cbranch_scc1 L_help")
    A("s_branch L_back")
    A("L_slow:")
    A("s_waitcnt vmcnt(0)")
    for i in range(4): E(norm_tile(Q + 8 * i, "swap", True, T))
    MX = T + 8
    for i in range(4): A(f"v_mov_b32 {v(MX+i)}, 0xff800000")
    A(f"v_add_u32 {v(vAV)}, {s(sWL)}, {v(vAV)}")
    A(f"s_add_u32 m0, {s(sWL)}, 32768")
    A(f"s_mov_b32 {s(sKOFF)}, 0")
    A("L_slow_kv:")
    A(f"buffer_load_dwordx4 {v(KR,4)}, {v(vQL)}, {s(SK,4)}, {s(sKOFF)} offen")
    A(f"buffer_load_dwordx4 {v(KR+4,4)}, {v(vQL)}, {s(SK,4)}, {s(sKOFF)} offen offset:32")
    E(vdma2(s(sKOFF)))
    A("s_waitcnt vmcnt(0)")
    for m_ in range(2):
        for t in range(2): A(v_read(0, m_, t))
    E(norm_tile(KR, "swap", False, T))
    A("s_waitcnt lgkmcnt(0)")
    A("s_nop 1")
    for i in range(4):
        A(f"v_mfma_f32_32x32x16_bf16 {v(SB+16*i,16)}, {v(KR,4)}, {v(Q+8*i,4)}, 0")
        A(f"v_mfma_f32_32x32x16_bf16 {v(SB+16*i,16)}, {v(KR+4,4)}, {v(Q+8*i+4,4)}, {v(SB+16*i,16)}")
    A("s_nop 15")
    for i in range(4):
        sb = SB + 16 * i
        A(f"v_max3_f32 {v(T)}, {v(sb)}, {v(sb+1)}, {v(MX+i)}")
        for r in range(2, 16, 2): A(f"v_max3_f32 {v(T)}, {v(sb+r)}, {v(sb+r+1)}, {v(T)}")
        A(f"v_mov_b32 {v(T+1)}, {v(T)}")
        A("s_nop 1")
        A(f"v_permlane32_swap_b32 {v(T)}, {v(T+1)}")
        A("s_nop 0")
        A(f"v_max_f32 {v(T)}, {v(T)}, {v(T+1)}")
        A(f"v_sub_f32 {v(T+2)}, {v(MX+i)}, {v(T)}")
        A(f"v_exp_f32 {v(T+2)}, {v(T+2)}")
        A(f"v_mov_b32 {v(MX+i)}, {v(T)}")
        for r in range(16): A(f"v_sub_f32 {v(sb+r)}, {v(sb+r)}, {v(T)}")
        for r in range(16): A(f"v_exp_f32 {v(sb+r)}, {v(sb+r)}")
        for r in range(16): A(f"v_mul_f32 {v(O+16*i+r)}, {v(O+16*i+r)}, {v(T+2)}")
        A(f"v_mul_f32 {v(RS+4*i)}, {v(RS+4*i)}, {v(T+2)}")
        A("s_nop 1")
        A(f"v_smfmac_f32_32x32x32_bf16 {v(O+16*i,16)}, {a(aV,4)}, {v(sb,8)}, {v(vIDX)}")
        A(f"v_smfmac_f32_16x16x64_bf16 {v(RS+4*i,4)}, {v(ONES,4)}, {v(sb,8)}, {v(vIDX)}")
        A(f"v_smfmac_f32_32x32x32_bf16 {v(O+16*i,16)}, {a(aV+4,4)}, {v(sb+8,8)}, {v(vIDX)}")
        A(f"v_smfmac_f32_16x16x64_bf16 {v(RS+4*i,4)}, {v(ONES,4)}, {v(sb+8,8)}, {v(vIDX)}")
    A("s_nop 15")
    A(f"s_add_u32 {s(sKOFF)}, {s(sKOFF)}, 2048")
    A(f"s_cmp_lt_u32 {s(sKOFF)}, 0x20000")
    A("s_cbranch_scc1 L_slow_kv")
    for i in range(4):
        E(epi_valu(T + 2 * (i % 2), O + 16 * i, RS + 4 * i)); E(epi_store(i, O + 16 * i))
    A("s_endpgm")
    return L

HEAD = open("standalone__qk_norm__prompt.s.ref").read().split("; Override launch")[0]

def render(opt):
    body = gen(opt)
    o = HEAD
    o += "; Override launch geometry by editing the next line (default: block=256,\n"
    o += "; @launch grid=(256,1,1) block=(256,1,1) lds=65536\n"
    o += f""".amdgcn_target "amdgcn-amd-amdhsa--gfx950"
.text
.globl {NAME}_kernel
.p2align 8
.type {NAME}_kernel,@function
{NAME}_kernel:
"""
    for x in body:
        if x.startswith("; stamp"): continue
        o += (x if x.endswith(":") or x.startswith(".") else "    " + x) + "\n"
    o += f""".section .rodata,"a"
.p2align 6
.amdhsa_kernel {NAME}_kernel
  .amdhsa_next_free_vgpr {NV+NA}
  .amdhsa_next_free_sgpr 102
  .amdhsa_accum_offset {NV}
  .amdhsa_group_segment_fixed_size 0
  .amdhsa_kernarg_size 56
  .amdhsa_user_sgpr_count 2
  .amdhsa_user_sgpr_kernarg_segment_ptr 1
  .amdhsa_system_sgpr_workgroup_id_x 1
.end_amdhsa_kernel
"""
    return o

if __name__ == "__main__":
    opt = Opt()
    out = sys.argv[1]
    for kv in sys.argv[2:]:
        k, val = kv.split("=")
        cur = getattr(opt, k)
        setattr(opt, k, type(cur)(val) if not isinstance(cur, bool) else val in ("1", "True"))
    open(out, "w").write(render(opt))
    if opt.stamps: open(out + ".stamps", "w").write(" ".join(STAMP_NAMES))
```

```python
import sys, struct
NAME = "standalone__qk_norm__prompt"

def f2u(x): return struct.unpack("<I", struct.pack("<f", x))[0]
LOG2E = 1.4426950408889634

class Opt:
    thresh = 16.0
    cinit = "4.0"
    force_help = False
    stamps = 0
    ksc1 = True
    cyc = False
    l2pf = True
    pre_n = 30
    osc = 'nt'
    spin = 0
    spin0 = 0
    amp = -1
    ampstep = 2
    stepstamps = "2,6,14,22,30,38,54"

SQ, SK, SV, SO, SW, SD = 4, 8, 12, 16, 20, 24
sW, sJ, sHEAD, sTS = 28, 29, 30, 31
sBASE, sVOFF, sKOFF, sCNT = 32, 33, 34, 35
sARG = 36
sT0, sT1, sT2, sT3 = 50, 51, 52, 53
sFLAG = 54
sWL = 55
sQOFF = 56
sQOF2 = 57
sB1, sB2 = 58, 59
sCNT2 = 60
sEPS = 61
vQL, vLIN, vAV, vKW, vIDX, vFO, vONE, vKL, vAK0, vAK1, vOO, vFL = 1, 2, 3, 4, 5, 6, 7, 8, 9, 10, 11, 12
vFR = 13
vTS = 14
Q = 16
O = 48
RS = 112
SB = 128
KR = 192
ONES = 224
T = 228
NV = 244
aK = 0
aV = 24
NA = 48

def v(a, n=1): return f"v{a}" if n == 1 else f"v[{a}:{a+n-1}]"
def a(x, n=1): return f"a{x}" if n == 1 else f"a[{x}:{x+n-1}]"
def s(x, n=1): return f"s{x}" if n == 1 else f"s[{x}:{x+n-1}]"

def scale_tile(t, r, u):
    l = []
    for i in range(8):
        w = u + 2 * (i % 2)
        l += [f"v_lshlrev_b32 {v(w)}, 16, {v(t+i)}",
              f"v_and_b32 {v(w+1)}, 0xffff0000, {v(t+i)}",
              f"v_pk_mul_f32 {v(w,2)}, {v(w,2)}, {v(r,2)} op_sel_hi:[1,0]",
              f"v_cvt_pk_bf16_f32 {v(t+i)}, {v(w)}, {v(w+1)}"]
    return l

def norm_head(t, mode, isq, tmp):
    x, y = tmp, tmp + 1
    o = [f"v_dot2_f32_bf16 {v(x)}, {v(t+i)}, {v(t+i)}, {'0' if i==0 else v(x)}" for i in range(8)]
    o.append("s_nop 2")
    if mode == "swap":
        o += [f"v_mov_b32 {v(y)}, {v(x)}", "s_nop 1", f"v_permlane32_swap_b32 {v(x)}, {v(y)}", "s_nop 0",
              f"v_add_f32 {v(x)}, {v(x)}, {v(y)}"]
    else:
        o.append(f"v_add_f32_dpp {v(x)}, {v(x)}, {v(x)} quad_perm:[1,0,3,2] row_mask:0xf bank_mask:0xf")
    o += [f"v_sqrt_f32 {v(x)}, {v(x)}", "s_nop 0", f"v_add_f32 {v(x)}, {s(sEPS)}, {v(x)}", f"v_rcp_f32 {v(x)}, {v(x)}"]
    if isq: o += ["s_nop 0", f"v_mul_f32 {v(x)}, {v(vTS)}, {v(x)}"]
    return o

def norm_tile(t, mode, isq, tmp):
    return norm_head(t, mode, isq, tmp) + scale_tile(t, tmp, tmp + 2)

def fill_nops(seq, filler):
    out = []
    for x in seq:
        if x.startswith("s_nop"):
            need = int(x.split()[1]) + 1
            while need and filler:
                out.append(filler.pop(0)); need -= 1
            if need: out.append(f"s_nop {need-1}")
        else:
            out.append(x)
    return out

def epi_valu(tmp, oreg, rsreg):
    o = [f"v_rcp_f32 {v(tmp)}, {v(rsreg)}", "s_nop 0"]
    for r in range(0, 16, 2):
        o.append(f"v_pk_mul_f32 {v(oreg+r,2)}, {v(oreg+r,2)}, {v(tmp,2)} op_sel_hi:[1,0]")
    for r in range(8):
        o.append(f"v_cvt_pk_bf16_f32 {v(oreg+r)}, {v(oreg+2*r)}, {v(oreg+2*r+1)}")
    for r in range(4):
        o.append(f"v_permlane16_swap_b32 {v(oreg+r)}, {v(oreg+4+r)}")
    return o
OSC = ""
def epi_store(i, oreg):
    so = s(sQOFF) if i < 2 else s(sQOF2)
    return [f"buffer_store_dwordx4 {v(oreg,4)}, {v(vOO)}, {s(SO,4)}, {so} offen offset:{(i%2)*2048} {OSC}",
            f"buffer_store_dwordx4 {v(oreg+4,4)}, {v(vOO)}, {s(SO,4)}, {so} offen offset:{(i%2)*2048+1024} {OSC}"]

def tile_of(n):
    if 248 <= n < 256: return 62 + (n - 248) % 2, (n - 248) // 2
    return n // 4, n % 4
def buf_of(jj): return 2 if jj == 63 else jj % 2

def mf_step(n, opt):
    n1, n0 = n + 1, n - 1
    j1, i1 = tile_of(n1)
    j0, i0 = tile_of(n0)
    nxt, prv = SB + 16 * (n1 % 4), SB + 16 * (n0 % 4)
    kf, vf = aK + 8 * buf_of(j1), aV + 8 * buf_of(j0)
    return {
        "q1": f"v_mfma_f32_32x32x16_bf16 {v(nxt,16)}, {a(kf,4)}, {v(Q+8*i1,4)}, {opt.cinit}",
        "q2": f"v_mfma_f32_32x32x16_bf16 {v(nxt,16)}, {a(kf+4,4)}, {v(Q+8*i1+4,4)}, {v(nxt,16)}",
        "p1": f"v_smfmac_f32_32x32x32_bf16 {v(O+16*i0,16)}, {a(vf,4)}, {v(prv,8)}, {v(vIDX)}",
        "r1": f"v_smfmac_f32_16x16x64_bf16 {v(RS+4*i0,4)}, {v(ONES,4)}, {v(prv,8)}, {v(vIDX)}",
        "p2": f"v_smfmac_f32_32x32x32_bf16 {v(O+16*i0,16)}, {a(vf+4,4)}, {v(prv+8,8)}, {v(vIDX)}",
        "r2": f"v_smfmac_f32_16x16x64_bf16 {v(RS+4*i0,4)}, {v(ONES,4)}, {v(prv+8,8)}, {v(vIDX)}"}

ORDER = ["q1", "q2", "p1", "r1", "p2", "r2"]
PAT = [4, 4, 3, 1, 3, 1]

def k_read(jj, f):
    return f"ds_read_b128 {a(aK+8*buf_of(jj)+4*f,4)}, {v(vAK0+f)} offset:{(jj%16)*2048}"
def v_read(jj, m, t):
    return f"ds_read_b64_tr_b16 {a(aV+8*buf_of(jj)+4*m+2*t,2)}, {v(vAV)} offset:{32768+(jj%16)*2048+1024*m+256*t}"
def exps(n):
    cur = SB + 16 * (n % 4)
    return [f"v_exp_f32 {v(cur+e)}, {v(cur+e)}" for e in range(16)]

def emit_steps(n_lo, n_hi, opt, slots, blocks, skip=()):
    out = []
    for n in range(n_lo, n_hi):
        m = mf_step(n, opt)
        ex = exps(n)
        k = 0
        for key, c in zip(ORDER, PAT):
            out += blocks.get((n, key), [])
            if (n, key) not in skip: out.append(m[key])
            out += slots.get((n, key), [])
            out += ex[k:k+c]
            k += c
    return out

def std_slots(slots, jj_lo, jj_hi):
    def add(n, key, x): slots.setdefault((n, key), []).append(x)
    for jj in range(jj_lo, jj_hi):
        n = 4 * jj
        add(n+1, "q2", "s_waitcnt lgkmcnt(0)")
        add(n+1, "r1", k_read(jj+1, 0)); add(n+1, "r2", k_read(jj+1, 1))
        add(n+2, "r1", v_read(jj+1, 0, 0))
        add(n+2, "p2", "s_waitcnt lgkmcnt(1)")
        add(n+2, "r2", v_read(jj+1, 0, 1))
        add(n+3, "r1", v_read(jj+1, 1, 0)); add(n+3, "r2", v_read(jj+1, 1, 1))

STAMP_NAMES = []
def gen(opt):
    L = []
    A = L.append
    def E(x): L.extend(x)
    STAMP_NAMES.clear()
    global OSC
    OSC = opt.osc.replace('_', ' ')
    def stamp(name):
        if not opt.stamps or (opt.stamps == 2 and name not in ("entry", "done")): return "; stamp " + name
        i = len(STAMP_NAMES); STAMP_NAMES.append(name)
        assert i < 18
        return f"{'s_memtime' if opt.cyc else 's_memrealtime'} {s(62+2*i,2)}"
    def dspin(lbl, ticks):
        E([f"{lbl}:", "s_memrealtime s[100:101]", "s_waitcnt lgkmcnt(0)", "s_sub_u32 s100, s100, s98",
           f"s_cmp_lt_u32 s100, {ticks}", f"s_cbranch_scc1 {lbl}"])
    ksc = " sc1" if opt.ksc1 else ""
    FLAGOK = '0x02020202' if opt.force_help else '0x01010101'
    def kload(t, so):
        return [f"buffer_load_dwordx4 {v(KR+8*t,4)}, {v(vKL)}, {s(SK,4)}, {so} offen",
                f"buffer_load_dwordx4 {v(KR+8*t+4,4)}, {v(vKL)}, {s(SK,4)}, {so} offen offset:16"]
    def qload(i):
        so = s(sQOFF) if i < 2 else s(sQOF2)
        return [f"buffer_load_dwordx4 {v(Q+8*i,4)}, {v(vQL)}, {s(SQ,4)}, {so} offen offset:{(i%2)*2048}",
                f"buffer_load_dwordx4 {v(Q+8*i+4,4)}, {v(vQL)}, {s(SQ,4)}, {so} offen offset:{(i%2)*2048+32}"]
    def vdma2(so):
        return [f"buffer_load_dwordx4 {v(vLIN)}, {s(SV,4)}, {so} offen lds",
                f"buffer_load_dwordx4 {v(vLIN)}, {s(SV,4)}, {so} offen offset:1024 lds"]
    def kwrite(t):
        return [f"ds_write_b128 {v(vKW)}, {v(KR+8*t,4)} offset:{8192*t}",
                f"ds_write_b128 {v(vKW)}, {v(KR+8*t+4,4)} offset:{8192*t+1024}"]
    def kstore(t, so):
        return [f"buffer_store_dwordx4 {v(KR+8*t,4)}, {v(vLIN)}, {s(SW,4)}, {so} offen sc1",
                f"buffer_store_dwordx4 {v(KR+8*t+4,4)}, {v(vLIN)}, {s(SW,4)}, {so} offen offset:1024 sc1"]
    A("s_cmp_ge_u32 s2, 256")
    A("s_cbranch_scc1 L_end")
    A(stamp("entry"))
    if opt.spin or opt.spin0 or opt.amp >= 0: A("s_memrealtime s[98:99]")
    A(f"s_load_dwordx8 {s(sARG,8)}, s[0:1], 0")
    A(f"s_load_dwordx4 {s(sARG+8,4)}, s[0:1], 32")
    A(f"s_load_dwordx2 {s(sARG+12,2)}, s[0:1], 48")
    if opt.l2pf:
        A(f"s_getpc_b64 {s(sT0,2)}")
        A("L_pc0:")
        A(f"v_lshlrev_b32 {v(T+2)}, 7, v0")
        A(f"v_min_u32 {v(T+2)}, L_code_end-L_pc0-4, {v(T+2)}")
        A(f"v_mov_b32 {v(T+3)}, {s(sT1)}")
        A(f"v_add_co_u32 {v(T+2)}, vcc, {s(sT0)}, {v(T+2)}")
    A(f"v_lshrrev_b32 {v(T)}, 6, v0")
    A(f"v_and_b32 v0, 63, v0")
    if opt.l2pf:
        A(f"v_addc_co_u32 {v(T+3)}, vcc, 0, {v(T+3)}, vcc")
        A(f"global_load_dword {v(vFR)}, {v(T+2,2)}, off")
    A(f"v_readfirstlane_b32 {s(sW)}, {v(T)}")
    A(f"s_and_b32 {s(sT0)}, s2, 7")
    A(f"s_lshr_b32 {s(sT1)}, s2, 3")
    A(f"s_and_b32 {s(sJ)}, {s(sT1)}, 3")
    A(f"s_lshr_b32 {s(sT1)}, {s(sT1)}, 2")
    A(f"s_lshl_b32 {s(sT0)}, {s(sT0)}, 3")
    A(f"s_add_u32 {s(sHEAD)}, {s(sT0)}, {s(sT1)}")
    A(f"s_lshl_b32 {s(sT2)}, {s(sHEAD)}, 17")
    A(f"s_lshl_b32 {s(sWL)}, {s(sW)}, 11")
    A(f"s_lshl_b32 {s(sBASE)}, {s(sJ)}, 15")
    A(f"s_lshl_b32 {s(sQOFF)}, {s(sW)}, 13")
    A(f"s_add_u32 {s(sQOFF)}, {s(sQOFF)}, {s(sBASE)}")
    A(f"s_add_u32 {s(sQOF2)}, {s(sQOFF)}, 4096")
    A(f"s_add_u32 {s(sBASE)}, {s(sBASE)}, {s(sWL)}")
    A(f"s_and_b32 {s(sT3)}, {s(sHEAD)}, 30")
    A(f"s_lshl_b32 {s(sT3)}, {s(sT3)}, 1")
    A(f"s_add_u32 m0, {s(sWL)}, 32768")
    A(f"v_and_b32 {v(T)}, 31, v0")
    A(f"v_lshrrev_b32 {v(T+1)}, 5, v0")
    A(f"v_lshlrev_b32 {v(vQL)}, 6, {v(T)}")
    A(f"v_lshl_add_u32 {v(vQL)}, {v(T+1)}, 4, {v(vQL)}")
    A(f"v_bfe_u32 {v(T+2)}, v0, 4, 1")
    A(f"v_xor_b32 {v(T+2)}, {v(T+2)}, v0")
    A(f"v_lshlrev_b32 {v(vKL)}, 5, {v(T+2)}")
    A(f"v_lshlrev_b32 {v(vLIN)}, 4, v0")
    for srd in (SK, SQ, SV, SO, SW):
        A(f"s_mov_b32 {s(srd+2)}, 0x20000")
        A(f"s_mov_b32 {s(srd+3)}, 0x20000")
    A(f"s_mov_b32 {s(SD+2)}, 256")
    A(f"s_mov_b32 {s(SD+3)}, 0x20000")
    A(f"s_mov_b32 {s(sEPS)}, {hex(f2u(1e-6))}")
    A(f"s_add_u32 {s(sB1)}, {s(sBASE)}, 8192")
    A(f"s_add_u32 {s(sB2)}, {s(sBASE)}, 16384")
    A(f"s_add_u32 {s(sKOFF)}, {s(sBASE)}, 24576")
    A(f"s_mov_b32 {s(sVOFF)}, {s(sBASE)}")
    A(f"s_lshl_b32 {s(sT0)}, {s(sHEAD)}, 2")
    A(f"v_mov_b32 {v(vIDX)}, 0xdddddddd")
    A(f"v_mov_b32 {v(vONE)}, 1")
    A(f"v_add_u32 {v(vKW)}, {s(sWL)}, {v(vLIN)}")
    A(f"v_mov_b32 {v(vFL)}, {s(sT0)}")
    A(f"s_add_u32 {s(sT0)}, {s(sT0)}, {s(sJ)}")
    A(f"v_lshlrev_b32 {v(vFO)}, 4, {v(vKW)}")
    A(f"v_add_u32 {v(vFO)}, {s(sT0)}, {v(vFO)}")
    A(f"v_bfe_u32 {v(T+2)}, v0, 3, 1")
    A(f"v_lshl_add_u32 {v(T+2)}, {v(T)}, 1, {v(T+2)}")
    A(f"v_lshlrev_b32 {v(T+2)}, 4, {v(T+2)}")
    A(f"v_lshl_add_u32 {v(vAK0)}, {v(T+1)}, 10, {v(T+2)}")
    A(f"v_xor_b32 {v(vAK1)}, 16, {v(vAK0)}")
    late = []
    B = late.append
    B(f"v_bfe_u32 {v(T+2)}, v0, 2, 2")
    B(f"v_lshl_add_u32 {v(T+2)}, {v(T+1)}, 3, {v(T+2)}")
    B(f"v_lshlrev_b32 {v(vAV)}, 6, {v(T+2)}")
    B(f"v_and_b32 {v(T+2)}, 1, v0")
    B(f"v_lshl_add_u32 {v(vAV)}, {v(T+2)}, 5, {v(vAV)}")
    B(f"v_bfe_u32 {v(T+2)}, v0, 4, 1")
    B(f"v_lshl_add_u32 {v(vAV)}, {v(T+2)}, 4, {v(vAV)}")
    B(f"v_bfe_u32 {v(T+2)}, v0, 1, 1")
    B(f"v_lshl_add_u32 {v(vAV)}, {v(T+2)}, 3, {v(vAV)}")
    B(f"v_and_b32 {v(T+2)}, 15, v0")
    B(f"v_and_b32 {v(T+3)}, 48, v0")
    B(f"v_lshl_add_u32 {v(vOO)}, {v(T+2)}, 6, {v(T+3)}")
    B(f"v_and_b32 {v(T+2)}, 7, v0")
    B(f"v_lshlrev_b32 {v(T+2)}, {v(T+2)}, {v(vONE)}")
    B(f"v_bfe_i32 {v(T+3)}, {v(T+2)}, 0, 1")
    B(f"v_and_b32 {v(ONES)}, 0x3f803f80, {v(T+3)}")
    B(f"v_and_b32 {v(ONES+1)}, 0x3f803f80, {v(T+3)}")
    B(f"v_bfe_i32 {v(T+3)}, {v(T+2)}, 4, 1")
    B(f"v_and_b32 {v(ONES+2)}, 0x3f803f80, {v(T+3)}")
    B(f"v_and_b32 {v(ONES+3)}, 0x3f803f80, {v(T+3)}")
    B(f"v_mov_b32 {v(vTS)}, {hex(f2u(LOG2E))}")
    for r in range(O, RS + 16, 2): B(f"v_mov_b64 {v(r,2)}, 0")
    def take(k):
        E(late[:k]); del late[:k]
    take(opt.pre_n)
    A("s_waitcnt lgkmcnt(0)")
    A(stamp("kernarg"))
    A(f"s_add_u32 {s(SK)}, {s(sARG+2)}, {s(sT2)}")
    A(f"s_addc_u32 {s(SK+1)}, {s(sARG+3)}, 0")
    E(kload(0, s(sBASE)))
    A(f"s_add_u32 {s(SQ)}, {s(sARG)}, {s(sT2)}")
    A(f"s_addc_u32 {s(SQ+1)}, {s(sARG+1)}, 0")
    E(qload(0))
    A(f"s_load_dword {s(sTS)}, {s(sARG+6,2)}, {s(sT3)}")
    for srd, arg in ((SV, 4), (SO, 8), (SW, 12)):
        A(f"s_add_u32 {s(srd)}, {s(sARG+arg)}, {s(sT2)}")
        A(f"s_addc_u32 {s(srd+1)}, {s(sARG+arg+1)}, 0")
    A(f"s_mov_b32 {s(SD)}, {s(sARG+10)}")
    A(f"s_mov_b32 {s(SD+1)}, {s(sARG+11)}")
    A(f"s_and_b32 {s(sT1)}, {s(sHEAD)}, 1")
    A(f"s_lshl_b32 {s(sT1)}, {s(sT1)}, 4")
    g = -(-len(late) // 3)
    take(g); E(qload(1))
    take(g); E(vdma2(s(sBASE)))
    take(g); E(qload(2))
    A(stamp("issued"))
    A("s_waitcnt vmcnt(8)")
    A(stamp("K0"))
    E(norm_tile(KR, "dpp", False, T))
    E(kwrite(0))
    E(qload(3))
    A("s_waitcnt vmcnt(8)")
    A(stamp("Q0"))
    h = norm_head(Q, "swap", True, T)
    E(h[:-2])
    A("s_waitcnt lgkmcnt(0)")
    A("s_barrier")
    A(k_read(0, 0)); A(k_read(0, 1))
    A(f"s_lshr_b32 {s(sTS)}, {s(sTS)}, {s(sT1)}")
    A(f"s_lshl_b32 {s(sTS)}, {s(sTS)}, 16")
    A(f"s_and_b32 {s(sT0)}, {s(sTS)}, 0x7fffffff")
    A(f"v_mul_f32 {v(vTS)}, {s(sTS)}, {v(vTS)}")
    A(f"s_cmp_gt_u32 {s(sT0)}, {hex(f2u(opt.thresh))}")
    A("s_cbranch_scc1 L_slow")
    A(h[-1])
    E(scale_tile(Q, T, T + 2))
    A("s_waitcnt vmcnt(6) lgkmcnt(0)")
    A(stamp("Q1"))
    m0 = mf_step(-1, opt)
    h = norm_head(Q + 8, "swap", True, T)
    E(h[:8]); A(m0["q1"]); E(h[8:]); A(m0["q2"])
    E(kstore(0, s(sBASE)))
    E(scale_tile(Q + 8, T, T + 2))
    A("s_nop 1")
    if opt.spin0: dspin("L_dspin0", opt.spin0)
    A(stamp("step0"))
    slots, blocks = {}, {}
    def add(n, key, x): slots.setdefault((n, key), []).append(x)
    def blk(n, key, x): blocks.setdefault((n, key), []).extend(x)
    def vdma(n, slot, keys=("q1", "q2", "p1", "r1")):
        add(n, keys[0], f"s_add_u32 {s(sVOFF)}, {s(sVOFF)}, 8192")
        add(n, keys[1], f"s_and_b32 {s(sVOFF)}, {s(sVOFF)}, 0x1ffff")
        add(n, keys[2], f"s_add_u32 m0, {s(sWL)}, {32768+slot*8192}")
        for x in vdma2(s(sVOFF)): add(n, keys[3], x)
    def kdma(n, slot):
        add(n, "q1", f"s_add_u32 {s(sKOFF)}, {s(sKOFF)}, 8192")
        add(n, "q2", f"s_and_b32 {s(sKOFF)}, {s(sKOFF)}, 0x1ffff")
        add(n, "p1", f"s_add_u32 m0, {s(sWL)}, {slot*8192}")
        for h_ in range(2):
            add(n, "r1", f"buffer_load_dwordx4 {v(vLIN)}, {s(SW,4)}, {s(sKOFF)} offen offset:{1024*h_}{ksc} lds")
    def kpub(n, t, so):
        w = kwrite(t); st = kstore(t, so)
        add(n, "r1", w[0]); add(n, "r2", w[1]); add(n, "p1", st[0]); add(n, "p2", st[1])
    std_slots(slots, 0, 14)
    blk(0, "p1", ["s_waitcnt vmcnt(4)", "s_barrier"] + [v_read(0, m_, t_) for m_ in range(2) for t_ in range(2)]
        + kload(1, s(sB1)) + norm_tile(Q + 16, "swap", True, T))
    blk(1, "p1", ["s_waitcnt vmcnt(4)"] + norm_tile(Q + 24, "swap", True, T))
    vdma(2, 1, ("q1", "q2", "q2", "p1"))
    for x in kload(2, s(sB2)): add(8, "r1", x)
    add(10, "q1", "s_waitcnt vmcnt(4)")
    blk(11, "p1", norm_tile(KR + 8, "dpp", False, T))
    kpub(12, 1, s(sB1))
    add(13, "p1", "s_waitcnt vmcnt(4)"); add(13, "p1", "s_barrier")
    for x in kload(3, s(sKOFF)): add(14, "p1", x)
    vdma(16, 2)
    add(18, "q1", "s_waitcnt vmcnt(6)")
    blk(19, "p1", norm_tile(KR + 16, "dpp", False, T))
    kpub(20, 2, s(sB2))
    add(22, "q1", "s_waitcnt vmcnt(4)")
    blk(23, "p1", norm_tile(KR + 24, "dpp", False, T))
    kpub(24, 3, s(sKOFF))
    vdma(28, 3)
    add(29, "p1", "s_waitcnt vmcnt(2)"); add(29, "p1", "s_barrier")
    add(29, "p2", f"buffer_store_byte {v(vONE)}, {v(vFO)}, {s(SD,4)}, 0 offen sc1")
    vdma(36, 0)
    add(44, "r1", f"buffer_load_dword {v(vFR)}, {v(vFL)}, {s(SD,4)}, 0 offen sc1")
    add(45, "p1", "s_waitcnt vmcnt(3)"); add(45, "p1", "s_barrier")
    add(50, "q1", "s_waitcnt vmcnt(0)")
    blk(50, "p1", [f"v_readfirstlane_b32 {s(sFLAG)}, {v(vFR)}"])
    add(51, "q1", f"s_cmp_eq_u32 {s(sFLAG)}, {FLAGOK}")
    add(51, "q2", "s_cbranch_scc0 L_wait")
    add(51, "q2", "L_back:")
    kdma(52, 0); vdma(52, 1, ("p1", "p2", "p2", "r2"))
    add(54, "q1", f"s_mov_b32 {s(sCNT)}, 3")
    if opt.amp >= 0: add(opt.ampstep, "p2", "s_memrealtime s[96:97]")
    for nn in opt.stepstamps.split(","): add(int(nn), "p2", stamp(f"step{nn}"))
    E(emit_steps(0, 56, opt, slots, blocks, skip={(0, "p1"), (0, "r1"), (0, "p2"), (0, "r2")}))
    slots, blocks = {}, {}
    std_slots(slots, 14, 30)
    for st in range(4):
        n = 64 + 16 * st
        kdma(n - 8, (st + 1) % 4)
        add(n - 3, "p1", "s_waitcnt vmcnt(4)"); add(n - 3, "p1", "s_barrier")
        vdma(n, (st + 2) % 4)
    add(116, "r1", k_read(63, 0)); add(116, "r2", k_read(63, 1))
    add(119, "q1", f"s_sub_u32 {s(sCNT)}, {s(sCNT)}, 1")
    add(119, "q2", f"s_cmp_lg_u32 {s(sCNT)}, 0")
    A(".p2align 6")
    A("L_loop:")
    E(emit_steps(56, 120, opt, slots, blocks))
    A("s_cbranch_scc1 L_loop")
    A(stamp("loopend"))
    slots, blocks = {}, {}
    add(248, "r1", v_read(63, 0, 0)); add(248, "r2", v_read(63, 0, 1))
    add(249, "q2", "s_waitcnt lgkmcnt(2)")
    add(249, "r1", v_read(63, 1, 0)); add(249, "r2", v_read(63, 1, 1))
    add(250, "q2", "s_waitcnt lgkmcnt(2)")
    add(250, "r1", "s_waitcnt lgkmcnt(0)")
    for i, n in ((0, 251), (1, 253)):
        blk(n, "p1", epi_valu(T + 2 * i, O + 16 * i, RS + 4 * i))
        st = epi_store(i, O + 16 * i); add(n, "p1", st[0]); add(n, "r1", st[1])
    E(emit_steps(248, 255, opt, slots, blocks))
    m = mf_step(255, opt); m2 = mf_step(256, opt); ex = exps(255)
    A("; ---- step 255")
    A(m["p1"]); E(ex[0:3]); A(m["r1"]); E(ex[3:4]); A(m["p2"]); E(ex[4:7]); A(m["r2"]); E(ex[7:10])
    e2 = epi_valu(T + 4, O + 32, RS + 8)
    E(e2[:10])
    A(m2["p1"]); E(ex[10:13]); A(m2["r1"]); E(ex[13:16])
    E(e2[10:12])
    A(m2["r2"]); E(e2[12:14]); A(m2["p2"]); E(e2[14:])
    E(epi_store(2, O + 32))
    e3 = epi_valu(T + 6, O + 48, RS + 12)
    A(e3[0]); A("s_nop 0")
    E(e3[2:])
    E(epi_store(3, O + 48))
    if opt.stamps:
        A(stamp("stored"))
        A("s_waitcnt vmcnt(0)")
        A(stamp("done"))
        A("s_waitcnt lgkmcnt(0)")
        for i in range(len(STAMP_NAMES)): A(f"v_writelane_b32 {v(T)}, {s(62+2*i)}, {i}")
        A(f"s_lshl_b32 {s(sT0)}, s2, 2")
        A(f"s_add_u32 {s(sT0)}, {s(sT0)}, {s(sW)}")
        A(f"s_lshl_b32 {s(sT0)}, {s(sT0)}, 8")
        A(f"s_add_u32 {s(sT0)}, {s(sT0)}, 0x8000000")
        A(f"v_lshlrev_b32 {v(T+1)}, 2, v0")
        A(f"v_add_u32 {v(T+1)}, {s(sT0)}, {v(T+1)}")
        A(f"global_store_dword {v(T+1)}, {v(T)}, {s(sARG+12,2)}")
    if opt.spin: dspin("L_dspin", opt.spin)
    if opt.amp >= 0:
        if opt.amp != 999:
            A(f"s_cmp_lg_u32 s2, {opt.amp}"); A("s_cbranch_scc1 L_end")
        A("s_sub_u32 s96, s96, s98"); A("s_mul_i32 s96, s96, 10"); A("s_add_u32 s96, s96, 4000")
        dspin("L_dspin", "s96")
    A("L_end:")
    A("s_endpgm")
    A("L_code_end:")
    A("L_wait:")
    A(f"s_mov_b32 {s(sCNT2)}, {1 if opt.force_help else 64}")
    A("L_spin:")
    A(f"buffer_load_dword {v(vFR)}, {v(vFL)}, {s(SD,4)}, 0 offen sc1")
    A("s_waitcnt vmcnt(0)")
    A(f"v_readfirstlane_b32 {s(sFLAG)}, {v(vFR)}")
    A("s_nop 3")
    A(f"s_cmp_eq_u32 {s(sFLAG)}, {FLAGOK}")
    A("s_cbranch_scc1 L_back")
    A(f"s_sub_u32 {s(sCNT2)}, {s(sCNT2)}, 1")
    A(f"s_cmp_lg_u32 {s(sCNT2)}, 0")
    A("s_cbranch_scc1 L_spin")
    A(f"s_mov_b32 {s(sCNT2)}, 12")
    A(f"s_mov_b32 {s(sT0)}, {s(sKOFF)}")
    A("L_help:")
    A(f"s_add_u32 {s(sT0)}, {s(sT0)}, 8192")
    A(f"s_and_b32 {s(sT0)}, {s(sT0)}, 0x1ffff")
    E(kload(0, s(sT0)))
    A("s_waitcnt vmcnt(0)")
    E(norm_tile(KR, "dpp", False, T))
    E(kstore(0, s(sT0)))
    A("s_waitcnt vmcnt(0)")
    A(f"s_sub_u32 {s(sCNT2)}, {s(sCNT2)}, 1")
    A(f"s_cmp_lg_u32 {s(sCNT2)}, 0")
    A("s_cbranch_scc1 L_help")
    A("s_branch L_back")
    A("L_slow:")
    A("s_waitcnt vmcnt(0) lgkmcnt(0)")
    for i in range(4): E(norm_tile(Q + 8 * i, "swap", True, T))
    MX = T + 8
    for i in range(4): A(f"v_mov_b32 {v(MX+i)}, 0xff800000")
    A(f"v_add_u32 {v(vAV)}, {s(sWL)}, {v(vAV)}")
    A(f"s_add_u32 m0, {s(sWL)}, 32768")
    A(f"s_mov_b32 {s(sKOFF)}, 0")
    A("L_slow_kv:")
    A(f"buffer_load_dwordx4 {v(KR,4)}, {v(vQL)}, {s(SK,4)}, {s(sKOFF)} offen")
    A(f"buffer_load_dwordx4 {v(KR+4,4)}, {v(vQL)}, {s(SK,4)}, {s(sKOFF)} offen offset:32")
    E(vdma2(s(sKOFF)))
    A("s_waitcnt vmcnt(0)")
    for m_ in range(2):
        for t in range(2): A(v_read(0, m_, t))
    E(norm_tile(KR, "swap", False, T))
    A("s_waitcnt lgkmcnt(0)")
    A("s_nop 1")
    for i in range(4):
        A(f"v_mfma_f32_32x32x16_bf16 {v(SB+16*i,16)}, {v(KR,4)}, {v(Q+8*i,4)}, 0")
        A(f"v_mfma_f32_32x32x16_bf16 {v(SB+16*i,16)}, {v(KR+4,4)}, {v(Q+8*i+4,4)}, {v(SB+16*i,16)}")
    A("s_nop 15")
    for i in range(4):
        sb = SB + 16 * i
        A(f"v_max3_f32 {v(T)}, {v(sb)}, {v(sb+1)}, {v(MX+i)}")
        for r in range(2, 16, 2): A(f"v_max3_f32 {v(T)}, {v(sb+r)}, {v(sb+r+1)}, {v(T)}")
        A(f"v_mov_b32 {v(T+1)}, {v(T)}")
        A("s_nop 1")
        A(f"v_permlane32_swap_b32 {v(T)}, {v(T+1)}")
        A("s_nop 0")
        A(f"v_max_f32 {v(T)}, {v(T)}, {v(T+1)}")
        A(f"v_sub_f32 {v(T+2)}, {v(MX+i)}, {v(T)}")
        A(f"v_exp_f32 {v(T+2)}, {v(T+2)}")
        A(f"v_mov_b32 {v(MX+i)}, {v(T)}")
        for r in range(16): A(f"v_sub_f32 {v(sb+r)}, {v(sb+r)}, {v(T)}")
        for r in range(16): A(f"v_exp_f32 {v(sb+r)}, {v(sb+r)}")
        for r in range(16): A(f"v_mul_f32 {v(O+16*i+r)}, {v(O+16*i+r)}, {v(T+2)}")
        A(f"v_mul_f32 {v(RS+4*i)}, {v(RS+4*i)}, {v(T+2)}")
        A("s_nop 1")
        A(f"v_smfmac_f32_32x32x32_bf16 {v(O+16*i,16)}, {a(aV,4)}, {v(sb,8)}, {v(vIDX)}")
        A(f"v_smfmac_f32_16x16x64_bf16 {v(RS+4*i,4)}, {v(ONES,4)}, {v(sb,8)}, {v(vIDX)}")
        A(f"v_smfmac_f32_32x32x32_bf16 {v(O+16*i,16)}, {a(aV+4,4)}, {v(sb+8,8)}, {v(vIDX)}")
        A(f"v_smfmac_f32_16x16x64_bf16 {v(RS+4*i,4)}, {v(ONES,4)}, {v(sb+8,8)}, {v(vIDX)}")
    A("s_nop 15")
    A(f"s_add_u32 {s(sKOFF)}, {s(sKOFF)}, 2048")
    A(f"s_cmp_lt_u32 {s(sKOFF)}, 0x20000")
    A("s_cbranch_scc1 L_slow_kv")
    for i in range(4):
        E(epi_valu(T + 2 * (i % 2), O + 16 * i, RS + 4 * i)); E(epi_store(i, O + 16 * i))
    A("s_endpgm")
    return L

HEAD = open("standalone__qk_norm__prompt.s.ref").read().split("; Override launch")[0]

def render(opt):
    body = gen(opt)
    o = HEAD
    o += "; Override launch geometry by editing the next line (default: block=256,\n"
    o += "; @launch grid=(256,1,1) block=(256,1,1) lds=65536\n"
    o += f""".amdgcn_target "amdgcn-amd-amdhsa--gfx950"
.text
.globl {NAME}_kernel
.p2align 8
.type {NAME}_kernel,@function
{NAME}_kernel:
"""
    for x in body:
        if x.startswith("; stamp"): continue
        o += (x if x.endswith(":") or x.startswith(".") else "    " + x) + "\n"
    o += f""".section .rodata,"a"
.p2align 6
.amdhsa_kernel {NAME}_kernel
  .amdhsa_next_free_vgpr {NV+NA}
  .amdhsa_next_free_sgpr 102
  .amdhsa_accum_offset {NV}
  .amdhsa_group_segment_fixed_size 0
  .amdhsa_kernarg_size 56
  .amdhsa_user_sgpr_count 2
  .amdhsa_user_sgpr_kernarg_segment_ptr 1
  .amdhsa_system_sgpr_workgroup_id_x 1
.end_amdhsa_kernel
"""
    return o

if __name__ == "__main__":
    opt = Opt()
    out = sys.argv[1]
    for kv in sys.argv[2:]:
        k, val = kv.split("=")
        cur = getattr(opt, k)
        setattr(opt, k, type(cur)(val) if not isinstance(cur, bool) else val in ("1", "True"))
    open(out, "w").write(render(opt))
    if opt.stamps: open(out + ".stamps", "w").write(" ".join(STAMP_NAMES))
```

```python
import sys, struct
NAME = "standalone__qk_norm__prompt"

def f2u(x): return struct.unpack("<I", struct.pack("<f", x))[0]
LOG2E = 1.4426950408889634

class Opt:
    thresh = 16.0
    cinit = "4.0"
    force_help = False
    stamps = 0
    ksc1 = True
    cyc = False
    l2pf = True
    pre_n = 30
    osc = 'nt'
    spin = 0
    spin0 = 0
    amp = -1
    ampstep = 2
    stepstamps = "2,6,14,22,30,38,54"

SQ, SK, SV, SO, SW, SD = 4, 8, 12, 16, 20, 24
sW, sJ, sHEAD, sTS = 28, 29, 30, 31
sBASE, sVOFF, sKOFF, sCNT = 32, 33, 34, 35
sARG = 36
sT0, sT1, sT2, sT3 = 50, 51, 52, 53
sFLAG = 54
sWL = 55
sQOFF = 56
sQOF2 = 57
sB1, sB2 = 58, 59
sCNT2 = 60
sEPS = 61
vQL, vLIN, vAV, vKW, vIDX, vFO, vONE, vKL, vAK0, vAK1, vOO, vFL = 1, 2, 3, 4, 5, 6, 7, 8, 9, 10, 11, 12
vFR = 13
vTS = 14
Q = 16
O = 48
RS = 112
SB = 128
KR = 192
ONES = 224
T = 228
NV = 244
aK = 0
aV = 24
NA = 48

def v(a, n=1): return f"v{a}" if n == 1 else f"v[{a}:{a+n-1}]"
def a(x, n=1): return f"a{x}" if n == 1 else f"a[{x}:{x+n-1}]"
def s(x, n=1): return f"s{x}" if n == 1 else f"s[{x}:{x+n-1}]"

def scale_tile(t, r, u):
    l = []
    for i in range(8):
        w = u + 2 * (i % 2)
        l += [f"v_lshlrev_b32 {v(w)}, 16, {v(t+i)}",
              f"v_and_b32 {v(w+1)}, 0xffff0000, {v(t+i)}",
              f"v_pk_mul_f32 {v(w,2)}, {v(w,2)}, {v(r,2)} op_sel_hi:[1,0]",
              f"v_cvt_pk_bf16_f32 {v(t+i)}, {v(w)}, {v(w+1)}"]
    return l

def norm_head(t, mode, isq, tmp):
    x, y = tmp, tmp + 1
    o = [f"v_dot2_f32_bf16 {v(x)}, {v(t+i)}, {v(t+i)}, {'0' if i==0 else v(x)}" for i in range(8)]
    o.append("s_nop 2")
    if mode == "swap":
        o += [f"v_mov_b32 {v(y)}, {v(x)}", "s_nop 1", f"v_permlane32_swap_b32 {v(x)}, {v(y)}", "s_nop 0",
              f"v_add_f32 {v(x)}, {v(x)}, {v(y)}"]
    else:
        o.append(f"v_add_f32_dpp {v(x)}, {v(x)}, {v(x)} quad_perm:[1,0,3,2] row_mask:0xf bank_mask:0xf")
    o += [f"v_sqrt_f32 {v(x)}, {v(x)}", "s_nop 0", f"v_add_f32 {v(x)}, {s(sEPS)}, {v(x)}", f"v_rcp_f32 {v(x)}, {v(x)}"]
    if isq: o += ["s_nop 0", f"v_mul_f32 {v(x)}, {v(vTS)}, {v(x)}"]
    return o

def norm_tile(t, mode, isq, tmp):
    return norm_head(t, mode, isq, tmp) + scale_tile(t, tmp, tmp + 2)

def fill_nops(seq, filler):
    out = []
    for x in seq:
        if x.startswith("s_nop"):
            need = int(x.split()[1]) + 1
            while need and filler:
                out.append(filler.pop(0)); need -= 1
            if need: out.append(f"s_nop {need-1}")
        else:
            out.append(x)
    return out

def epi_valu(tmp, oreg, rsreg):
    o = [f"v_rcp_f32 {v(tmp)}, {v(rsreg)}", "s_nop 0"]
    for r in range(0, 16, 2):
        o.append(f"v_pk_mul_f32 {v(oreg+r,2)}, {v(oreg+r,2)}, {v(tmp,2)} op_sel_hi:[1,0]")
    for r in range(8):
        o.append(f"v_cvt_pk_bf16_f32 {v(oreg+r)}, {v(oreg+2*r)}, {v(oreg+2*r+1)}")
    for r in range(4):
        o.append(f"v_permlane16_swap_b32 {v(oreg+r)}, {v(oreg+4+r)}")
    return o
OSC = ""
def epi_store(i, oreg):
    so = s(sQOFF) if i < 2 else s(sQOF2)
    return [f"buffer_store_dwordx4 {v(oreg,4)}, {v(vOO)}, {s(SO,4)}, {so} offen offset:{(i%2)*2048} {OSC}",
            f"buffer_store_dwordx4 {v(oreg+4,4)}, {v(vOO)}, {s(SO,4)}, {so} offen offset:{(i%2)*2048+1024} {OSC}"]

def tile_of(n):
    if 248 <= n < 256: return 62 + (n - 248) % 2, (n - 248) // 2
    return n // 4, n % 4
def buf_of(jj): return 2 if jj == 63 else jj % 2

def mf_step(n, opt):
    n1, n0 = n + 1, n - 1
    j1, i1 = tile_of(n1)
    j0, i0 = tile_of(n0)
    nxt, prv = SB + 16 * (n1 % 4), SB + 16 * (n0 % 4)
    kf, vf = aK + 8 * buf_of(j1), aV + 8 * buf_of(j0)
    return {
        "q1": f"v_mfma_f32_32x32x16_bf16 {v(nxt,16)}, {a(kf,4)}, {v(Q+8*i1,4)}, {opt.cinit}",
        "q2": f"v_mfma_f32_32x32x16_bf16 {v(nxt,16)}, {a(kf+4,4)}, {v(Q+8*i1+4,4)}, {v(nxt,16)}",
        "p1": f"v_smfmac_f32_32x32x32_bf16 {v(O+16*i0,16)}, {a(vf,4)}, {v(prv,8)}, {v(vIDX)}",
        "r1": f"v_smfmac_f32_16x16x64_bf16 {v(RS+4*i0,4)}, {v(ONES,4)}, {v(prv,8)}, {v(vIDX)}",
        "p2": f"v_smfmac_f32_32x32x32_bf16 {v(O+16*i0,16)}, {a(vf+4,4)}, {v(prv+8,8)}, {v(vIDX)}",
        "r2": f"v_smfmac_f32_16x16x64_bf16 {v(RS+4*i0,4)}, {v(ONES,4)}, {v(prv+8,8)}, {v(vIDX)}"}

ORDER = ["q1", "q2", "p1", "r1", "p2", "r2"]
PAT = [4, 4, 3, 1, 3, 1]

def k_read(jj, f):
    return f"ds_read_b128 {a(aK+8*buf_of(jj)+4*f,4)}, {v(vAK0+f)} offset:{(jj%16)*2048}"
def v_read(jj, m, t):
    return f"ds_read_b64_tr_b16 {a(aV+8*buf_of(jj)+4*m+2*t,2)}, {v(vAV)} offset:{32768+(jj%16)*2048+1024*m+256*t}"
def exps(n):
    cur = SB + 16 * (n % 4)
    return [f"v_exp_f32 {v(cur+e)}, {v(cur+e)}" for e in range(16)]

def emit_steps(n_lo, n_hi, opt, slots, blocks, skip=()):
    out = []
    for n in range(n_lo, n_hi):
        m = mf_step(n, opt)
        ex = exps(n)
        k = 0
        for key, c in zip(ORDER, PAT):
            out += blocks.get((n, key), [])
            if (n, key) not in skip: out.append(m[key])
            out += slots.get((n, key), [])
            out += ex[k:k+c]
            k += c
    return out

def std_slots(slots, jj_lo, jj_hi):
    def add(n, key, x): slots.setdefault((n, key), []).append(x)
    for jj in range(jj_lo, jj_hi):
        n = 4 * jj
        add(n+1, "q2", "s_waitcnt lgkmcnt(0)")
        add(n+1, "r1", k_read(jj+1, 0)); add(n+1, "r2", k_read(jj+1, 1))
        add(n+2, "r1", v_read(jj+1, 0, 0))
        add(n+2, "p2", "s_waitcnt lgkmcnt(1)")
        add(n+2, "r2", v_read(jj+1, 0, 1))
        add(n+3, "r1", v_read(jj+1, 1, 0)); add(n+3, "r2", v_read(jj+1, 1, 1))

STAMP_NAMES = []
def gen(opt):
    L = []
    A = L.append
    def E(x): L.extend(x)
    STAMP_NAMES.clear()
    global OSC
    OSC = opt.osc.replace('_', ' ')
    def stamp(name):
        if not opt.stamps or (opt.stamps == 2 and name not in ("entry", "done")): return "; stamp " + name
        i = len(STAMP_NAMES); STAMP_NAMES.append(name)
        assert i < 18
        return f"{'s_memtime' if opt.cyc else 's_memrealtime'} {s(62+2*i,2)}"
    def dspin(lbl, ticks):
        E([f"{lbl}:", "s_memrealtime s[100:101]", "s_waitcnt lgkmcnt(0)", "s_sub_u32 s100, s100, s98",
           f"s_cmp_lt_u32 s100, {ticks}", f"s_cbranch_scc1 {lbl}"])
    ksc = " sc1" if opt.ksc1 else ""
    FLAGOK = '0x02020202' if opt.force_help else '0x01010101'
    def kload(t, so):
        return [f"buffer_load_dwordx4 {v(KR+8*t,4)}, {v(vKL)}, {s(SK,4)}, {so} offen",
                f"buffer_load_dwordx4 {v(KR+8*t+4,4)}, {v(vKL)}, {s(SK,4)}, {so} offen offset:16"]
    def qload(i):
        so = s(sQOFF) if i < 2 else s(sQOF2)
        return [f"buffer_load_dwordx4 {v(Q+8*i,4)}, {v(vQL)}, {s(SQ,4)}, {so} offen offset:{(i%2)*2048}",
                f"buffer_load_dwordx4 {v(Q+8*i+4,4)}, {v(vQL)}, {s(SQ,4)}, {so} offen offset:{(i%2)*2048+32}"]
    def vdma2(so):
        return [f"buffer_load_dwordx4 {v(vLIN)}, {s(SV,4)}, {so} offen lds",
                f"buffer_load_dwordx4 {v(vLIN)}, {s(SV,4)}, {so} offen offset:1024 lds"]
    def kwrite(t):
        return [f"ds_write_b128 {v(vKW)}, {v(KR+8*t,4)} offset:{8192*t}",
                f"ds_write_b128 {v(vKW)}, {v(KR+8*t+4,4)} offset:{8192*t+1024}"]
    def kstore(t, so):
        return [f"buffer_store_dwordx4 {v(KR+8*t,4)}, {v(vLIN)}, {s(SW,4)}, {so} offen sc1",
                f"buffer_store_dwordx4 {v(KR+8*t+4,4)}, {v(vLIN)}, {s(SW,4)}, {so} offen offset:1024 sc1"]
    A("s_cmp_ge_u32 s2, 256")
    A("s_cbranch_scc1 L_end")
    A(stamp("entry"))
    if opt.spin or opt.spin0 or opt.amp >= 0: A("s_memrealtime s[98:99]")
    A(f"s_load_dwordx8 {s(sARG,8)}, s[0:1], 0")
    A(f"s_load_dwordx4 {s(sARG+8,4)}, s[0:1], 32")
    A(f"s_load_dwordx2 {s(sARG+12,2)}, s[0:1], 48")
    if opt.l2pf:
        A(f"s_getpc_b64 {s(sT0,2)}")
        A("L_pc0:")
        A(f"v_lshlrev_b32 {v(T+2)}, 7, v0")
        A(f"v_min_u32 {v(T+2)}, L_code_end-L_pc0-4, {v(T+2)}")
        A(f"v_mov_b32 {v(T+3)}, {s(sT1)}")
        A(f"v_add_co_u32 {v(T+2)}, vcc, {s(sT0)}, {v(T+2)}")
    A(f"v_lshrrev_b32 {v(T)}, 6, v0")
    A(f"v_and_b32 v0, 63, v0")
    if opt.l2pf:
        A(f"v_addc_co_u32 {v(T+3)}, vcc, 0, {v(T+3)}, vcc")
        A(f"global_load_dword {v(vFR)}, {v(T+2,2)}, off")
    A(f"v_readfirstlane_b32 {s(sW)}, {v(T)}")
    A(f"s_and_b32 {s(sT0)}, s2, 7")
    A(f"s_lshr_b32 {s(sT1)}, s2, 3")
    A(f"s_and_b32 {s(sJ)}, {s(sT1)}, 3")
    A(f"s_lshr_b32 {s(sT1)}, {s(sT1)}, 2")
    A(f"s_lshl_b32 {s(sT0)}, {s(sT0)}, 3")
    A(f"s_add_u32 {s(sHEAD)}, {s(sT0)}, {s(sT1)}")
    A(f"s_lshl_b32 {s(sT2)}, {s(sHEAD)}, 17")
    A(f"s_lshl_b32 {s(sWL)}, {s(sW)}, 11")
    A(f"s_lshl_b32 {s(sBASE)}, {s(sJ)}, 15")
    A(f"s_lshl_b32 {s(sQOFF)}, {s(sW)}, 13")
    A(f"s_add_u32 {s(sQOFF)}, {s(sQOFF)}, {s(sBASE)}")
    A(f"s_add_u32 {s(sQOF2)}, {s(sQOFF)}, 4096")
    A(f"s_add_u32 {s(sBASE)}, {s(sBASE)}, {s(sWL)}")
    A(f"s_and_b32 {s(sT3)}, {s(sHEAD)}, 30")
    A(f"s_lshl_b32 {s(sT3)}, {s(sT3)}, 1")
    A(f"s_add_u32 m0, {s(sWL)}, 32768")
    A(f"v_and_b32 {v(T)}, 31, v0")
    A(f"v_lshrrev_b32 {v(T+1)}, 5, v0")
    A(f"v_lshlrev_b32 {v(vQL)}, 6, {v(T)}")
    A(f"v_lshl_add_u32 {v(vQL)}, {v(T+1)}, 4, {v(vQL)}")
    A(f"v_bfe_u32 {v(T+2)}, v0, 4, 1")
    A(f"v_xor_b32 {v(T+2)}, {v(T+2)}, v0")
    A(f"v_lshlrev_b32 {v(vKL)}, 5, {v(T+2)}")
    A(f"v_lshlrev_b32 {v(vLIN)}, 4, v0")
    for srd in (SK, SQ, SV, SO, SW):
        A(f"s_mov_b32 {s(srd+2)}, 0x20000")
        A(f"s_mov_b32 {s(srd+3)}, 0x20000")
    A(f"s_mov_b32 {s(SD+2)}, 256")
    A(f"s_mov_b32 {s(SD+3)}, 0x20000")
    A(f"s_mov_b32 {s(sEPS)}, {hex(f2u(1e-6))}")
    A(f"s_add_u32 {s(sB1)}, {s(sBASE)}, 8192")
    A(f"s_add_u32 {s(sB2)}, {s(sBASE)}, 16384")
    A(f"s_add_u32 {s(sKOFF)}, {s(sBASE)}, 24576")
    A(f"s_mov_b32 {s(sVOFF)}, {s(sBASE)}")
    A(f"s_lshl_b32 {s(sT0)}, {s(sHEAD)}, 2")
    A(f"v_mov_b32 {v(vIDX)}, 0xdddddddd")
    A(f"v_mov_b32 {v(vONE)}, 1")
    A(f"v_add_u32 {v(vKW)}, {s(sWL)}, {v(vLIN)}")
    A(f"v_mov_b32 {v(vFL)}, {s(sT0)}")
    A(f"s_add_u32 {s(sT0)}, {s(sT0)}, {s(sJ)}")
    A(f"v_lshlrev_b32 {v(vFO)}, 4, {v(vKW)}")
    A(f"v_add_u32 {v(vFO)}, {s(sT0)}, {v(vFO)}")
    A(f"v_bfe_u32 {v(T+2)}, v0, 3, 1")
    A(f"v_lshl_add_u32 {v(T+2)}, {v(T)}, 1, {v(T+2)}")
    A(f"v_lshlrev_b32 {v(T+2)}, 4, {v(T+2)}")
    A(f"v_lshl_add_u32 {v(vAK0)}, {v(T+1)}, 10, {v(T+2)}")
    A(f"v_xor_b32 {v(vAK1)}, 16, {v(vAK0)}")
    late = []
    B = late.append
    B(f"v_bfe_u32 {v(T+2)}, v0, 2, 2")
    B(f"v_lshl_add_u32 {v(T+2)}, {v(T+1)}, 3, {v(T+2)}")
    B(f"v_lshlrev_b32 {v(vAV)}, 6, {v(T+2)}")
    B(f"v_and_b32 {v(T+2)}, 1, v0")
    B(f"v_lshl_add_u32 {v(vAV)}, {v(T+2)}, 5, {v(vAV)}")
    B(f"v_bfe_u32 {v(T+2)}, v0, 4, 1")
    B(f"v_lshl_add_u32 {v(vAV)}, {v(T+2)}, 4, {v(vAV)}")
    B(f"v_bfe_u32 {v(T+2)}, v0, 1, 1")
    B(f"v_lshl_add_u32 {v(vAV)}, {v(T+2)}, 3, {v(vAV)}")
    B(f"v_and_b32 {v(T+2)}, 15, v0")
    B(f"v_and_b32 {v(T+3)}, 48, v0")
    B(f"v_lshl_add_u32 {v(vOO)}, {v(T+2)}, 6, {v(T+3)}")
    B(f"v_and_b32 {v(T+2)}, 7, v0")
    B(f"v_lshlrev_b32 {v(T+2)}, {v(T+2)}, {v(vONE)}")
    B(f"v_bfe_i32 {v(T+3)}, {v(T+2)}, 0, 1")
    B(f"v_and_b32 {v(ONES)}, 0x3f803f80, {v(T+3)}")
    B(f"v_and_b32 {v(ONES+1)}, 0x3f803f80, {v(T+3)}")
    B(f"v_bfe_i32 {v(T+3)}, {v(T+2)}, 4, 1")
    B(f"v_and_b32 {v(ONES+2)}, 0x3f803f80, {v(T+3)}")
    B(f"v_and_b32 {v(ONES+3)}, 0x3f803f80, {v(T+3)}")
    B(f"v_mov_b32 {v(vTS)}, {hex(f2u(LOG2E))}")
    for r in range(O, RS + 16, 2): B(f"v_mov_b64 {v(r,2)}, 0")
    def take(k):
        E(late[:k]); del late[:k]
    take(opt.pre_n)
    A("s_waitcnt lgkmcnt(0)")
    A(stamp("kernarg"))
    A(f"s_add_u32 {s(SK)}, {s(sARG+2)}, {s(sT2)}")
    A(f"s_addc_u32 {s(SK+1)}, {s(sARG+3)}, 0")
    E(kload(0, s(sBASE)))
    A(f"s_add_u32 {s(SQ)}, {s(sARG)}, {s(sT2)}")
    A(f"s_addc_u32 {s(SQ+1)}, {s(sARG+1)}, 0")
    E(qload(0))
    A(f"s_load_dword {s(sTS)}, {s(sARG+6,2)}, {s(sT3)}")
    for srd, arg in ((SV, 4), (SO, 8), (SW, 12)):
        A(f"s_add_u32 {s(srd)}, {s(sARG+arg)}, {s(sT2)}")
        A(f"s_addc_u32 {s(srd+1)}, {s(sARG+arg+1)}, 0")
    A(f"s_mov_b32 {s(SD)}, {s(sARG+10)}")
    A(f"s_mov_b32 {s(SD+1)}, {s(sARG+11)}")
    A(f"s_and_b32 {s(sT1)}, {s(sHEAD)}, 1")
    A(f"s_lshl_b32 {s(sT1)}, {s(sT1)}, 4")
    g = -(-len(late) // 3)
    take(g); E(qload(1))
    take(g); E(vdma2(s(sBASE)))
    take(g); E(qload(2))
    A(stamp("issued"))
    A("s_waitcnt vmcnt(8)")
    A(stamp("K0"))
    E(norm_tile(KR, "dpp", False, T))
    E(kwrite(0))
    E(qload(3))
    A("s_waitcnt vmcnt(8)")
    A(stamp("Q0"))
    h = norm_head(Q, "swap", True, T)
    E(h[:-2])
    A("s_waitcnt lgkmcnt(0)")
    A("s_barrier")
    A(k_read(0, 0)); A(k_read(0, 1))
    A(f"s_lshr_b32 {s(sTS)}, {s(sTS)}, {s(sT1)}")
    A(f"s_lshl_b32 {s(sTS)}, {s(sTS)}, 16")
    A(f"s_and_b32 {s(sT0)}, {s(sTS)}, 0x7fffffff")
    A(f"v_mul_f32 {v(vTS)}, {s(sTS)}, {v(vTS)}")
    A(f"s_cmp_gt_u32 {s(sT0)}, {hex(f2u(opt.thresh))}")
    A("s_cbranch_scc1 L_slow")
    A(h[-1])
    E(scale_tile(Q, T, T + 2))
    A("s_waitcnt vmcnt(6) lgkmcnt(0)")
    A(stamp("Q1"))
    m0 = mf_step(-1, opt)
    h = norm_head(Q + 8, "swap", True, T)
    E(h[:8]); A(m0["q1"]); E(h[8:]); A(m0["q2"])
    E(kstore(0, s(sBASE)))
    E(scale_tile(Q + 8, T, T + 2))
    A("s_nop 1")
    if opt.spin0: dspin("L_dspin0", opt.spin0)
    A(stamp("step0"))
    slots, blocks = {}, {}
    def add(n, key, x): slots.setdefault((n, key), []).append(x)
    def blk(n, key, x): blocks.setdefault((n, key), []).extend(x)
    def vdma(n, slot, keys=("q1", "q2", "p1", "r1")):
        add(n, keys[0], f"s_add_u32 {s(sVOFF)}, {s(sVOFF)}, 8192")
        add(n, keys[1], f"s_and_b32 {s(sVOFF)}, {s(sVOFF)}, 0x1ffff")
        add(n, keys[2], f"s_add_u32 m0, {s(sWL)}, {32768+slot*8192}")
        for x in vdma2(s(sVOFF)): add(n, keys[3], x)
    def kdma(n, slot):
        add(n, "q1", f"s_add_u32 {s(sKOFF)}, {s(sKOFF)}, 8192")
        add(n, "q2", f"s_and_b32 {s(sKOFF)}, {s(sKOFF)}, 0x1ffff")
        add(n, "p1", f"s_add_u32 m0, {s(sWL)}, {slot*8192}")
        for h_ in range(2):
            add(n, "r1", f"buffer_load_dwordx4 {v(vLIN)}, {s(SW,4)}, {s(sKOFF)} offen offset:{1024*h_}{ksc} lds")
    def kpub(n, t, so):
        w = kwrite(t); st = kstore(t, so)
        add(n, "r1", w[0]); add(n, "r2", w[1]); add(n, "p1", st[0]); add(n, "p2", st[1])
    std_slots(slots, 0, 14)
    blk(0, "p1", ["s_waitcnt vmcnt(4)", "s_barrier"] + [v_read(0, m_, t_) for m_ in range(2) for t_ in range(2)]
        + kload(1, s(sB1)) + norm_tile(Q + 16, "swap", True, T))
    blk(1, "p1", ["s_waitcnt vmcnt(4)"] + norm_tile(Q + 24, "swap", True, T))
    vdma(2, 1, ("q1", "q2", "q2", "p1"))
    for x in kload(2, s(sB2)): add(8, "r1", x)
    add(10, "q1", "s_waitcnt vmcnt(4)")
    blk(11, "p1", norm_tile(KR + 8, "dpp", False, T))
    kpub(12, 1, s(sB1))
    add(13, "p1", "s_waitcnt vmcnt(4)"); add(13, "p1", "s_barrier")
    for x in kload(3, s(sKOFF)): add(14, "p1", x)
    vdma(16, 2)
    add(18, "q1", "s_waitcnt vmcnt(6)")
    blk(19, "p1", norm_tile(KR + 16, "dpp", False, T))
    kpub(20, 2, s(sB2))
    add(22, "q1", "s_waitcnt vmcnt(4)")
    blk(23, "p1", norm_tile(KR + 24, "dpp", False, T))
    kpub(24, 3, s(sKOFF))
    vdma(28, 3)
    add(29, "p1", "s_waitcnt vmcnt(2)"); add(29, "p1", "s_barrier")
    add(29, "p2", f"buffer_store_byte {v(vONE)}, {v(vFO)}, {s(SD,4)}, 0 offen sc1")
    vdma(36, 0)
    add(44, "r1", f"buffer_load_dword {v(vFR)}, {v(vFL)}, {s(SD,4)}, 0 offen sc1")
    add(45, "p1", "s_waitcnt vmcnt(3)"); add(45, "p1", "s_barrier")
    add(50, "q1", "s_waitcnt vmcnt(0)")
    blk(50, "p1", [f"v_readfirstlane_b32 {s(sFLAG)}, {v(vFR)}"])
    add(51, "q1", f"s_cmp_eq_u32 {s(sFLAG)}, {FLAGOK}")
    add(51, "q2", "s_cbranch_scc0 L_wait")
    add(51, "q2", "L_back:")
    kdma(52, 0); vdma(52, 1, ("p1", "p2", "p2", "r2"))
    add(54, "q1", f"s_mov_b32 {s(sCNT)}, 3")
    if opt.amp >= 0 and opt.ampstep < 56: add(opt.ampstep, "p2", "s_memrealtime s[96:97]")
    for nn in opt.stepstamps.split(","): add(int(nn), "p2", stamp(f"step{nn}"))
    E(emit_steps(0, 56, opt, slots, blocks, skip={(0, "p1"), (0, "r1"), (0, "p2"), (0, "r2")}))
    slots, blocks = {}, {}
    std_slots(slots, 14, 30)
    for st in range(4):
        n = 64 + 16 * st
        kdma(n - 8, (st + 1) % 4)
        add(n - 3, "p1", "s_waitcnt vmcnt(4)"); add(n - 3, "p1", "s_barrier")
        vdma(n, (st + 2) % 4)
    add(116, "r1", k_read(63, 0)); add(116, "r2", k_read(63, 1))
    add(119, "q1", f"s_sub_u32 {s(sCNT)}, {s(sCNT)}, 1")
    add(119, "q2", f"s_cmp_lg_u32 {s(sCNT)}, 0")
    A(".p2align 6")
    A("L_loop:")
    E(emit_steps(56, 120, opt, slots, blocks))
    A("s_cbranch_scc1 L_loop")
    A(stamp("loopend"))
    slots, blocks = {}, {}
    add(248, "r1", v_read(63, 0, 0)); add(248, "r2", v_read(63, 0, 1))
    add(249, "q2", "s_waitcnt lgkmcnt(2)")
    add(249, "r1", v_read(63, 1, 0)); add(249, "r2", v_read(63, 1, 1))
    add(250, "q2", "s_waitcnt lgkmcnt(2)")
    add(250, "r1", "s_waitcnt lgkmcnt(0)")
    for i, n in ((0, 251), (1, 253)):
        blk(n, "p1", epi_valu(T + 2 * i, O + 16 * i, RS + 4 * i))
        st = epi_store(i, O + 16 * i); add(n, "p1", st[0]); add(n, "r1", st[1])
    E(emit_steps(248, 255, opt, slots, blocks))
    m = mf_step(255, opt); m2 = mf_step(256, opt); ex = exps(255)
    A("; ---- step 255")
    A(m["p1"]); E(ex[0:3]); A(m["r1"]); E(ex[3:4]); A(m["p2"]); E(ex[4:7]); A(m["r2"]); E(ex[7:10])
    e2 = epi_valu(T + 4, O + 32, RS + 8)
    E(e2[:10])
    A(m2["p1"]); E(ex[10:13]); A(m2["r1"]); E(ex[13:16])
    E(e2[10:12])
    A(m2["r2"]); E(e2[12:14]); A(m2["p2"]); E(e2[14:])
    E(epi_store(2, O + 32))
    e3 = epi_valu(T + 6, O + 48, RS + 12)
    A(e3[0]); A("s_nop 0")
    E(e3[2:])
    E(epi_store(3, O + 48))
    if opt.stamps:
        A(stamp("stored"))
        A("s_waitcnt vmcnt(0)")
        A(stamp("done"))
        A("s_waitcnt lgkmcnt(0)")
        for i in range(len(STAMP_NAMES)): A(f"v_writelane_b32 {v(T)}, {s(62+2*i)}, {i}")
        A(f"s_lshl_b32 {s(sT0)}, s2, 2")
        A(f"s_add_u32 {s(sT0)}, {s(sT0)}, {s(sW)}")
        A(f"s_lshl_b32 {s(sT0)}, {s(sT0)}, 8")
        A(f"s_add_u32 {s(sT0)}, {s(sT0)}, 0x8000000")
        A(f"v_lshlrev_b32 {v(T+1)}, 2, v0")
        A(f"v_add_u32 {v(T+1)}, {s(sT0)}, {v(T+1)}")
        A(f"global_store_dword {v(T+1)}, {v(T)}, {s(sARG+12,2)}")
    if opt.spin: dspin("L_dspin", opt.spin)
    if opt.amp >= 0:
        if opt.amp != 999:
            A(f"s_cmp_lg_u32 s2, {opt.amp}"); A("s_cbranch_scc1 L_end")
        if opt.ampstep >= 56:
            A("s_waitcnt vmcnt(0)"); A("s_memrealtime s[96:97]"); A("s_waitcnt lgkmcnt(0)"); A("s_sub_u32 s96, s96, 2500")
        A("s_sub_u32 s96, s96, s98"); A("s_max_i32 s96, s96, 0"); A("s_mul_i32 s96, s96, 10"); A("s_add_u32 s96, s96, 4000")
        dspin("L_dspin", "s96")
    A("L_end:")
    A("s_endpgm")
    A("L_code_end:")
    A("L_wait:")
    A(f"s_mov_b32 {s(sCNT2)}, {1 if opt.force_help else 64}")
    A("L_spin:")
    A(f"buffer_load_dword {v(vFR)}, {v(vFL)}, {s(SD,4)}, 0 offen sc1")
    A("s_waitcnt vmcnt(0)")
    A(f"v_readfirstlane_b32 {s(sFLAG)}, {v(vFR)}")
    A("s_nop 3")
    A(f"s_cmp_eq_u32 {s(sFLAG)}, {FLAGOK}")
    A("s_cbranch_scc1 L_back")
    A(f"s_sub_u32 {s(sCNT2)}, {s(sCNT2)}, 1")
    A(f"s_cmp_lg_u32 {s(sCNT2)}, 0")
    A("s_cbranch_scc1 L_spin")
    A(f"s_mov_b32 {s(sCNT2)}, 12")
    A(f"s_mov_b32 {s(sT0)}, {s(sKOFF)}")
    A("L_help:")
    A(f"s_add_u32 {s(sT0)}, {s(sT0)}, 8192")
    A(f"s_and_b32 {s(sT0)}, {s(sT0)}, 0x1ffff")
    E(kload(0, s(sT0)))
    A("s_waitcnt vmcnt(0)")
    E(norm_tile(KR, "dpp", False, T))
    E(kstore(0, s(sT0)))
    A("s_waitcnt vmcnt(0)")
    A(f"s_sub_u32 {s(sCNT2)}, {s(sCNT2)}, 1")
    A(f"s_cmp_lg_u32 {s(sCNT2)}, 0")
    A("s_cbranch_scc1 L_help")
    A("s_branch L_back")
    A("L_slow:")
    A("s_waitcnt vmcnt(0) lgkmcnt(0)")
    for i in range(4): E(norm_tile(Q + 8 * i, "swap", True, T))
    MX = T + 8
    for i in range(4): A(f"v_mov_b32 {v(MX+i)}, 0xff800000")
    A(f"v_add_u32 {v(vAV)}, {s(sWL)}, {v(vAV)}")
    A(f"s_add_u32 m0, {s(sWL)}, 32768")
    A(f"s_mov_b32 {s(sKOFF)}, 0")
    A("L_slow_kv:")
    A(f"buffer_load_dwordx4 {v(KR,4)}, {v(vQL)}, {s(SK,4)}, {s(sKOFF)} offen")
    A(f"buffer_load_dwordx4 {v(KR+4,4)}, {v(vQL)}, {s(SK,4)}, {s(sKOFF)} offen offset:32")
    E(vdma2(s(sKOFF)))
    A("s_waitcnt vmcnt(0)")
    for m_ in range(2):
        for t in range(2): A(v_read(0, m_, t))
    E(norm_tile(KR, "swap", False, T))
    A("s_waitcnt lgkmcnt(0)")
    A("s_nop 1")
    for i in range(4):
        A(f"v_mfma_f32_32x32x16_bf16 {v(SB+16*i,16)}, {v(KR,4)}, {v(Q+8*i,4)}, 0")
        A(f"v_mfma_f32_32x32x16_bf16 {v(SB+16*i,16)}, {v(KR+4,4)}, {v(Q+8*i+4,4)}, {v(SB+16*i,16)}")
    A("s_nop 15")
    for i in range(4):
        sb = SB + 16 * i
        A(f"v_max3_f32 {v(T)}, {v(sb)}, {v(sb+1)}, {v(MX+i)}")
        for r in range(2, 16, 2): A(f"v_max3_f32 {v(T)}, {v(sb+r)}, {v(sb+r+1)}, {v(T)}")
        A(f"v_mov_b32 {v(T+1)}, {v(T)}")
        A("s_nop 1")
        A(f"v_permlane32_swap_b32 {v(T)}, {v(T+1)}")
        A("s_nop 0")
        A(f"v_max_f32 {v(T)}, {v(T)}, {v(T+1)}")
        A(f"v_sub_f32 {v(T+2)}, {v(MX+i)}, {v(T)}")
        A(f"v_exp_f32 {v(T+2)}, {v(T+2)}")
        A(f"v_mov_b32 {v(MX+i)}, {v(T)}")
        for r in range(16): A(f"v_sub_f32 {v(sb+r)}, {v(sb+r)}, {v(T)}")
        for r in range(16): A(f"v_exp_f32 {v(sb+r)}, {v(sb+r)}")
        for r in range(16): A(f"v_mul_f32 {v(O+16*i+r)}, {v(O+16*i+r)}, {v(T+2)}")
        A(f"v_mul_f32 {v(RS+4*i)}, {v(RS+4*i)}, {v(T+2)}")
        A("s_nop 1")
        A(f"v_smfmac_f32_32x32x32_bf16 {v(O+16*i,16)}, {a(aV,4)}, {v(sb,8)}, {v(vIDX)}")
        A(f"v_smfmac_f32_16x16x64_bf16 {v(RS+4*i,4)}, {v(ONES,4)}, {v(sb,8)}, {v(vIDX)}")
        A(f"v_smfmac_f32_32x32x32_bf16 {v(O+16*i,16)}, {a(aV+4,4)}, {v(sb+8,8)}, {v(vIDX)}")
        A(f"v_smfmac_f32_16x16x64_bf16 {v(RS+4*i,4)}, {v(ONES,4)}, {v(sb+8,8)}, {v(vIDX)}")
    A("s_nop 15")
    A(f"s_add_u32 {s(sKOFF)}, {s(sKOFF)}, 2048")
    A(f"s_cmp_lt_u32 {s(sKOFF)}, 0x20000")
    A("s_cbranch_scc1 L_slow_kv")
    for i in range(4):
        E(epi_valu(T + 2 * (i % 2), O + 16 * i, RS + 4 * i)); E(epi_store(i, O + 16 * i))
    A("s_endpgm")
    return L

HEAD = open("standalone__qk_norm__prompt.s.ref").read().split("; Override launch")[0]

def render(opt):
    body = gen(opt)
    o = HEAD
    o += "; Override launch geometry by editing the next line (default: block=256,\n"
    o += "; @launch grid=(256,1,1) block=(256,1,1) lds=65536\n"
    o += f""".amdgcn_target "amdgcn-amd-amdhsa--gfx950"
.text
.globl {NAME}_kernel
.p2align 8
.type {NAME}_kernel,@function
{NAME}_kernel:
"""
    for x in body:
        if x.startswith("; stamp"): continue
        o += (x if x.endswith(":") or x.startswith(".") else "    " + x) + "\n"
    o += f""".section .rodata,"a"
.p2align 6
.amdhsa_kernel {NAME}_kernel
  .amdhsa_next_free_vgpr {NV+NA}
  .amdhsa_next_free_sgpr 102
  .amdhsa_accum_offset {NV}
  .amdhsa_group_segment_fixed_size 0
  .amdhsa_kernarg_size 56
  .amdhsa_user_sgpr_count 2
  .amdhsa_user_sgpr_kernarg_segment_ptr 1
  .amdhsa_system_sgpr_workgroup_id_x 1
.end_amdhsa_kernel
"""
    return o

if __name__ == "__main__":
    opt = Opt()
    out = sys.argv[1]
    for kv in sys.argv[2:]:
        k, val = kv.split("=")
        cur = getattr(opt, k)
        setattr(opt, k, type(cur)(val) if not isinstance(cur, bool) else val in ("1", "True"))
    open(out, "w").write(render(opt))
    if opt.stamps: open(out + ".stamps", "w").write(" ".join(STAMP_NAMES))
```

```python
import sys, struct
NAME = "standalone__qk_norm__prompt"

def f2u(x): return struct.unpack("<I", struct.pack("<f", x))[0]
LOG2E = 1.4426950408889634

class Opt:
    thresh = 16.0
    cinit = "4.0"
    force_help = False
    stamps = 0
    ksc1 = True
    cyc = False
    l2pf = True
    pre_n = 30
    osc = 'nt'
    spin = 0
    spin0 = 0
    amp = -1
    ampstep = 2
    stepstamps = "1,3,7,11,14,30,54"

SQ, SK, SV, SO, SW, SD = 4, 8, 12, 16, 20, 24
sW, sJ, sHEAD, sTS = 28, 29, 30, 31
sBASE, sVOFF, sKOFF, sCNT = 32, 33, 34, 35
sARG = 36
sT0, sT1, sT2, sT3 = 50, 51, 52, 53
sFLAG = 54
sWL = 55
sQOFF = 56
sQOF2 = 57
sB1, sB2 = 58, 59
sCNT2 = 60
sEPS = 61
vQL, vLIN, vAV, vKW, vIDX, vFO, vONE, vKL, vAK0, vAK1, vOO, vFL = 1, 2, 3, 4, 5, 6, 7, 8, 9, 10, 11, 12
vFR = 13
vTS = 14
Q = 16
O = 48
RS = 112
SB = 128
KR = 192
ONES = 224
T = 228
NV = 244
aK = 0
aV = 32
NA = 64

def v(a, n=1): return f"v{a}" if n == 1 else f"v[{a}:{a+n-1}]"
def a(x, n=1): return f"a{x}" if n == 1 else f"a[{x}:{x+n-1}]"
def s(x, n=1): return f"s{x}" if n == 1 else f"s[{x}:{x+n-1}]"

def scale_tile(t, r, u):
    l = []
    for i in range(8):
        w = u + 2 * (i % 2)
        l += [f"v_lshlrev_b32 {v(w)}, 16, {v(t+i)}",
              f"v_and_b32 {v(w+1)}, 0xffff0000, {v(t+i)}",
              f"v_pk_mul_f32 {v(w,2)}, {v(w,2)}, {v(r,2)} op_sel_hi:[1,0]",
              f"v_cvt_pk_bf16_f32 {v(t+i)}, {v(w)}, {v(w+1)}"]
    return l

def norm_head(t, mode, isq, tmp):
    x, y = tmp, tmp + 1
    o = [f"v_dot2_f32_bf16 {v(x)}, {v(t+i)}, {v(t+i)}, {'0' if i==0 else v(x)}" for i in range(8)]
    o.append("s_nop 2")
    if mode == "swap":
        o += [f"v_mov_b32 {v(y)}, {v(x)}", "s_nop 1", f"v_permlane32_swap_b32 {v(x)}, {v(y)}", "s_nop 0",
              f"v_add_f32 {v(x)}, {v(x)}, {v(y)}"]
    else:
        o.append(f"v_add_f32_dpp {v(x)}, {v(x)}, {v(x)} quad_perm:[1,0,3,2] row_mask:0xf bank_mask:0xf")
    o += [f"v_sqrt_f32 {v(x)}, {v(x)}", "s_nop 0", f"v_add_f32 {v(x)}, {s(sEPS)}, {v(x)}", f"v_rcp_f32 {v(x)}, {v(x)}"]
    if isq: o += ["s_nop 0", f"v_mul_f32 {v(x)}, {v(vTS)}, {v(x)}"]
    return o

def norm_tile(t, mode, isq, tmp):
    return norm_head(t, mode, isq, tmp) + scale_tile(t, tmp, tmp + 2)

def fill_nops(seq, filler):
    out = []
    for x in seq:
        if x.startswith("s_nop"):
            need = int(x.split()[1]) + 1
            while need and filler:
                out.append(filler.pop(0)); need -= 1
            if need: out.append(f"s_nop {need-1}")
        else:
            out.append(x)
    return out

def epi_valu(tmp, oreg, rsreg):
    o = [f"v_rcp_f32 {v(tmp)}, {v(rsreg)}", "s_nop 0"]
    for r in range(0, 16, 2):
        o.append(f"v_pk_mul_f32 {v(oreg+r,2)}, {v(oreg+r,2)}, {v(tmp,2)} op_sel_hi:[1,0]")
    for r in range(8):
        o.append(f"v_cvt_pk_bf16_f32 {v(oreg+r)}, {v(oreg+2*r)}, {v(oreg+2*r+1)}")
    for r in range(4):
        o.append(f"v_permlane16_swap_b32 {v(oreg+r)}, {v(oreg+4+r)}")
    return o
OSC = ""
def epi_store(i, oreg):
    so = s(sQOFF) if i < 2 else s(sQOF2)
    return [f"buffer_store_dwordx4 {v(oreg,4)}, {v(vOO)}, {s(SO,4)}, {so} offen offset:{(i%2)*2048} {OSC}",
            f"buffer_store_dwordx4 {v(oreg+4,4)}, {v(vOO)}, {s(SO,4)}, {so} offen offset:{(i%2)*2048+1024} {OSC}"]

def tile_of(n):
    if 248 <= n < 256: return 62 + (n - 248) % 2, (n - 248) // 2
    if 0 <= n < 16: return n % 4, n // 4
    return n // 4, n % 4
def buf_of(jj): return 2 if jj == 63 else (jj if jj in (2, 3) else jj % 2)

def resolve_waits(L):
    import re
    out = []
    for i, x in enumerate(L):
        m = re.search(r"vmcnt\(@(\w+)\)", x)
        if m:
            n = 0
            for y in reversed(L[:i]):
                if y.startswith(("buffer_", "global_")):
                    if y.endswith(";#" + m.group(1)): break
                    n += 1
            else:
                raise Exception("tag not found " + x)
            x = x.replace(m.group(0), f"vmcnt({n})") + "   ; " + m.group(1)
        out.append(x)
    return out

def mf_step(n, opt):
    n1, n0 = n + 1, n - 1
    j1, i1 = tile_of(n1)
    j0, i0 = tile_of(n0)
    nxt, prv = SB + 16 * (n1 % 4), SB + 16 * (n0 % 4)
    kf, vf = aK + 8 * buf_of(j1), aV + 8 * buf_of(j0)
    return {
        "q1": f"v_mfma_f32_32x32x16_bf16 {v(nxt,16)}, {a(kf,4)}, {v(Q+8*i1,4)}, {opt.cinit}",
        "q2": f"v_mfma_f32_32x32x16_bf16 {v(nxt,16)}, {a(kf+4,4)}, {v(Q+8*i1+4,4)}, {v(nxt,16)}",
        "p1": f"v_smfmac_f32_32x32x32_bf16 {v(O+16*i0,16)}, {a(vf,4)}, {v(prv,8)}, {v(vIDX)}",
        "r1": f"v_smfmac_f32_16x16x64_bf16 {v(RS+4*i0,4)}, {v(ONES,4)}, {v(prv,8)}, {v(vIDX)}",
        "p2": f"v_smfmac_f32_32x32x32_bf16 {v(O+16*i0,16)}, {a(vf+4,4)}, {v(prv+8,8)}, {v(vIDX)}",
        "r2": f"v_smfmac_f32_16x16x64_bf16 {v(RS+4*i0,4)}, {v(ONES,4)}, {v(prv+8,8)}, {v(vIDX)}"}

ORDER = ["q1", "q2", "p1", "r1", "p2", "r2"]
PAT = [4, 4, 3, 1, 3, 1]

def k_read(jj, f):
    return f"ds_read_b128 {a(aK+8*buf_of(jj)+4*f,4)}, {v(vAK0+f)} offset:{(jj%16)*2048}"
def v_read(jj, m, t):
    return f"ds_read_b64_tr_b16 {a(aV+8*buf_of(jj)+4*m+2*t,2)}, {v(vAV)} offset:{32768+(jj%16)*2048+1024*m+256*t}"
def exps(n):
    cur = SB + 16 * (n % 4)
    return [f"v_exp_f32 {v(cur+e)}, {v(cur+e)}" for e in range(16)]

def emit_steps(n_lo, n_hi, opt, slots, blocks, skip=()):
    out = []
    for n in range(n_lo, n_hi):
        m = mf_step(n, opt)
        ex = exps(n)
        k = 0
        for key, c in zip(ORDER, PAT):
            out += blocks.get((n, key), [])
            if (n, key) not in skip: out.append(m[key])
            out += slots.get((n, key), [])
            out += ex[k:k+c]
            k += c
    return out

def std_slots(slots, jj_lo, jj_hi):
    def add(n, key, x): slots.setdefault((n, key), []).append(x)
    for jj in range(jj_lo, jj_hi):
        n = 4 * jj
        add(n+1, "q2", "s_waitcnt lgkmcnt(0)")
        add(n+1, "r1", k_read(jj+1, 0)); add(n+1, "r2", k_read(jj+1, 1))
        add(n+2, "r1", v_read(jj+1, 0, 0))
        add(n+2, "p2", "s_waitcnt lgkmcnt(1)")
        add(n+2, "r2", v_read(jj+1, 0, 1))
        add(n+3, "r1", v_read(jj+1, 1, 0)); add(n+3, "r2", v_read(jj+1, 1, 1))

STAMP_NAMES = []
def gen(opt):
    L = []
    A = L.append
    def E(x): L.extend(x)
    STAMP_NAMES.clear()
    global OSC
    OSC = opt.osc.replace('_', ' ')
    def stamp(name):
        if not opt.stamps or (opt.stamps == 2 and name not in ("entry", "done")): return "; stamp " + name
        i = len(STAMP_NAMES); STAMP_NAMES.append(name)
        assert i < 18
        return f"{'s_memtime' if opt.cyc else 's_memrealtime'} {s(62+2*i,2)}"
    def dspin(lbl, ticks):
        E([f"{lbl}:", "s_memrealtime s[100:101]", "s_waitcnt lgkmcnt(0)", "s_sub_u32 s100, s100, s98",
           f"s_cmp_lt_u32 s100, {ticks}", f"s_cbranch_scc1 {lbl}"])
    ksc = " sc1" if opt.ksc1 else ""
    FLAGOK = '0x02020202' if opt.force_help else '0x01010101'
    def kload(t, so):
        return [f"buffer_load_dwordx4 {v(KR+8*t,4)}, {v(vKL)}, {s(SK,4)}, {so} offen",
                f"buffer_load_dwordx4 {v(KR+8*t+4,4)}, {v(vKL)}, {s(SK,4)}, {so} offen offset:16 ;#K{t}"]
    def qload(i):
        so = s(sQOFF) if i < 2 else s(sQOF2)
        return [f"buffer_load_dwordx4 {v(Q+8*i,4)}, {v(vQL)}, {s(SQ,4)}, {so} offen offset:{(i%2)*2048}",
                f"buffer_load_dwordx4 {v(Q+8*i+4,4)}, {v(vQL)}, {s(SQ,4)}, {so} offen offset:{(i%2)*2048+32} ;#Q{i}"]
    def vdma2(so, tag="V"):
        return [f"buffer_load_dwordx4 {v(vLIN)}, {s(SV,4)}, {so} offen lds",
                f"buffer_load_dwordx4 {v(vLIN)}, {s(SV,4)}, {so} offen offset:1024 lds ;#{tag}"]
    def kwrite(t):
        return [f"ds_write_b128 {v(vKW)}, {v(KR+8*t,4)} offset:{8192*t}",
                f"ds_write_b128 {v(vKW)}, {v(KR+8*t+4,4)} offset:{8192*t+1024}"]
    def kstore(t, so):
        return [f"buffer_store_dwordx4 {v(KR+8*t,4)}, {v(vLIN)}, {s(SW,4)}, {so} offen sc1",
                f"buffer_store_dwordx4 {v(KR+8*t+4,4)}, {v(vLIN)}, {s(SW,4)}, {so} offen offset:1024 sc1 ;#S{t}"]
    A("s_cmp_ge_u32 s2, 256")
    A("s_cbranch_scc1 L_end")
    A(stamp("entry"))
    if opt.spin or opt.spin0 or opt.amp >= 0: A("s_memrealtime s[98:99]")
    A(f"s_load_dwordx8 {s(sARG,8)}, s[0:1], 0")
    A(f"s_load_dwordx4 {s(sARG+8,4)}, s[0:1], 32")
    A(f"s_load_dwordx2 {s(sARG+12,2)}, s[0:1], 48")
    if opt.l2pf:
        A(f"s_getpc_b64 {s(sT0,2)}")
        A("L_pc0:")
        A(f"v_lshlrev_b32 {v(T+2)}, 7, v0")
        A(f"v_min_u32 {v(T+2)}, L_code_end-L_pc0-4, {v(T+2)}")
        A(f"v_mov_b32 {v(T+3)}, {s(sT1)}")
        A(f"v_add_co_u32 {v(T+2)}, vcc, {s(sT0)}, {v(T+2)}")
    A(f"v_lshrrev_b32 {v(T)}, 6, v0")
    A(f"v_and_b32 v0, 63, v0")
    if opt.l2pf:
        A(f"v_addc_co_u32 {v(T+3)}, vcc, 0, {v(T+3)}, vcc")
        A(f"global_load_dword {v(vFR)}, {v(T+2,2)}, off")
    A(f"v_readfirstlane_b32 {s(sW)}, {v(T)}")
    A(f"s_and_b32 {s(sT0)}, s2, 7")
    A(f"s_lshr_b32 {s(sT1)}, s2, 3")
    A(f"s_and_b32 {s(sJ)}, {s(sT1)}, 3")
    A(f"s_lshr_b32 {s(sT1)}, {s(sT1)}, 2")
    A(f"s_lshl_b32 {s(sT0)}, {s(sT0)}, 3")
    A(f"s_add_u32 {s(sHEAD)}, {s(sT0)}, {s(sT1)}")
    A(f"s_lshl_b32 {s(sT2)}, {s(sHEAD)}, 17")
    A(f"s_lshl_b32 {s(sWL)}, {s(sW)}, 11")
    A(f"s_lshl_b32 {s(sBASE)}, {s(sJ)}, 15")
    A(f"s_lshl_b32 {s(sQOFF)}, {s(sW)}, 13")
    A(f"s_add_u32 {s(sQOFF)}, {s(sQOFF)}, {s(sBASE)}")
    A(f"s_add_u32 {s(sQOF2)}, {s(sQOFF)}, 4096")
    A(f"s_add_u32 {s(sBASE)}, {s(sBASE)}, {s(sWL)}")
    A(f"s_and_b32 {s(sT3)}, {s(sHEAD)}, 30")
    A(f"s_lshl_b32 {s(sT3)}, {s(sT3)}, 1")
    A(f"s_add_u32 m0, {s(sWL)}, 32768")
    A(f"v_and_b32 {v(T)}, 31, v0")
    A(f"v_lshrrev_b32 {v(T+1)}, 5, v0")
    A(f"v_lshlrev_b32 {v(vQL)}, 6, {v(T)}")
    A(f"v_lshl_add_u32 {v(vQL)}, {v(T+1)}, 4, {v(vQL)}")
    A(f"v_bfe_u32 {v(T+2)}, v0, 4, 1")
    A(f"v_xor_b32 {v(T+2)}, {v(T+2)}, v0")
    A(f"v_lshlrev_b32 {v(vKL)}, 5, {v(T+2)}")
    A(f"v_lshlrev_b32 {v(vLIN)}, 4, v0")
    for srd in (SK, SQ, SV, SO, SW):
        A(f"s_mov_b32 {s(srd+2)}, 0x20000")
        A(f"s_mov_b32 {s(srd+3)}, 0x20000")
    A(f"s_mov_b32 {s(SD+2)}, 256")
    A(f"s_mov_b32 {s(SD+3)}, 0x20000")
    A(f"s_mov_b32 {s(sEPS)}, {hex(f2u(1e-6))}")
    A(f"s_add_u32 {s(sB1)}, {s(sBASE)}, 8192")
    A(f"s_add_u32 {s(sB2)}, {s(sBASE)}, 16384")
    A(f"s_add_u32 {s(sKOFF)}, {s(sBASE)}, 24576")
    A(f"s_mov_b32 {s(sVOFF)}, {s(sBASE)}")
    A(f"s_lshl_b32 {s(sT0)}, {s(sHEAD)}, 2")
    A(f"v_mov_b32 {v(vIDX)}, 0xdddddddd")
    A(f"v_mov_b32 {v(vONE)}, 1")
    A(f"v_add_u32 {v(vKW)}, {s(sWL)}, {v(vLIN)}")
    A(f"v_mov_b32 {v(vFL)}, {s(sT0)}")
    A(f"s_add_u32 {s(sT0)}, {s(sT0)}, {s(sJ)}")
    A(f"v_lshlrev_b32 {v(vFO)}, 4, {v(vKW)}")
    A(f"v_add_u32 {v(vFO)}, {s(sT0)}, {v(vFO)}")
    A(f"v_bfe_u32 {v(T+2)}, v0, 3, 1")
    A(f"v_lshl_add_u32 {v(T+2)}, {v(T)}, 1, {v(T+2)}")
    A(f"v_lshlrev_b32 {v(T+2)}, 4, {v(T+2)}")
    A(f"v_lshl_add_u32 {v(vAK0)}, {v(T+1)}, 10, {v(T+2)}")
    A(f"v_xor_b32 {v(vAK1)}, 16, {v(vAK0)}")
    late = []
    B = late.append
    B(f"v_bfe_u32 {v(T+2)}, v0, 2, 2")
    B(f"v_lshl_add_u32 {v(T+2)}, {v(T+1)}, 3, {v(T+2)}")
    B(f"v_lshlrev_b32 {v(vAV)}, 6, {v(T+2)}")
    B(f"v_and_b32 {v(T+2)}, 1, v0")
    B(f"v_lshl_add_u32 {v(vAV)}, {v(T+2)}, 5, {v(vAV)}")
    B(f"v_bfe_u32 {v(T+2)}, v0, 4, 1")
    B(f"v_lshl_add_u32 {v(vAV)}, {v(T+2)}, 4, {v(vAV)}")
    B(f"v_bfe_u32 {v(T+2)}, v0, 1, 1")
    B(f"v_lshl_add_u32 {v(vAV)}, {v(T+2)}, 3, {v(vAV)}")
    B(f"v_and_b32 {v(T+2)}, 15, v0")
    B(f"v_and_b32 {v(T+3)}, 48, v0")
    B(f"v_lshl_add_u32 {v(vOO)}, {v(T+2)}, 6, {v(T+3)}")
    B(f"v_and_b32 {v(T+2)}, 7, v0")
    B(f"v_lshlrev_b32 {v(T+2)}, {v(T+2)}, {v(vONE)}")
    B(f"v_bfe_i32 {v(T+3)}, {v(T+2)}, 0, 1")
    B(f"v_and_b32 {v(ONES)}, 0x3f803f80, {v(T+3)}")
    B(f"v_and_b32 {v(ONES+1)}, 0x3f803f80, {v(T+3)}")
    B(f"v_bfe_i32 {v(T+3)}, {v(T+2)}, 4, 1")
    B(f"v_and_b32 {v(ONES+2)}, 0x3f803f80, {v(T+3)}")
    B(f"v_and_b32 {v(ONES+3)}, 0x3f803f80, {v(T+3)}")
    B(f"v_mov_b32 {v(vTS)}, {hex(f2u(LOG2E))}")
    for r in range(O, RS + 16, 2): B(f"v_mov_b64 {v(r,2)}, 0")
    def take(k):
        E(late[:k]); del late[:k]
    take(opt.pre_n)
    A("s_waitcnt lgkmcnt(0)")
    A(stamp("kernarg"))
    A(f"s_add_u32 {s(SK)}, {s(sARG+2)}, {s(sT2)}")
    A(f"s_addc_u32 {s(SK+1)}, {s(sARG+3)}, 0")
    E(kload(0, s(sBASE)))
    A(f"s_add_u32 {s(SQ)}, {s(sARG)}, {s(sT2)}")
    A(f"s_addc_u32 {s(SQ+1)}, {s(sARG+1)}, 0")
    E(qload(0))
    A(f"s_load_dword {s(sTS)}, {s(sARG+6,2)}, {s(sT3)}")
    for srd, arg in ((SV, 4), (SO, 8), (SW, 12)):
        A(f"s_add_u32 {s(srd)}, {s(sARG+arg)}, {s(sT2)}")
        A(f"s_addc_u32 {s(srd+1)}, {s(sARG+arg+1)}, 0")
    A(f"s_mov_b32 {s(SD)}, {s(sARG+10)}")
    A(f"s_mov_b32 {s(SD+1)}, {s(sARG+11)}")
    A(f"s_and_b32 {s(sT1)}, {s(sHEAD)}, 1")
    A(f"s_lshl_b32 {s(sT1)}, {s(sT1)}, 4")
    g = -(-len(late) // 3)
    take(g); E(vdma2(s(sBASE), "V0"))
    take(g); E(qload(1))
    take(g); E(qload(2))
    A(stamp("issued"))
    A("s_waitcnt vmcnt(@K0)")
    A(stamp("K0"))
    E(norm_tile(KR, "dpp", False, T))
    E(kwrite(0))
    E(qload(3))
    A("s_waitcnt vmcnt(@Q0)")
    A(stamp("Q0"))
    h = norm_head(Q, "swap", True, T)
    E(h[:-2])
    A("s_waitcnt lgkmcnt(0)")
    A("s_barrier")
    A(stamp("BK"))
    for jj in range(2): A(k_read(jj, 0)); A(k_read(jj, 1))
    A(f"s_lshr_b32 {s(sTS)}, {s(sTS)}, {s(sT1)}")
    A(f"s_lshl_b32 {s(sTS)}, {s(sTS)}, 16")
    A(f"s_and_b32 {s(sT0)}, {s(sTS)}, 0x7fffffff")
    A(f"v_mul_f32 {v(vTS)}, {s(sTS)}, {v(vTS)}")
    A(f"s_cmp_gt_u32 {s(sT0)}, {hex(f2u(opt.thresh))}")
    A("s_cbranch_scc1 L_slow")
    A(h[-1])
    E(scale_tile(Q, T, T + 2))
    A("s_waitcnt lgkmcnt(0)")
    m0 = mf_step(-1, opt)
    A(k_read(2, 0))
    A(m0["q1"])
    A(k_read(2, 1)); A(k_read(3, 0)); A(k_read(3, 1))
    A(m0["q2"])
    E(kload(1, s(sB1)))
    A(f"s_add_u32 {s(sVOFF)}, {s(sVOFF)}, 8192")
    A(f"s_add_u32 m0, {s(sWL)}, {32768+8192}")
    A("s_nop 6")
    if opt.spin0: dspin("L_dspin0", opt.spin0)
    A(stamp("step0"))
    slots, blocks = {}, {}
    def add(n, key, x): slots.setdefault((n, key), []).append(x)
    def blk(n, key, x): blocks.setdefault((n, key), []).extend(x)
    def vdma(n, slot, keys=("q1", "q2", "p1", "r1"), tag="V"):
        add(n, keys[0], f"s_add_u32 {s(sVOFF)}, {s(sVOFF)}, 8192")
        add(n, keys[1], f"s_and_b32 {s(sVOFF)}, {s(sVOFF)}, 0x1ffff")
        add(n, keys[2], f"s_add_u32 m0, {s(sWL)}, {32768+slot*8192}")
        for x in vdma2(s(sVOFF), tag): add(n, keys[3], x)
    def kdma(n, slot):
        add(n, "q1", f"s_add_u32 {s(sKOFF)}, {s(sKOFF)}, 8192")
        add(n, "q2", f"s_and_b32 {s(sKOFF)}, {s(sKOFF)}, 0x1ffff")
        add(n, "p1", f"s_add_u32 m0, {s(sWL)}, {slot*8192}")
        for h_ in range(2):
            add(n, "r1", f"buffer_load_dwordx4 {v(vLIN)}, {s(SW,4)}, {s(sKOFF)} offen offset:{1024*h_}{ksc} lds")
    def kpub(n, t, so):
        w = kwrite(t); st = kstore(t, so)
        add(n, "r1", w[0]); add(n, "r2", w[1]); add(n, "p1", st[0]); add(n, "p2", st[1])
    std_slots(slots, 3, 14)
    def vreads(jj): return [v_read(jj, m_, t_) for m_ in range(2) for t_ in range(2)]
    blk(0, "r1", ["s_waitcnt vmcnt(@V0)", "s_barrier"] + vreads(0) + vreads(1) + vdma2(s(sVOFF), "V1"))
    blk(1, "q1", ["s_waitcnt lgkmcnt(8)"])
    add(1, "q2", "s_waitcnt lgkmcnt(0)")
    for key, x in zip(("p1", "r1", "p2", "r2"), vreads(2)): add(1, key, x)
    for key, x in zip(("p1", "r1", "p2", "r2"), vreads(3)): add(2, key, x)
    add(3, "q2", "s_waitcnt lgkmcnt(0)")
    for i in (1, 2, 3):
        blk(4 * i - 2, "p1", [f"s_waitcnt vmcnt(@Q{i})"] + norm_tile(Q + 8 * i, "swap", True, T))
    for x in kstore(0, s(sBASE)): add(7, "r1", x)
    for x in kload(2, s(sB2)): add(8, "r1", x)
    blk(12, "p1", ["s_waitcnt vmcnt(@K1)"] + norm_tile(KR + 8, "dpp", False, T))
    w = kwrite(1); add(12, "r1", w[0]); add(12, "r2", w[1])
    add(13, "p1", "s_waitcnt vmcnt(@V1)"); add(13, "p1", "s_barrier")
    for x in kload(3, s(sKOFF)): add(14, "p1", x)
    for x in kstore(1, s(sB1)): add(15, "p1", x)
    vdma(16, 2, tag="V2")
    add(19, "q1", "s_waitcnt vmcnt(@K2)")
    blk(19, "p1", norm_tile(KR + 16, "dpp", False, T))
    kpub(20, 2, s(sB2))
    add(23, "q1", "s_waitcnt vmcnt(@K3)")
    blk(23, "p1", norm_tile(KR + 24, "dpp", False, T))
    kpub(24, 3, s(sKOFF))
    vdma(28, 3, tag="V3")
    add(29, "p1", "s_waitcnt vmcnt(@S3)"); add(29, "p1", "s_barrier")
    add(29, "p2", f"buffer_store_byte {v(vONE)}, {v(vFO)}, {s(SD,4)}, 0 offen sc1")
    vdma(36, 0)
    add(44, "r1", f"buffer_load_dword {v(vFR)}, {v(vFL)}, {s(SD,4)}, 0 offen sc1")
    add(45, "p1", "s_waitcnt vmcnt(@V3)"); add(45, "p1", "s_barrier")
    add(50, "q1", "s_waitcnt vmcnt(0)")
    blk(50, "p1", [f"v_readfirstlane_b32 {s(sFLAG)}, {v(vFR)}"])
    add(51, "q1", f"s_cmp_eq_u32 {s(sFLAG)}, {FLAGOK}")
    add(51, "q2", "s_cbranch_scc0 L_wait")
    add(51, "q2", "L_back:")
    kdma(52, 0); vdma(52, 1, ("p1", "p2", "p2", "r2"))
    add(54, "q1", f"s_mov_b32 {s(sCNT)}, 3")
    if opt.amp >= 0 and opt.ampstep < 56: add(opt.ampstep, "p2", "s_memrealtime s[96:97]")
    for nn in opt.stepstamps.split(","): add(int(nn), "p2", stamp(f"step{nn}"))
    E(emit_steps(0, 56, opt, slots, blocks, skip={(0, "p1"), (0, "r1"), (0, "p2"), (0, "r2")}))
    slots, blocks = {}, {}
    std_slots(slots, 14, 30)
    for st in range(4):
        n = 64 + 16 * st
        kdma(n - 8, (st + 1) % 4)
        add(n - 3, "p1", "s_waitcnt vmcnt(4)"); add(n - 3, "p1", "s_barrier")
        vdma(n, (st + 2) % 4)
    add(116, "r1", k_read(63, 0)); add(116, "r2", k_read(63, 1))
    add(119, "q1", f"s_sub_u32 {s(sCNT)}, {s(sCNT)}, 1")
    add(119, "q2", f"s_cmp_lg_u32 {s(sCNT)}, 0")
    A(".p2align 6")
    A("L_loop:")
    E(emit_steps(56, 120, opt, slots, blocks))
    A("s_cbranch_scc1 L_loop")
    A(stamp("loopend"))
    slots, blocks = {}, {}
    add(248, "r1", v_read(63, 0, 0)); add(248, "r2", v_read(63, 0, 1))
    add(249, "q2", "s_waitcnt lgkmcnt(2)")
    add(249, "r1", v_read(63, 1, 0)); add(249, "r2", v_read(63, 1, 1))
    add(250, "q2", "s_waitcnt lgkmcnt(2)")
    add(250, "r1", "s_waitcnt lgkmcnt(0)")
    for i, n in ((0, 251), (1, 253)):
        blk(n, "p1", epi_valu(T + 2 * i, O + 16 * i, RS + 4 * i))
        st = epi_store(i, O + 16 * i); add(n, "p1", st[0]); add(n, "r1", st[1])
    E(emit_steps(248, 255, opt, slots, blocks))
    m = mf_step(255, opt); m2 = mf_step(256, opt); ex = exps(255)
    A("; ---- step 255")
    A(m["p1"]); E(ex[0:3]); A(m["r1"]); E(ex[3:4]); A(m["p2"]); E(ex[4:7]); A(m["r2"]); E(ex[7:10])
    e2 = epi_valu(T + 4, O + 32, RS + 8)
    E(e2[:10])
    A(m2["p1"]); E(ex[10:13]); A(m2["r1"]); E(ex[13:16])
    E(e2[10:12])
    A(m2["r2"]); E(e2[12:14]); A(m2["p2"]); E(e2[14:])
    E(epi_store(2, O + 32))
    e3 = epi_valu(T + 6, O + 48, RS + 12)
    A(e3[0]); A("s_nop 0")
    E(e3[2:])
    E(epi_store(3, O + 48))
    if opt.stamps:
        A(stamp("stored"))
        A("s_waitcnt vmcnt(0)")
        A(stamp("done"))
        A("s_waitcnt lgkmcnt(0)")
        for i in range(len(STAMP_NAMES)): A(f"v_writelane_b32 {v(T)}, {s(62+2*i)}, {i}")
        A(f"s_lshl_b32 {s(sT0)}, s2, 2")
        A(f"s_add_u32 {s(sT0)}, {s(sT0)}, {s(sW)}")
        A(f"s_lshl_b32 {s(sT0)}, {s(sT0)}, 8")
        A(f"s_add_u32 {s(sT0)}, {s(sT0)}, 0x8000000")
        A(f"v_lshlrev_b32 {v(T+1)}, 2, v0")
        A(f"v_add_u32 {v(T+1)}, {s(sT0)}, {v(T+1)}")
        A(f"global_store_dword {v(T+1)}, {v(T)}, {s(sARG+12,2)}")
    if opt.spin: dspin("L_dspin", opt.spin)
    if opt.amp >= 0:
        if opt.amp != 999:
            A(f"s_cmp_lg_u32 s2, {opt.amp}"); A("s_cbranch_scc1 L_end")
        if opt.ampstep >= 56:
            A("s_waitcnt vmcnt(0)"); A("s_memrealtime s[96:97]"); A("s_waitcnt lgkmcnt(0)"); A("s_sub_u32 s96, s96, 2500")
        A("s_sub_u32 s96, s96, s98"); A("s_max_i32 s96, s96, 0"); A("s_mul_i32 s96, s96, 10"); A("s_add_u32 s96, s96, 4000")
        dspin("L_dspin", "s96")
    A("L_end:")
    A("s_endpgm")
    A("L_code_end:")
    A("L_wait:")
    A(f"s_mov_b32 {s(sCNT2)}, {1 if opt.force_help else 64}")
    A("L_spin:")
    A(f"buffer_load_dword {v(vFR)}, {v(vFL)}, {s(SD,4)}, 0 offen sc1")
    A("s_waitcnt vmcnt(0)")
    A(f"v_readfirstlane_b32 {s(sFLAG)}, {v(vFR)}")
    A("s_nop 3")
    A(f"s_cmp_eq_u32 {s(sFLAG)}, {FLAGOK}")
    A("s_cbranch_scc1 L_back")
    A(f"s_sub_u32 {s(sCNT2)}, {s(sCNT2)}, 1")
    A(f"s_cmp_lg_u32 {s(sCNT2)}, 0")
    A("s_cbranch_scc1 L_spin")
    A(f"s_mov_b32 {s(sCNT2)}, 12")
    A(f"s_mov_b32 {s(sT0)}, {s(sKOFF)}")
    A("L_help:")
    A(f"s_add_u32 {s(sT0)}, {s(sT0)}, 8192")
    A(f"s_and_b32 {s(sT0)}, {s(sT0)}, 0x1ffff")
    E(kload(0, s(sT0)))
    A("s_waitcnt vmcnt(0)")
    E(norm_tile(KR, "dpp", False, T))
    E(kstore(0, s(sT0)))
    A("s_waitcnt vmcnt(0)")
    A(f"s_sub_u32 {s(sCNT2)}, {s(sCNT2)}, 1")
    A(f"s_cmp_lg_u32 {s(sCNT2)}, 0")
    A("s_cbranch_scc1 L_help")
    A("s_branch L_back")
    A("L_slow:")
    A("s_waitcnt vmcnt(0) lgkmcnt(0)")
    for i in range(4): E(norm_tile(Q + 8 * i, "swap", True, T))
    MX = T + 8
    for i in range(4): A(f"v_mov_b32 {v(MX+i)}, 0xff800000")
    A(f"v_add_u32 {v(vAV)}, {s(sWL)}, {v(vAV)}")
    A(f"s_add_u32 m0, {s(sWL)}, 32768")
    A(f"s_mov_b32 {s(sKOFF)}, 0")
    A("L_slow_kv:")
    A(f"buffer_load_dwordx4 {v(KR,4)}, {v(vQL)}, {s(SK,4)}, {s(sKOFF)} offen")
    A(f"buffer_load_dwordx4 {v(KR+4,4)}, {v(vQL)}, {s(SK,4)}, {s(sKOFF)} offen offset:32")
    E(vdma2(s(sKOFF)))
    A("s_waitcnt vmcnt(0)")
    for m_ in range(2):
        for t in range(2): A(v_read(0, m_, t))
    E(norm_tile(KR, "swap", False, T))
    A("s_waitcnt lgkmcnt(0)")
    A("s_nop 1")
    for i in range(4):
        A(f"v_mfma_f32_32x32x16_bf16 {v(SB+16*i,16)}, {v(KR,4)}, {v(Q+8*i,4)}, 0")
        A(f"v_mfma_f32_32x32x16_bf16 {v(SB+16*i,16)}, {v(KR+4,4)}, {v(Q+8*i+4,4)}, {v(SB+16*i,16)}")
    A("s_nop 15")
    for i in range(4):
        sb = SB + 16 * i
        A(f"v_max3_f32 {v(T)}, {v(sb)}, {v(sb+1)}, {v(MX+i)}")
        for r in range(2, 16, 2): A(f"v_max3_f32 {v(T)}, {v(sb+r)}, {v(sb+r+1)}, {v(T)}")
        A(f"v_mov_b32 {v(T+1)}, {v(T)}")
        A("s_nop 1")
        A(f"v_permlane32_swap_b32 {v(T)}, {v(T+1)}")
        A("s_nop 0")
        A(f"v_max_f32 {v(T)}, {v(T)}, {v(T+1)}")
        A(f"v_sub_f32 {v(T+2)}, {v(MX+i)}, {v(T)}")
        A(f"v_exp_f32 {v(T+2)}, {v(T+2)}")
        A(f"v_mov_b32 {v(MX+i)}, {v(T)}")
        for r in range(16): A(f"v_sub_f32 {v(sb+r)}, {v(sb+r)}, {v(T)}")
        for r in range(16): A(f"v_exp_f32 {v(sb+r)}, {v(sb+r)}")
        for r in range(16): A(f"v_mul_f32 {v(O+16*i+r)}, {v(O+16*i+r)}, {v(T+2)}")
        A(f"v_mul_f32 {v(RS+4*i)}, {v(RS+4*i)}, {v(T+2)}")
        A("s_nop 1")
        A(f"v_smfmac_f32_32x32x32_bf16 {v(O+16*i,16)}, {a(aV,4)}, {v(sb,8)}, {v(vIDX)}")
        A(f"v_smfmac_f32_16x16x64_bf16 {v(RS+4*i,4)}, {v(ONES,4)}, {v(sb,8)}, {v(vIDX)}")
        A(f"v_smfmac_f32_32x32x32_bf16 {v(O+16*i,16)}, {a(aV+4,4)}, {v(sb+8,8)}, {v(vIDX)}")
        A(f"v_smfmac_f32_16x16x64_bf16 {v(RS+4*i,4)}, {v(ONES,4)}, {v(sb+8,8)}, {v(vIDX)}")
    A("s_nop 15")
    A(f"s_add_u32 {s(sKOFF)}, {s(sKOFF)}, 2048")
    A(f"s_cmp_lt_u32 {s(sKOFF)}, 0x20000")
    A("s_cbranch_scc1 L_slow_kv")
    for i in range(4):
        E(epi_valu(T + 2 * (i % 2), O + 16 * i, RS + 4 * i)); E(epi_store(i, O + 16 * i))
    A("s_endpgm")
    return resolve_waits(L)

HEAD = open("standalone__qk_norm__prompt.s.ref").read().split("; Override launch")[0]

def render(opt):
    body = gen(opt)
    o = HEAD
    o += "; Override launch geometry by editing the next line (default: block=256,\n"
    o += "; @launch grid=(256,1,1) block=(256,1,1) lds=65536\n"
    o += f""".amdgcn_target "amdgcn-amd-amdhsa--gfx950"
.text
.globl {NAME}_kernel
.p2align 8
.type {NAME}_kernel,@function
{NAME}_kernel:
"""
    for x in body:
        if x.startswith("; stamp"): continue
        o += (x if x.endswith(":") or x.startswith(".") else "    " + x) + "\n"
    o += f""".section .rodata,"a"
.p2align 6
.amdhsa_kernel {NAME}_kernel
  .amdhsa_next_free_vgpr {NV+NA}
  .amdhsa_next_free_sgpr 102
  .amdhsa_accum_offset {NV}
  .amdhsa_group_segment_fixed_size 0
  .amdhsa_kernarg_size 56
  .amdhsa_user_sgpr_count 2
  .amdhsa_user_sgpr_kernarg_segment_ptr 1
  .amdhsa_system_sgpr_workgroup_id_x 1
.end_amdhsa_kernel
"""
    return o

if __name__ == "__main__":
    opt = Opt()
    out = sys.argv[1]
    for kv in sys.argv[2:]:
        k, val = kv.split("=")
        cur = getattr(opt, k)
        setattr(opt, k, type(cur)(val) if not isinstance(cur, bool) else val in ("1", "True"))
    open(out, "w").write(render(opt))
    if opt.stamps: open(out + ".stamps", "w").write(" ".join(STAMP_NAMES))
```

```python
import sys, struct, re
NAME = "standalone__qk_norm__prompt"

def f2u(x): return struct.unpack("<I", struct.pack("<f", x))[0]
LOG2E = 1.4426950408889634

class Opt:
    thresh = 16.0
    cinit = "4.0"
    force_help = False
    stamps = 0
    cyc = False
    pfkb = 12
    hop = True
    lprio = 3
    ldsb = 65536
    b3 = 37
    pre_n = 24
    osc = 'nt'
    spin = 0
    amp = -1
    ampstep = 2
    ampfrom = -1
    ampsub = 0
    stepstamps = "1,7,14,30,62,126,190,247"

SQ, SK, SV, SO, SW, SD = 4, 8, 12, 16, 20, 24
sW, sJ, sHEAD, sTS = 28, 29, 30, 31
sBASE, sVOFF, sKOFF, sCNT = 32, 33, 34, 35
sARG = 36
sT0, sT1, sT2, sT3 = 50, 51, 52, 53
sFLAG = 54
sWL = 55
sQOFF = 56
sQOF2 = 57
sCH = 58
sSLOT = 59
sCNT2 = 60
sEPS = 61
vQL, vLIN, vAV, vKW, vIDX, vKL, vAK0, vAK1, vOO, vTS, vX = 1, 2, 3, 4, 5, 6, 7, 8, 9, 10, 11
T = 12
ONES = 20
KR = 24
Q = 32
O = 64
RS = 128
SB = 144
NV = 192
NSB = 3
vFO, vONE, vFL, vFR = 3, 5, 7, 8
aK = 0
aV = 32
NA = 64

def v(a, n=1): return f"v{a}" if n == 1 else f"v[{a}:{a+n-1}]"
def a(x, n=1): return f"a{x}" if n == 1 else f"a[{x}:{x+n-1}]"
def s(x, n=1): return f"s{x}" if n == 1 else f"s[{x}:{x+n-1}]"

def norm_tile(t, mode, isq, tmp, U):
    x, y = tmp, tmp + 1
    unp = []
    for i in range(8):
        w = U[i % len(U)]
        unp.append([f"v_lshlrev_b32 {v(w)}, 16, {v(t+i)}", f"v_and_b32 {v(w+1)}, 0xffff0000, {v(t+i)}"])
    early = [z for i in range(len(U)) for z in unp[i]]
    used = [0]
    def pad(n):
        o = early[used[0]:used[0] + n]; used[0] += len(o)
        if len(o) < n: o.append(f"s_nop {n-len(o)-1}")
        return o
    o = [f"v_dot2_f32_bf16 {v(x)}, {v(t+i)}, {v(t+i)}, {'0' if i==0 else v(x)}" for i in range(8)]
    o += pad(3)
    if mode == "swap":
        o += [f"v_mov_b32 {v(y)}, {v(x)}"] + pad(2) + [f"v_permlane32_swap_b32 {v(x)}, {v(y)}"] + pad(1)
        o += [f"v_add_f32 {v(x)}, {v(x)}, {v(y)}"]
    else:
        o.append(f"v_add_f32_dpp {v(x)}, {v(x)}, {v(x)} quad_perm:[1,0,3,2] row_mask:0xf bank_mask:0xf")
    o += [f"v_sqrt_f32 {v(x)}, {v(x)}"] + pad(1) + [f"v_add_f32 {v(x)}, {s(sEPS)}, {v(x)}", f"v_rcp_f32 {v(x)}, {v(x)}"] + pad(1)
    tail = []
    if isq: tail.append(f"v_mul_f32 {v(x)}, {v(vTS)}, {v(x)}")
    for i in range(8):
        w = U[i % len(U)]
        tail += [z for k, z in enumerate(unp[i]) if 2 * i + k >= used[0]]
        tail += [f"v_pk_mul_f32 {v(w,2)}, {v(w,2)}, {v(x,2)} op_sel_hi:[1,0]",
                 f"v_cvt_pk_bf16_f32 {v(t+i)}, {v(w)}, {v(w+1)}"]
    return o, tail
def norm_k(): h, t = norm_tile(KR, "dpp", False, T, [T + 2, T + 4, T + 6]); return h + t
def norm_q(i, U): h, t = norm_tile(Q + 8 * i, "swap", True, T, U); return h + t

def epi_valu(tmp, oreg, rsreg):
    o = [f"v_rcp_f32 {v(tmp)}, {v(rsreg)}", "s_nop 0"]
    for r in range(0, 16, 2):
        o.append(f"v_pk_mul_f32 {v(oreg+r,2)}, {v(oreg+r,2)}, {v(tmp,2)} op_sel_hi:[1,0]")
    for r in range(8):
        o.append(f"v_cvt_pk_bf16_f32 {v(oreg+r)}, {v(oreg+2*r)}, {v(oreg+2*r+1)}")
    for r in range(4):
        o.append(f"v_permlane16_swap_b32 {v(oreg+r)}, {v(oreg+4+r)}")
    return o
OSC = ""
def epi_store(i, oreg):
    so = s(sQOFF) if i < 2 else s(sQOF2)
    return [f"buffer_store_dwordx4 {v(oreg,4)}, {v(vOO)}, {s(SO,4)}, {so} offen offset:{(i%2)*2048} {OSC}",
            f"buffer_store_dwordx4 {v(oreg+4,4)}, {v(vOO)}, {s(SO,4)}, {so} offen offset:{(i%2)*2048+1024} {OSC}"]

def tile_of(n):
    if 248 <= n < 256: return 62 + (n - 248) % 2, (n - 248) // 2
    if 0 <= n < 16: return n % 4, n // 4
    return n // 4, n % 4
def buf_of(jj): return 2 if jj == 63 else (jj if jj in (2, 3) else jj % 2)

def resolve_waits(L):
    out = []
    for i, x in enumerate(L):
        m = re.search(r"vmcnt\(@(\w+)\)", x)
        if m:
            n = 0
            for y in reversed(L[:i]):
                if y.startswith(("buffer_", "global_")):
                    if y.endswith(";#" + m.group(1)): break
                    n += 1
            else:
                raise Exception("tag not found " + x)
            assert n < 64
            x = x.replace(m.group(0), f"vmcnt({n})") + "   ; " + m.group(1)
        out.append(x)
    return out

def mf_step(n, opt):
    n1, n0 = n + 1, n - 1
    j1, i1 = tile_of(n1)
    j0, i0 = tile_of(n0)
    nxt, prv = SB + 16 * (n1 % NSB), SB + 16 * (n0 % NSB)
    kf, vf = aK + 8 * buf_of(j1), aV + 8 * buf_of(j0)
    return {
        "q1": f"v_mfma_f32_32x32x16_bf16 {v(nxt,16)}, {a(kf,4)}, {v(Q+8*i1,4)}, {opt.cinit}",
        "q2": f"v_mfma_f32_32x32x16_bf16 {v(nxt,16)}, {a(kf+4,4)}, {v(Q+8*i1+4,4)}, {v(nxt,16)}",
        "p1": f"v_smfmac_f32_32x32x32_bf16 {v(O+16*i0,16)}, {a(vf,4)}, {v(prv,8)}, {v(vIDX)}",
        "r1": f"v_smfmac_f32_16x16x64_bf16 {v(RS+4*i0,4)}, {v(ONES,4)}, {v(prv,8)}, {v(vIDX)}",
        "p2": f"v_smfmac_f32_32x32x32_bf16 {v(O+16*i0,16)}, {a(vf+4,4)}, {v(prv+8,8)}, {v(vIDX)}",
        "r2": f"v_smfmac_f32_16x16x64_bf16 {v(RS+4*i0,4)}, {v(ONES,4)}, {v(prv+8,8)}, {v(vIDX)}"}

ORDER = ["q1", "q2", "p1", "r1", "p2", "r2"]
PAT = [4, 4, 3, 1, 3, 1]

def k_read(jj, f):
    return f"ds_read_b128 {a(aK+8*buf_of(jj)+4*f,4)}, {v(vAK0+f)} offset:{(jj%16)*2048}"
def v_read(jj, m, t):
    return f"ds_read_b64_tr_b16 {a(aV+8*buf_of(jj)+4*m+2*t,2)}, {v(vAV)} offset:{32768+(jj%16)*2048+1024*m+256*t}"
def vreads(jj): return [v_read(jj, m_, t_) for m_ in range(2) for t_ in range(2)]
def exps(n):
    cur = SB + 16 * (n % NSB)
    return [f"v_exp_f32 {v(cur+e)}, {v(cur+e)}" for e in range(16)]

def emit_steps(n_lo, n_hi, opt, slots, blocks, skip=()):
    out = []
    for n in range(n_lo, n_hi):
        m = mf_step(n, opt)
        ex = exps(n)
        k = 0
        for key, c in zip(ORDER, PAT):
            out += blocks.get((n, key), [])
            if (n, key) not in skip: out.append(m[key])
            out += slots.get((n, key), [])
            out += ex[k:k+c]
            k += c
    return out

STAMP_NAMES = []
HOPSTRIDE = 2
def gen(opt):
    global OSC
    OSC = opt.osc.replace('_', ' ')
    STAMP_NAMES.clear()
    def stamp(name):
        if not opt.stamps or (opt.stamps == 2 and name not in ("entry", "done")): return "; stamp " + name
        i = len(STAMP_NAMES); STAMP_NAMES.append(name)
        assert i < 17
        return f"{'s_memtime' if opt.cyc else 's_memrealtime'} {s(62+2*i,2)}"
    FLAGOK = '0x02020202' if opt.force_help else '0x01010101'
    def kload(so):
        return [f"buffer_load_dwordx4 {v(KR,4)}, {v(vKL)}, {s(SK,4)}, {so} offen",
                f"buffer_load_dwordx4 {v(KR+4,4)}, {v(vKL)}, {s(SK,4)}, {so} offen offset:16 ;#K0"]
    def qload(i):
        so = s(sQOFF) if i < 2 else s(sQOF2)
        return [f"buffer_load_dwordx4 {v(Q+8*i,4)}, {v(vQL)}, {s(SQ,4)}, {so} offen offset:{(i%2)*2048}",
                f"buffer_load_dwordx4 {v(Q+8*i+4,4)}, {v(vQL)}, {s(SQ,4)}, {so} offen offset:{(i%2)*2048+32} ;#Q{i}"]
    def kwrite(st):
        return [f"ds_write_b128 {v(vKW)}, {v(KR,4)} offset:{8192*st}",
                f"ds_write_b128 {v(vKW)}, {v(KR+4,4)} offset:{8192*st+1024}"]
    def kstore(st):
        return [f"s_add_u32 {s(sT0)}, {s(sBASE)}, {8192*st}",
                f"buffer_store_dwordx4 {v(KR,4)}, {v(vLIN)}, {s(SW,4)}, {s(sT0)} offen sc1",
                f"buffer_store_dwordx4 {v(KR+4,4)}, {v(vLIN)}, {s(SW,4)}, {s(sT0)} offen offset:1024 sc1"]
    def kraw(st):
        return [f"ds_read_b128 {v(KR,4)}, {v(vKW)} offset:{8192*st}",
                f"ds_read_b128 {v(KR+4,4)}, {v(vKW)} offset:{8192*st+1024}"]
    def srd_base(srd, arg):
        return [f"s_add_u32 {s(srd)}, {s(sARG+arg)}, {s(sT2)}", f"s_addc_u32 {s(srd+1)}, {s(sARG+arg+1)}, 0"]
    def srd_dbg(): return [f"s_mov_b32 {s(SD)}, {s(sARG+10)}", f"s_mov_b32 {s(SD+1)}, {s(sARG+11)}"]
    def t_check(lbl):
        return [f"s_lshr_b32 {s(sTS)}, {s(sTS)}, {s(sT1)}", f"s_lshl_b32 {s(sTS)}, {s(sTS)}, 16",
                f"s_and_b32 {s(sT0)}, {s(sTS)}, 0x7fffffff",
                f"s_cmp_gt_u32 {s(sT0)}, {hex(f2u(opt.thresh))}",
                f"s_cbranch_scc1 {lbl}"]
    nbar = {"c": 0, "l": 0}
    L = []
    A = L.append
    def E(x): L.extend(x)
    A("s_cmp_ge_u32 s2, 256")
    A("s_cbranch_scc1 L_end")
    A(stamp("entry"))
    if opt.spin or opt.amp >= 0: A("s_memrealtime s[98:99]")
    A(f"s_load_dwordx8 {s(sARG,8)}, s[0:1], 0")
    A(f"s_load_dwordx4 {s(sARG+8,4)}, s[0:1], 32")
    A(f"s_load_dwordx2 {s(sARG+12,2)}, s[0:1], 48")
    if opt.pfkb:
        A(f"s_getpc_b64 {s(sT0,2)}")
        A(f"v_lshlrev_b32 {v(T+2)}, 7, v0")
        A(f"v_min_u32 {v(T+2)}, {opt.pfkb*1024}, {v(T+2)}")
        A(f"v_mov_b32 {v(T+3)}, {s(sT1)}")
        A(f"v_add_co_u32 {v(T+2)}, vcc, {s(sT0)}, {v(T+2)}")
    A(f"v_lshrrev_b32 {v(T)}, 6, v0")
    A(f"v_and_b32 v0, 63, v0")
    if opt.pfkb:
        A(f"v_addc_co_u32 {v(T+3)}, vcc, 0, {v(T+3)}, vcc")
        A(f"global_load_dword {v(vX)}, {v(T+2,2)}, off")
    A(f"v_readfirstlane_b32 {s(sW)}, {v(T)}")
    A(f"s_and_b32 {s(sT0)}, s2, 7")
    A(f"s_lshr_b32 {s(sT1)}, s2, 3")
    A(f"s_and_b32 {s(sJ)}, {s(sT1)}, 3")
    A(f"s_lshr_b32 {s(sT1)}, {s(sT1)}, 2")
    A(f"s_lshl_b32 {s(sT0)}, {s(sT0)}, 3")
    A(f"s_add_u32 {s(sHEAD)}, {s(sT0)}, {s(sT1)}")
    A(f"s_lshl_b32 {s(sT2)}, {s(sHEAD)}, 17")
    A(f"s_lshl_b32 {s(sCH)}, {s(sJ)}, 15")
    A(f"s_and_b32 {s(sT3)}, {s(sHEAD)}, 30")
    A(f"s_lshl_b32 {s(sT3)}, {s(sT3)}, 1")
    A(f"s_and_b32 {s(sT1)}, {s(sHEAD)}, 1")
    A(f"s_lshl_b32 {s(sT1)}, {s(sT1)}, 4")
    A(f"v_bfe_u32 {v(T+2)}, v0, 4, 1")
    A(f"v_xor_b32 {v(T+2)}, {v(T+2)}, v0")
    A(f"v_lshlrev_b32 {v(vKL)}, 5, {v(T+2)}")
    A(f"v_lshlrev_b32 {v(vLIN)}, 4, v0")
    for srd in (SK, SQ, SV, SO, SW):
        A(f"s_mov_b32 {s(srd+2)}, 0x20000")
        A(f"s_mov_b32 {s(srd+3)}, 0x20000")
    A(f"s_mov_b32 {s(SD+2)}, 256")
    A(f"s_mov_b32 {s(SD+3)}, 0x20000")
    A(f"s_mov_b32 {s(sEPS)}, {hex(f2u(1e-6))}")
    A(f"s_cmp_ge_u32 {s(sW)}, 4")
    A("s_cbranch_scc1 L_loader")
    A("s_mov_b64 vcc, 0")
    A(f"s_lshl_b32 {s(sWL)}, {s(sW)}, 11")
    A(f"s_lshl_b32 {s(sQOFF)}, {s(sW)}, 13")
    A(f"s_add_u32 {s(sQOFF)}, {s(sQOFF)}, {s(sCH)}")
    A(f"s_add_u32 {s(sQOF2)}, {s(sQOFF)}, 4096")
    A(f"s_add_u32 {s(sBASE)}, {s(sCH)}, {s(sWL)}")
    A(f"v_and_b32 {v(T)}, 31, v0")
    A(f"v_lshrrev_b32 {v(T+1)}, 5, v0")
    A(f"v_lshlrev_b32 {v(vQL)}, 6, {v(T)}")
    A(f"v_lshl_add_u32 {v(vQL)}, {v(T+1)}, 4, {v(vQL)}")
    late = []
    B = late.append
    B(f"v_mov_b32 {v(vIDX)}, 0xdddddddd")
    B(f"v_add_u32 {v(vKW)}, {s(sWL)}, {v(vLIN)}")
    B(f"v_bfe_u32 {v(T+2)}, v0, 3, 1")
    B(f"v_lshl_add_u32 {v(T+2)}, {v(T)}, 1, {v(T+2)}")
    B(f"v_lshlrev_b32 {v(T+2)}, 4, {v(T+2)}")
    B(f"v_lshl_add_u32 {v(vAK0)}, {v(T+1)}, 10, {v(T+2)}")
    B(f"v_xor_b32 {v(vAK1)}, 16, {v(vAK0)}")
    B(f"v_bfe_u32 {v(T+2)}, v0, 2, 2")
    B(f"v_lshl_add_u32 {v(T+2)}, {v(T+1)}, 3, {v(T+2)}")
    B(f"v_lshlrev_b32 {v(vAV)}, 6, {v(T+2)}")
    B(f"v_and_b32 {v(T+2)}, 1, v0")
    B(f"v_lshl_add_u32 {v(vAV)}, {v(T+2)}, 5, {v(vAV)}")
    B(f"v_bfe_u32 {v(T+2)}, v0, 4, 1")
    B(f"v_lshl_add_u32 {v(vAV)}, {v(T+2)}, 4, {v(vAV)}")
    B(f"v_bfe_u32 {v(T+2)}, v0, 1, 1")
    B(f"v_lshl_add_u32 {v(vAV)}, {v(T+2)}, 3, {v(vAV)}")
    B(f"v_and_b32 {v(T+2)}, 15, v0")
    B(f"v_and_b32 {v(T+3)}, 48, v0")
    B(f"v_lshl_add_u32 {v(vOO)}, {v(T+2)}, 6, {v(T+3)}")
    B(f"v_and_b32 {v(T+2)}, 7, v0")
    B(f"v_lshlrev_b32_e64 {v(T+2)}, {v(T+2)}, 1")
    B(f"v_bfe_i32 {v(T+3)}, {v(T+2)}, 0, 1")
    B(f"v_and_b32 {v(ONES)}, 0x3f803f80, {v(T+3)}")
    B(f"v_and_b32 {v(ONES+1)}, 0x3f803f80, {v(T+3)}")
    B(f"v_bfe_i32 {v(T+3)}, {v(T+2)}, 4, 1")
    B(f"v_and_b32 {v(ONES+2)}, 0x3f803f80, {v(T+3)}")
    B(f"v_and_b32 {v(ONES+3)}, 0x3f803f80, {v(T+3)}")
    B(f"v_mov_b32 {v(vTS)}, {hex(f2u(LOG2E))}")
    for r in range(O, RS + 16, 2): B(f"v_mov_b64 {v(r,2)}, 0")
    def take(k):
        E(late[:k]); del late[:k]
    take(opt.pre_n)
    A("s_waitcnt lgkmcnt(0)")
    A(stamp("kernarg"))
    E(srd_base(SK, 2)); E(kload(s(sBASE)))
    E(srd_base(SQ, 0)); E(qload(0))
    A(f"s_load_dword {s(sTS)}, {s(sARG+6,2)}, {s(sT3)}")
    E(srd_base(SV, 4)); E(srd_base(SO, 8)); E(srd_base(SW, 12)); E(srd_dbg())
    take(8)
    E(qload(1))
    A("s_branch L_main")
    partA = L
    L = []
    A = L.append
    def bar_l(): nbar["l"] += 1; return "s_barrier"
    def dma8(srd, so_reg, lds, tag, extra=""):
        o = []
        for hlf in range(2):
            if isinstance(lds, tuple): o.append(f"s_add_u32 m0, {s(lds[0])}, {lds[1] + 4096*hlf}")
            else: o.append(f"s_mov_b32 m0, {lds + 4096*hlf}")
            if hlf: o.append(f"s_add_u32 {s(sT0)}, {s(so_reg)}, 4096")
            else: o.append("s_nop 0")
            for k in range(4):
                o.append(f"buffer_load_dwordx4 {v(vLIN)}, {s(srd,4)}, {s(sT0 if hlf else so_reg)} offen offset:{1024*k}{extra} lds")
        o[-1] += f" ;#{tag}"
        return o
    def vstage(st):
        return [f"s_add_u32 {s(sVOFF)}, {s(sCH)}, {8192*st}", f"s_and_b32 {s(sVOFF)}, {s(sVOFF)}, 0x1ffff"] + \
               dma8(SV, sVOFF, 32768 + 8192 * (st % 4), f"V{st}")
    def kstage(st):
        return [f"s_add_u32 {s(sKOFF)}, {s(sCH)}, {8192*st}", f"s_and_b32 {s(sKOFF)}, {s(sKOFF)}, 0x1ffff"] + \
               dma8(SW, sKOFF, 8192 * (st % 4), f"K{st}", " sc1")
    def rawk(st):
        o = []
        for hlf in range(2):
            o.append(f"s_add_u32 {s(sT0)}, {s(sCH)}, {8192*st + 4096*hlf}")
            for f in range(2):
                o += [f"s_mov_b32 m0, {8192*st + 4096*hlf + 1008*f}", "s_nop 0"]
                for k in range(2):
                    o.append(f"buffer_load_dwordx4 {v(vKL)}, {s(SK,4)}, {s(sT0)} offen offset:{2048*k + 16*f} lds")
        o[-1] += f" ;#R{st}"
        return o
    def publish(st, base):
        o = [f"ds_read_b128 {v(base+4*k,4)}, {v(vLIN)} offset:{8192*st + 1024*k}" for k in range(8)]
        o += [f"s_add_u32 {s(sT0)}, {s(sCH)}, {8192*st}", f"s_add_u32 {s(sT3)}, {s(sCH)}, {8192*st+4096}", "s_waitcnt lgkmcnt(0)"]
        o += [f"buffer_store_dwordx4 {v(base+4*k,4)}, {v(vLIN)}, {s(SW,4)}, {s(sT0 if k < 4 else sT3)} offen offset:{1024*(k%4)} sc1" for k in range(8)]
        return o
    A("L_loader:")
    if opt.lprio: A(f"s_setprio {opt.lprio}")
    A("s_mov_b64 vcc, -1")
    A(f"s_lshl_b32 {s(sT0)}, {s(sHEAD)}, 2")
    A(f"v_mov_b32 {v(vFL)}, {s(sT0)}")
    A(f"s_add_u32 {s(sT0)}, {s(sT0)}, {s(sJ)}")
    A(f"v_lshl_add_u32 {v(vFO)}, v0, 8, {s(sT0)}")
    A(f"v_mov_b32 {v(vONE)}, 1")
    A(f"v_mov_b32 {v(vOO)}, -1")
    A("s_waitcnt lgkmcnt(0)")
    A(f"s_load_dword {s(sTS)}, {s(sARG+6,2)}, {s(sT3)}")
    E(srd_base(SK, 2)); E(srd_base(SQ, 0)); E(srd_base(SV, 4)); E(srd_base(SO, 8)); E(srd_base(SW, 12)); E(srd_dbg())
    E(vstage(0))
    A("s_waitcnt lgkmcnt(0)")
    A(bar_l())
    E(t_check("L_loader_slow"))
    E(rawk(1))
    A("s_waitcnt vmcnt(@V0)"); A(bar_l())
    E(vstage(1))
    A("@HOP 1")
    A("s_waitcnt vmcnt(@R1)")
    E(rawk(2))
    A(bar_l())
    A("s_waitcnt vmcnt(@V1)")
    E(rawk(3))
    A(bar_l())
    E(vstage(2))
    A("s_waitcnt vmcnt(@R2)"); A(bar_l())
    A("s_waitcnt vmcnt(@R3)")
    E(vstage(3))
    A(bar_l())
    A("@HOP 1")
    A("s_waitcnt vmcnt(@V2)"); A(bar_l())
    A(f"buffer_store_byte {v(vONE)}, {v(vFO)}, {s(SD,4)}, 0 offen sc1")
    E(vstage(4))
    A("s_waitcnt vmcnt(@V3)"); A(bar_l())
    A(f"s_mov_b32 {s(sCNT2)}, {1 if opt.force_help else 256}")
    A("L_spin:")
    A(f"buffer_load_dword {v(vFR)}, {v(vFL)}, {s(SD,4)}, 0 offen sc1")
    A("s_waitcnt vmcnt(0)")
    A(f"v_readfirstlane_b32 {s(sFLAG)}, {v(vFR)}")
    A(f"s_sub_u32 {s(sCNT2)}, {s(sCNT2)}, 1")
    A("s_nop 2")
    A(f"s_cmp_eq_u32 {s(sFLAG)}, {FLAGOK}")
    A("s_cbranch_scc1 L_ready")
    A(f"s_cmp_lg_u32 {s(sCNT2)}, 0")
    A("s_cbranch_scc1 L_spin")
    A("s_branch L_help")
    A("L_ready:")
    E(kstage(4)); E(vstage(5)); E(kstage(5))
    A("@HOP 1")
    A("s_waitcnt vmcnt(@K4)"); A(bar_l())
    A(f"s_mov_b32 {s(sCNT)}, 10")
    A(f"s_mov_b32 {s(sSLOT)}, 8192")
    A("L_lloop:")
    A(f"s_add_u32 {s(sSLOT)}, {s(sSLOT)}, 8192")
    A(f"s_and_b32 {s(sSLOT)}, {s(sSLOT)}, 0x7fff")
    A(f"s_add_u32 {s(sVOFF)}, {s(sVOFF)}, 8192")
    A(f"s_and_b32 {s(sVOFF)}, {s(sVOFF)}, 0x1ffff")
    E(dma8(SV, sVOFF, (sSLOT, 32768), "V"))
    E(dma8(SW, sVOFF, (sSLOT, 0), "K", " sc1"))
    A("@LOOPHOPS")
    A("s_waitcnt vmcnt(16)")
    A("s_barrier"); nbar["l"] += 10
    A(f"s_sub_u32 {s(sCNT)}, {s(sCNT)}, 1")
    A(f"s_cmp_lg_u32 {s(sCNT)}, 0")
    A("s_cbranch_scc1 L_lloop")
    A("L_loader_slow:")
    A("s_waitcnt vmcnt(0)")
    A(bar_l())
    A("s_endpgm")
    loader = resolve_waits(L)
    L = list(partA)
    nA = len(L)
    A = L.append
    def bar_c(): nbar["c"] += 1; return "s_barrier"
    def dspin(lbl, ticks):
        E([f"{lbl}:", "s_memrealtime s[100:101]", "s_waitcnt lgkmcnt(0)", "s_sub_u32 s100, s100, s98",
           f"s_cmp_lt_u32 s100, {ticks}", f"s_cbranch_scc1 {lbl}"])
    A("L_main:")
    A(stamp("jumped"))
    take(len(late) // 2); E(qload(2)); take(len(late))
    A("s_waitcnt vmcnt(@K0)")
    A(stamp("K0"))
    E(norm_k())
    E(kwrite(0))
    E(qload(3))
    A("s_waitcnt vmcnt(@Q0)")
    A(stamp("Q0"))
    h, tl = norm_tile(Q, "swap", True, T, [SB + 32, SB + 34, SB + 36, SB + 38])
    E(h)
    A("s_waitcnt lgkmcnt(0)")
    A(bar_c())
    A(stamp("BK"))
    for jj in range(2): A(k_read(jj, 0)); A(k_read(jj, 1))
    tc = t_check("L_slow")
    E(tc[:3]); A(f"v_mul_f32 {v(vTS)}, {s(sTS)}, {v(vTS)}"); E(tc[3:])
    E(tl)
    A("s_waitcnt lgkmcnt(0)")
    m0 = mf_step(-1, opt)
    A(k_read(2, 0))
    A(m0["q1"])
    A(k_read(2, 1)); A(k_read(3, 0)); A(k_read(3, 1))
    A(m0["q2"])
    A("s_nop 10")
    A(stamp("step0"))
    slots, blocks = {}, {}
    def add(n, key, x): slots.setdefault((n, key), []).append(x)
    def blk(n, key, x): blocks.setdefault((n, key), []).extend(x)
    for jj in range(3, 62):
        n = 4 * jj
        add(n+1, "q2", "s_waitcnt lgkmcnt(0)")
        add(n+1, "r1", k_read(jj+1, 0)); add(n+1, "r2", k_read(jj+1, 1))
        add(n+2, "r1", v_read(jj+1, 0, 0))
        add(n+2, "p2", "s_waitcnt lgkmcnt(1)")
        add(n+2, "r2", v_read(jj+1, 0, 1))
        add(n+3, "r1", v_read(jj+1, 1, 0)); add(n+3, "r2", v_read(jj+1, 1, 1))
    blk(0, "r1", [bar_c()] + vreads(0) + vreads(1))
    blk(1, "q1", ["s_waitcnt lgkmcnt(8)"])
    add(1, "q2", "s_waitcnt lgkmcnt(0)")
    for key, x in zip(("p1", "r1", "p2", "r2"), vreads(2)): add(1, key, x)
    for key, x in zip(("p1", "r1", "p2", "r2"), vreads(3)): add(2, key, x)
    add(3, "q2", "s_waitcnt lgkmcnt(0)")
    for i in (1, 2, 3):
        add(4 * i - 2, "q2", f"s_waitcnt vmcnt(@Q{i})")
        blk(4 * i - 2, "p1", norm_q(i, [KR, KR + 2, KR + 4, KR + 6]))
    def pub(n, st, key, n2, key2):
        z = kstore(st); add(n, "q1", z[0]); add(n, key, z[1]); add(n2, key2, z[2])
    r_ = kraw(0); add(7, "r1", r_[0]); add(7, "r2", r_[1])
    add(8, "q2", "s_waitcnt lgkmcnt(0)")
    pub(8, 0, "r1", 9, "r1"); pub(14, 1, "p1", 15, "p1"); pub(19, 2, "p2", 20, "p1"); pub(23, 3, "p2", 24, "p1")
    add(11, "p1", bar_c())
    r_ = kraw(1); add(11, "r1", r_[0]); add(11, "r2", r_[1])
    add(12, "q2", "s_waitcnt lgkmcnt(0)")
    blk(12, "p1", norm_k())
    w = kwrite(1); add(12, "r1", w[0]); add(12, "r2", w[1])
    add(13, "p1", bar_c())
    add(16, "p1", bar_c())
    r_ = kraw(2); add(16, "r1", r_[0]); add(16, "r2", r_[1])
    blk(19, "p1", norm_k())
    w = kwrite(2); add(20, "r1", w[0]); add(20, "r2", w[1])
    add(21, "p1", bar_c())
    r_ = kraw(3); add(21, "p2", r_[0]); add(22, "p1", r_[1])
    blk(23, "p1", norm_k())
    w = kwrite(3); add(24, "r1", w[0]); add(24, "r2", w[1])
    add(29, "p1", "s_waitcnt vmcnt(0)")
    add(29, "p1", bar_c())
    add(opt.b3, "p1", bar_c())
    for st in range(4, 16): add(16 * st - 3, "p1", bar_c())
    add(244, "r1", k_read(63, 0)); add(244, "r2", k_read(63, 1))
    add(248, "r1", v_read(63, 0, 0)); add(248, "r2", v_read(63, 0, 1))
    add(249, "q2", "s_waitcnt lgkmcnt(2)")
    add(249, "r1", v_read(63, 1, 0)); add(249, "r2", v_read(63, 1, 1))
    add(250, "q2", "s_waitcnt lgkmcnt(2)")
    add(250, "r1", "s_waitcnt lgkmcnt(0)")
    for i, n in ((0, 251), (1, 253)):
        blk(n, "p1", epi_valu(T + 2 * i, O + 16 * i, RS + 4 * i))
        st = epi_store(i, O + 16 * i); add(n, "p1", st[0]); add(n, "r1", st[1])
    if opt.amp >= 0 and opt.ampstep < 255: add(opt.ampstep, "p2", "s_memrealtime s[96:97]")
    if opt.amp >= 0 and opt.ampfrom >= 0: add(opt.ampfrom, "p2", "s_memrealtime s[94:95]")
    for nn in opt.stepstamps.split(","): add(int(nn), "p2", stamp(f"step{nn}"))
    E(emit_steps(0, 255, opt, slots, blocks, skip={(0, "p1"), (0, "r1"), (0, "p2"), (0, "r2")}))
    m = mf_step(255, opt); m2 = mf_step(256, opt); ex = exps(255)
    A("; ---- step 255")
    A(m["p1"]); E(ex[0:3]); A(m["r1"]); E(ex[3:4]); A(m["p2"]); E(ex[4:7]); A(m["r2"]); E(ex[7:10])
    e2 = epi_valu(T + 4, O + 32, RS + 8)
    E(e2[:10])
    A(m2["p1"]); E(ex[10:13]); A(m2["r1"]); E(ex[13:16])
    E(e2[10:12])
    A(m2["r2"]); E(e2[12:14]); A(m2["p2"]); E(e2[14:])
    E(epi_store(2, O + 32))
    e3 = epi_valu(T + 6, O + 48, RS + 12)
    E(e3)
    E(epi_store(3, O + 48))
    assert nbar["c"] == nbar["l"], nbar
    if opt.stamps:
        A(stamp("stored"))
        A("s_waitcnt vmcnt(0)")
        A(stamp("done"))
        A("s_waitcnt lgkmcnt(0)")
        for i in range(len(STAMP_NAMES)): A(f"v_writelane_b32 {v(T)}, {s(62+2*i)}, {i}")
        A(f"s_lshl_b32 {s(sT0)}, s2, 2")
        A(f"s_add_u32 {s(sT0)}, {s(sT0)}, {s(sW)}")
        A(f"s_lshl_b32 {s(sT0)}, {s(sT0)}, 8")
        A(f"s_add_u32 {s(sT0)}, {s(sT0)}, 0x8000000")
        A(f"v_lshlrev_b32 {v(T+1)}, 2, v0")
        A(f"v_add_u32 {v(T+1)}, {s(sT0)}, {v(T+1)}")
        A(f"global_store_dword {v(T+1)}, {v(T)}, {s(sARG+12,2)}")
    if opt.spin: dspin("L_dspin", opt.spin)
    if opt.amp >= 0:
        if opt.amp != 999:
            A(f"s_cmp_lg_u32 s2, {opt.amp}"); A("s_cbranch_scc1 L_end")
        if opt.ampstep >= 255:
            A("s_waitcnt vmcnt(0)"); A("s_memrealtime s[96:97]"); A("s_waitcnt lgkmcnt(0)"); A("s_sub_u32 s96, s96, 2500")
        if opt.ampsub: A(f"s_sub_u32 s96, s96, {opt.ampsub}")
        A(f"s_sub_u32 s96, s96, {'s94' if opt.ampfrom >= 0 else 's98'}"); A("s_max_i32 s96, s96, 0"); A("s_mul_i32 s96, s96, 10"); A("s_add_u32 s96, s96, 4000")
        dspin("L_dspin", "s96")
    A("L_end:")
    A("s_endpgm")
    A("L_code_end:")
    L = resolve_waits(L)
    partA, partB = L[:nA], L[nA:]
    L = []
    A = L.append
    A("L_help:")
    A(f"s_mov_b32 {s(sCNT2)}, 48")
    A(f"s_add_u32 {s(sT3)}, {s(sCH)}, {32768-2048}")
    A("L_help_loop:")
    A(f"s_add_u32 {s(sT3)}, {s(sT3)}, 2048")
    A(f"s_and_b32 {s(sT3)}, {s(sT3)}, 0x1ffff")
    E(kload(s(sT3)))
    A("s_waitcnt vmcnt(0)")
    E(norm_k())
    A(f"buffer_store_dwordx4 {v(KR,4)}, {v(vLIN)}, {s(SW,4)}, {s(sT3)} offen sc1")
    A(f"buffer_store_dwordx4 {v(KR+4,4)}, {v(vLIN)}, {s(SW,4)}, {s(sT3)} offen offset:1024 sc1")
    A("s_waitcnt vmcnt(0)")
    A(f"s_sub_u32 {s(sCNT2)}, {s(sCNT2)}, 1")
    A(f"s_cmp_lg_u32 {s(sCNT2)}, 0")
    A("s_cbranch_scc1 L_help_loop")
    A("s_branch L_ready")
    A("L_slow:")
    A("s_waitcnt vmcnt(0) lgkmcnt(0)")
    A("s_barrier")
    for i in range(4): E(norm_q(i, [T + 2, T + 4, T + 6]))
    MX = SB + 16
    for i in range(4): A(f"v_mov_b32 {v(MX+i)}, 0xff800000")
    A(f"v_add_u32 {v(vAV)}, {s(sWL)}, {v(vAV)}")
    A(f"s_add_u32 m0, {s(sWL)}, 32768")
    A(f"s_mov_b32 {s(sKOFF)}, 0")
    A("L_slow_kv:")
    A(f"buffer_load_dwordx4 {v(KR,4)}, {v(vQL)}, {s(SK,4)}, {s(sKOFF)} offen")
    A(f"buffer_load_dwordx4 {v(KR+4,4)}, {v(vQL)}, {s(SK,4)}, {s(sKOFF)} offen offset:32")
    A(f"buffer_load_dwordx4 {v(vLIN)}, {s(SV,4)}, {s(sKOFF)} offen lds")
    A(f"buffer_load_dwordx4 {v(vLIN)}, {s(SV,4)}, {s(sKOFF)} offen offset:1024 lds")
    A("s_waitcnt vmcnt(0)")
    E(vreads(0))
    h, tl = norm_tile(KR, "swap", False, T, [T + 2, T + 4, T + 6]); E(h); E(tl)
    A("s_waitcnt lgkmcnt(0)")
    A("s_nop 1")
    for i in range(4):
        sb = SB
        A(f"v_mfma_f32_32x32x16_bf16 {v(sb,16)}, {v(KR,4)}, {v(Q+8*i,4)}, 0")
        A(f"v_mfma_f32_32x32x16_bf16 {v(sb,16)}, {v(KR+4,4)}, {v(Q+8*i+4,4)}, {v(sb,16)}")
        A("s_nop 15")
        A(f"v_max3_f32 {v(T)}, {v(sb)}, {v(sb+1)}, {v(MX+i)}")
        for r in range(2, 16, 2): A(f"v_max3_f32 {v(T)}, {v(sb+r)}, {v(sb+r+1)}, {v(T)}")
        A(f"v_mov_b32 {v(T+1)}, {v(T)}")
        A("s_nop 1")
        A(f"v_permlane32_swap_b32 {v(T)}, {v(T+1)}")
        A("s_nop 0")
        A(f"v_max_f32 {v(T)}, {v(T)}, {v(T+1)}")
        A(f"v_sub_f32 {v(T+2)}, {v(MX+i)}, {v(T)}")
        A(f"v_exp_f32 {v(T+2)}, {v(T+2)}")
        A(f"v_mov_b32 {v(MX+i)}, {v(T)}")
        for r in range(16): A(f"v_sub_f32 {v(sb+r)}, {v(sb+r)}, {v(T)}")
        for r in range(16): A(f"v_exp_f32 {v(sb+r)}, {v(sb+r)}")
        for r in range(16): A(f"v_mul_f32 {v(O+16*i+r)}, {v(O+16*i+r)}, {v(T+2)}")
        A(f"v_mul_f32 {v(RS+4*i)}, {v(RS+4*i)}, {v(T+2)}")
        A("s_nop 1")
        A(f"v_smfmac_f32_32x32x32_bf16 {v(O+16*i,16)}, {a(aV,4)}, {v(sb,8)}, {v(vIDX)}")
        A(f"v_smfmac_f32_16x16x64_bf16 {v(RS+4*i,4)}, {v(ONES,4)}, {v(sb,8)}, {v(vIDX)}")
        A(f"v_smfmac_f32_32x32x32_bf16 {v(O+16*i,16)}, {a(aV+4,4)}, {v(sb+8,8)}, {v(vIDX)}")
        A(f"v_smfmac_f32_16x16x64_bf16 {v(RS+4*i,4)}, {v(ONES,4)}, {v(sb+8,8)}, {v(vIDX)}")
    A("s_nop 15")
    A(f"s_add_u32 {s(sKOFF)}, {s(sKOFF)}, 2048")
    A(f"s_cmp_lt_u32 {s(sKOFF)}, 0x20000")
    A("s_cbranch_scc1 L_slow_kv")
    for i in range(4):
        E(epi_valu(T + 2 * (i % 2), O + 16 * i, RS + 4 * i)); E(epi_store(i, O + 16 * i))
    A("s_endpgm")
    return partA + loader + [".p2align 12"] + partB + L

HEAD = open("standalone__qk_norm__prompt.s.ref").read().split("; Override launch")[0]

def isize(lines):
    import subprocess, tempfile
    ins = [x for x in lines if not (x.endswith(":") or x.startswith((".", ";", "@")))]
    src = '.amdgcn_target "amdgcn-amd-amdhsa--gfx950"\n.text\n' + "\n".join(x for x in lines if not x.startswith((".", "@"))) + "\n"
    d = tempfile.mkdtemp()
    open(d + "/a.s", "w").write(src)
    subprocess.run(["clang", "-x", "assembler", "-target", "amdgcn-amd-amdhsa", "-mcpu=gfx950", "-c", d + "/a.s", "-o", d + "/a.o"], check=True)
    o = subprocess.run(["llvm-objdump", "-d", "--mcpu=gfx950", d + "/a.o"], capture_output=True, text=True).stdout
    sz = [4 * len(m.group(1).split()) for m in re.finditer(r"// [0-9A-F]{12}: ([0-9A-F ]+)", o)]
    assert len(sz) == len(ins), (len(sz), len(ins))
    return sz

def place_pads(L, hop):
    sz = iter(isize(L))
    out, off, npad, active, pre = [], 0, 0, False, 0
    for i, x in enumerate(L):
        out.append(x)
        if x == "L_main:": active, pre, off = hop, off, 0
        if x == "L_code_end:": active = False; total = off
        if x.endswith(":") or x.startswith((".", ";", "@")): continue
        off += next(sz)
        if active and off >= 4096 * (npad + 1):
            nxt = next(y for y in L[i+1:] if not y.startswith(";"))
            good = x.startswith(("v_mfma", "v_smfmac")) and nxt.startswith("v_exp")
            if good or off - 4096 * (npad + 1) > 52:
                npad += 1
                out += [f"L_pad{npad}:", f"@PAD{npad}"]
                off += 4
    res, nxtpad, tgt, nh = [], 1, {}, 0
    for x in out:
        if x.startswith("@HOP"):
            k = min(int(x.split()[1]), npad - nxtpad + 1)
            if k > 0:
                nh += 1
                for p in range(nxtpad, nxtpad + k): tgt[p] = f"L_pad{p+1}" if p + 1 < nxtpad + k else f"L_hop{nh}"
                res += [f"s_branch L_pad{nxtpad}", f"L_hop{nh}:"]
                nxtpad += k
        elif x == "@LOOPHOPS":
            c = 10
            for p in range(nxtpad, npad + 1):
                tgt[p] = "L_hopx"
                res += [f"s_cmp_eq_u32 {s(sCNT)}, {c}", f"s_cbranch_scc1 L_pad{p}"]
                c -= HOPSTRIDE
                assert c >= 0
            res.append("L_hopx:")
        elif x.startswith("@PAD"): res.append(f"s_cbranch_vccnz {tgt[int(x[4:])]}")
        else: res.append(x)
    sys.stderr.write(f"entry+loader {pre} bytes, main {total} bytes, {npad} pads\n")
    return res

def render(opt):
    body = [x for x in gen(opt) if not x.startswith("; stamp")]
    body = place_pads(body, opt.hop)
    o = HEAD
    o += "; Override launch geometry by editing the next line (default: block=256,\n"
    o += f"; @launch grid=(256,1,1) block=(320,1,1) lds={opt.ldsb}\n"
    o += f""".amdgcn_target "amdgcn-amd-amdhsa--gfx950"
.text
.globl {NAME}_kernel
.p2align 8
.type {NAME}_kernel,@function
{NAME}_kernel:
"""
    for x in body:
        o += (x if x.endswith(":") or x.startswith(".") else "    " + x) + "\n"
    o += f""".section .rodata,"a"
.p2align 6
.amdhsa_kernel {NAME}_kernel
  .amdhsa_next_free_vgpr {NV+NA}
  .amdhsa_next_free_sgpr 102
  .amdhsa_accum_offset {NV}
  .amdhsa_group_segment_fixed_size 0
  .amdhsa_kernarg_size 56
  .amdhsa_user_sgpr_count 2
  .amdhsa_user_sgpr_kernarg_segment_ptr 1
  .amdhsa_system_sgpr_workgroup_id_x 1
.end_amdhsa_kernel
"""
    return o

if __name__ == "__main__":
    opt = Opt()
    out = sys.argv[1]
    for kv in sys.argv[2:]:
        k, val = kv.split("=")
        cur = getattr(opt, k)
        setattr(opt, k, type(cur)(val) if not isinstance(cur, bool) else val in ("1", "True"))
    open(out, "w").write(render(opt))
    if opt.stamps: open(out + ".stamps", "w").write(" ".join(STAMP_NAMES))
```

```python
import sys, struct, re
NAME = "standalone__qk_norm__prompt"

def f2u(x): return struct.unpack("<I", struct.pack("<f", x))[0]
LOG2E = 1.4426950408889634

class Opt:
    thresh = 16.0
    cinit = "4.0"
    force_help = False
    stamps = 0
    cyc = False
    pfkb = 12
    hop = True
    lprio = 3
    qrot = True
    krot = True
    qfirst = False
    tlbw = False
    q1at = 'K0'
    q2at = 'S'
    q3at = '4'
    bflag = 35
    pfpages = True
    ldsb = 65536
    b3 = 37
    pre_n = 24
    osc = 'nt'
    spin = 0
    amp = -1
    ampstep = 2
    ampfrom = -1
    ampat = ''
    ampsub = 0
    stepstamps = "1,7,14,30,62,126,190,247"

SQ, SK, SV, SO, SW, SD = 4, 8, 12, 16, 20, 24
sW, sJ, sHEAD, sTS = 28, 29, 30, 31
sBASE, sVOFF, sKOFF, sCNT = 32, 33, 34, 35
sARG = 36
sT0, sT1, sT2, sT3 = 50, 51, 52, 53
sFLAG = 54
sWL = 55
sT4 = 56
sCQ = 57
sCH = 58
sSLOT = 59
sCNT2 = 60
sEPS = 61
vQL, vLIN, vAV, vKW, vIDX, vKL, vAK0, vAK1, vOO, vTS, vX = 1, 2, 3, 4, 5, 6, 7, 8, 9, 10, 11
T = 12
ONES = 20
KR = 24
Q = 32
O = 64
RS = 128
SB = 144
NV = 192
NSB = 3
vFO, vONE, vFL, vFR = 3, 5, 7, 8
aK = 0
aV = 32
NA = 64

def v(a, n=1): return f"v{a}" if n == 1 else f"v[{a}:{a+n-1}]"
def a(x, n=1): return f"a{x}" if n == 1 else f"a[{x}:{x+n-1}]"
def s(x, n=1): return f"s{x}" if n == 1 else f"s[{x}:{x+n-1}]"

def norm_tile(t, mode, isq, tmp, U):
    x, y = tmp, tmp + 1
    unp = []
    for i in range(8):
        w = U[i % len(U)]
        unp.append([f"v_lshlrev_b32 {v(w)}, 16, {v(t+i)}", f"v_and_b32 {v(w+1)}, 0xffff0000, {v(t+i)}"])
    early = [z for i in range(len(U)) for z in unp[i]]
    used = [0]
    def pad(n):
        o = early[used[0]:used[0] + n]; used[0] += len(o)
        if len(o) < n: o.append(f"s_nop {n-len(o)-1}")
        return o
    o = [f"v_dot2_f32_bf16 {v(x)}, {v(t+i)}, {v(t+i)}, {'0' if i==0 else v(x)}" for i in range(8)]
    o += pad(3)
    if mode == "swap":
        o += [f"v_mov_b32 {v(y)}, {v(x)}"] + pad(2) + [f"v_permlane32_swap_b32 {v(x)}, {v(y)}"] + pad(1)
        o += [f"v_add_f32 {v(x)}, {v(x)}, {v(y)}"]
    else:
        o.append(f"v_add_f32_dpp {v(x)}, {v(x)}, {v(x)} quad_perm:[1,0,3,2] row_mask:0xf bank_mask:0xf")
    o += [f"v_sqrt_f32 {v(x)}, {v(x)}"] + pad(1) + [f"v_add_f32 {v(x)}, {s(sEPS)}, {v(x)}", f"v_rcp_f32 {v(x)}, {v(x)}"] + pad(1)
    tail = []
    if isq: tail.append(f"v_mul_f32 {v(x)}, {v(vTS)}, {v(x)}")
    for i in range(8):
        w = U[i % len(U)]
        tail += [z for k, z in enumerate(unp[i]) if 2 * i + k >= used[0]]
        tail += [f"v_pk_mul_f32 {v(w,2)}, {v(w,2)}, {v(x,2)} op_sel_hi:[1,0]",
                 f"v_cvt_pk_bf16_f32 {v(t+i)}, {v(w)}, {v(w+1)}"]
    return o, tail
def norm_k(): h, t = norm_tile(KR, "dpp", False, T, [T + 2, T + 4, T + 6]); return h + t
def norm_q(i, U): h, t = norm_tile(Q + 8 * i, "swap", True, T, U); return h + t

def epi_valu(tmp, oreg, rsreg):
    o = [f"v_rcp_f32 {v(tmp)}, {v(rsreg)}", "s_nop 0"]
    for r in range(0, 16, 2):
        o.append(f"v_pk_mul_f32 {v(oreg+r,2)}, {v(oreg+r,2)}, {v(tmp,2)} op_sel_hi:[1,0]")
    for r in range(8):
        o.append(f"v_cvt_pk_bf16_f32 {v(oreg+r)}, {v(oreg+2*r)}, {v(oreg+2*r+1)}")
    for r in range(4):
        o.append(f"v_permlane16_swap_b32 {v(oreg+r)}, {v(oreg+4+r)}")
    return o
OSC = ""
QOFS = [sVOFF, sCNT, sFLAG, sSLOT]
def epi_store(i, oreg):
    so = s(QOFS[i])
    return [f"buffer_store_dwordx4 {v(oreg,4)}, {v(vOO)}, {s(SO,4)}, {so} offen {OSC}",
            f"buffer_store_dwordx4 {v(oreg+4,4)}, {v(vOO)}, {s(SO,4)}, {so} offen offset:1024 {OSC}"]

def tile_of(n):
    if 248 <= n < 256: return 62 + (n - 248) % 2, (n - 248) // 2
    if 0 <= n < 16: return n % 4, n // 4
    return n // 4, n % 4
def buf_of(jj): return 2 if jj == 63 else (jj if jj in (2, 3) else jj % 2)

def resolve_waits(L):
    out = []
    for i, x in enumerate(L):
        m = re.search(r"vmcnt\(@(\w+)\)", x)
        if m:
            n = 0
            for y in reversed(L[:i]):
                if y.startswith(("buffer_", "global_")):
                    if y.endswith(";#" + m.group(1)): break
                    n += 1
            else:
                raise Exception("tag not found " + x)
            assert n < 64
            x = x.replace(m.group(0), f"vmcnt({n})") + "   ; " + m.group(1)
        out.append(x)
    return out

def mf_step(n, opt):
    n1, n0 = n + 1, n - 1
    j1, i1 = tile_of(n1)
    j0, i0 = tile_of(n0)
    nxt, prv = SB + 16 * (n1 % NSB), SB + 16 * (n0 % NSB)
    kf, vf = aK + 8 * buf_of(j1), aV + 8 * buf_of(j0)
    return {
        "q1": f"v_mfma_f32_32x32x16_bf16 {v(nxt,16)}, {a(kf,4)}, {v(Q+8*i1,4)}, {opt.cinit}",
        "q2": f"v_mfma_f32_32x32x16_bf16 {v(nxt,16)}, {a(kf+4,4)}, {v(Q+8*i1+4,4)}, {v(nxt,16)}",
        "p1": f"v_smfmac_f32_32x32x32_bf16 {v(O+16*i0,16)}, {a(vf,4)}, {v(prv,8)}, {v(vIDX)}",
        "r1": f"v_smfmac_f32_16x16x64_bf16 {v(RS+4*i0,4)}, {v(ONES,4)}, {v(prv,8)}, {v(vIDX)}",
        "p2": f"v_smfmac_f32_32x32x32_bf16 {v(O+16*i0,16)}, {a(vf+4,4)}, {v(prv+8,8)}, {v(vIDX)}",
        "r2": f"v_smfmac_f32_16x16x64_bf16 {v(RS+4*i0,4)}, {v(ONES,4)}, {v(prv+8,8)}, {v(vIDX)}"}

ORDER = ["q1", "q2", "p1", "r1", "p2", "r2"]
PAT = [4, 4, 3, 1, 3, 1]

def k_read(jj, f):
    return f"ds_read_b128 {a(aK+8*buf_of(jj)+4*f,4)}, {v(vAK0+f)} offset:{(jj%16)*2048}"
def v_read(jj, m, t):
    return f"ds_read_b64_tr_b16 {a(aV+8*buf_of(jj)+4*m+2*t,2)}, {v(vAV)} offset:{32768+(jj%16)*2048+1024*m+256*t}"
def vreads(jj): return [v_read(jj, m_, t_) for m_ in range(2) for t_ in range(2)]
def exps(n):
    cur = SB + 16 * (n % NSB)
    return [f"v_exp_f32 {v(cur+e)}, {v(cur+e)}" for e in range(16)]

def emit_steps(n_lo, n_hi, opt, slots, blocks, skip=()):
    out = []
    for n in range(n_lo, n_hi):
        m = mf_step(n, opt)
        ex = exps(n)
        k = 0
        for key, c in zip(ORDER, PAT):
            out += blocks.get((n, key), [])
            if (n, key) not in skip: out.append(m[key])
            out += slots.get((n, key), [])
            out += ex[k:k+c]
            k += c
    return out

STAMP_NAMES = []
HOPSTRIDE = 2
def gen(opt):
    global OSC
    OSC = opt.osc.replace('_', ' ')
    STAMP_NAMES.clear()
    def stamp(name):
        if opt.ampat == name: return "s_memrealtime s[96:97]"
        if not opt.stamps or (opt.stamps == 2 and name not in ("entry", "done")): return "; stamp " + name
        i = len(STAMP_NAMES); STAMP_NAMES.append(name)
        assert i < 17
        return f"{'s_memtime' if opt.cyc else 's_memrealtime'} {s(62+2*i,2)}"
    FLAGOK = '0x02020202' if opt.force_help else '0x01010101'
    def kload(so):
        return [f"buffer_load_dwordx4 {v(KR,4)}, {v(vKL)}, {s(SK,4)}, {so} offen",
                f"buffer_load_dwordx4 {v(KR+4,4)}, {v(vKL)}, {s(SK,4)}, {so} offen offset:16 ;#K0"]
    def qload(i):
        so = s(QOFS[i])
        return [f"buffer_load_dwordx4 {v(Q+8*i,4)}, {v(vQL)}, {s(SQ,4)}, {so} offen",
                f"buffer_load_dwordx4 {v(Q+8*i+4,4)}, {v(vQL)}, {s(SQ,4)}, {so} offen offset:32 ;#Q{i}"]
    def kwrite(st):
        return [f"ds_write_b128 {v(vKW)}, {v(KR,4)} offset:{8192*st}",
                f"ds_write_b128 {v(vKW)}, {v(KR+4,4)} offset:{8192*st+1024}"]
    def kstore(st):
        return [f"s_add_u32 {s(sT0)}, {s(sBASE)}, {8192*st}", f"s_and_b32 {s(sT0)}, {s(sT0)}, 0x1ffff",
                f"buffer_store_dwordx4 {v(KR,4)}, {v(vLIN)}, {s(SW,4)}, {s(sT0)} offen sc1",
                f"buffer_store_dwordx4 {v(KR+4,4)}, {v(vLIN)}, {s(SW,4)}, {s(sT0)} offen offset:1024 sc1"]
    def kraw(st):
        return [f"ds_read_b128 {v(KR,4)}, {v(vKW)} offset:{8192*st}",
                f"ds_read_b128 {v(KR+4,4)}, {v(vKW)} offset:{8192*st+1024}"]
    def srd_base(srd, arg):
        return [f"s_add_u32 {s(srd)}, {s(sARG+arg)}, {s(sT2)}", f"s_addc_u32 {s(srd+1)}, {s(sARG+arg+1)}, 0"]
    def srd_dbg(): return [f"s_mov_b32 {s(SD)}, {s(sARG+10)}", f"s_mov_b32 {s(SD+1)}, {s(sARG+11)}"]
    def t_check(lbl):
        return [f"s_lshr_b32 {s(sTS)}, {s(sTS)}, {s(sT1)}", f"s_lshl_b32 {s(sTS)}, {s(sTS)}, 16",
                f"s_and_b32 {s(sT0)}, {s(sTS)}, 0x7fffffff",
                f"s_cmp_gt_u32 {s(sT0)}, {hex(f2u(opt.thresh))}",
                f"s_cbranch_scc1 {lbl}"]
    nbar = {"c": 0, "l": 0}
    L = []
    A = L.append
    def E(x): L.extend(x)
    A("s_cmp_ge_u32 s2, 256")
    A("s_cbranch_scc1 L_end")
    A(stamp("entry"))
    if opt.spin or opt.amp >= 0: A("s_memrealtime s[98:99]")
    A(f"s_load_dwordx8 {s(sARG,8)}, s[0:1], 0")
    A(f"s_load_dwordx4 {s(sARG+8,4)}, s[0:1], 32")
    A(f"s_load_dwordx2 {s(sARG+12,2)}, s[0:1], 48")
    if opt.pfkb:
        A(f"s_getpc_b64 {s(sT0,2)}")
        A(f"v_lshlrev_b32 {v(T+2)}, 7, v0")
        A(f"v_min_u32 {v(T+2)}, {opt.pfkb*1024}, {v(T+2)}")
        A(f"v_mov_b32 {v(T+3)}, {s(sT1)}")
        A(f"v_add_co_u32 {v(T+2)}, vcc, {s(sT0)}, {v(T+2)}")
    A(f"v_lshrrev_b32 {v(T)}, 6, v0")
    A(f"v_and_b32 v0, 63, v0")
    if opt.pfkb:
        A(f"v_addc_co_u32 {v(T+3)}, vcc, 0, {v(T+3)}, vcc")
        A(f"global_load_dword {v(vX)}, {v(T+2,2)}, off")
    A(f"v_readfirstlane_b32 {s(sW)}, {v(T)}")
    A(f"s_and_b32 {s(sT0)}, s2, 7")
    A(f"s_lshr_b32 {s(sT1)}, s2, 3")
    A(f"s_and_b32 {s(sJ)}, {s(sT1)}, 3")
    A(f"s_lshr_b32 {s(sT1)}, {s(sT1)}, 2")
    A(f"s_lshl_b32 {s(sT0)}, {s(sT0)}, 3")
    A(f"s_add_u32 {s(sHEAD)}, {s(sT0)}, {s(sT1)}")
    A(f"s_lshl_b32 {s(sT2)}, {s(sHEAD)}, 17")
    A(f"s_lshl_b32 {s(sCQ)}, {s(sJ)}, 15")
    if opt.krot:
        A(f"s_and_b32 {s(sCH)}, {s(sHEAD)}, 3")
        A(f"s_lshl_b32 {s(sCH)}, {s(sCH)}, 13")
        A(f"s_add_u32 {s(sCH)}, {s(sCH)}, {s(sCQ)}")
    else:
        A(f"s_mov_b32 {s(sCH)}, {s(sCQ)}")
    A(f"s_and_b32 {s(sT3)}, {s(sHEAD)}, 30")
    A(f"s_lshl_b32 {s(sT3)}, {s(sT3)}, 1")
    A(f"s_and_b32 {s(sT1)}, {s(sHEAD)}, 1")
    A(f"s_lshl_b32 {s(sT1)}, {s(sT1)}, 4")
    A(f"v_bfe_u32 {v(T+2)}, v0, 4, 1")
    A(f"v_xor_b32 {v(T+2)}, {v(T+2)}, v0")
    A(f"v_lshlrev_b32 {v(vKL)}, 5, {v(T+2)}")
    A(f"v_lshlrev_b32 {v(vLIN)}, 4, v0")
    for srd in (SK, SQ, SV, SO, SW):
        A(f"s_mov_b32 {s(srd+2)}, 0x20000")
        A(f"s_mov_b32 {s(srd+3)}, 0x20000")
    A(f"s_mov_b32 {s(SD+2)}, 256")
    A(f"s_mov_b32 {s(SD+3)}, 0x20000")
    A(f"s_mov_b32 {s(sEPS)}, {hex(f2u(1e-6))}")
    A(f"s_cmp_ge_u32 {s(sW)}, 4")
    A("s_cbranch_scc1 L_loader")
    A("s_mov_b64 vcc, 0")
    A(f"s_lshl_b32 {s(sWL)}, {s(sW)}, 11")
    A(f"s_lshl_b32 {s(sT4)}, {s(sW)}, 13")
    A(f"s_add_u32 {s(sT4)}, {s(sT4)}, {s(sCQ)}")
    for i in range(4):
        if opt.qrot:
            A(f"s_add_u32 {s(QOFS[i])}, {s(sWL)}, {2048*i}")
            A(f"s_and_b32 {s(QOFS[i])}, {s(QOFS[i])}, 0x1fff")
            A(f"s_add_u32 {s(QOFS[i])}, {s(QOFS[i])}, {s(sT4)}")
        else:
            A(f"s_add_u32 {s(QOFS[i])}, {s(sT4)}, {2048*i}")
    A(f"s_add_u32 {s(sBASE)}, {s(sCH)}, {s(sWL)}")
    A(f"v_and_b32 {v(T)}, 31, v0")
    A(f"v_lshrrev_b32 {v(T+1)}, 5, v0")
    A(f"v_lshlrev_b32 {v(vQL)}, 6, {v(T)}")
    A(f"v_lshl_add_u32 {v(vQL)}, {v(T+1)}, 4, {v(vQL)}")
    late = []
    B = late.append
    B(f"v_mov_b32 {v(vIDX)}, 0xdddddddd")
    B(f"v_add_u32 {v(vKW)}, {s(sWL)}, {v(vLIN)}")
    B(f"v_bfe_u32 {v(T+2)}, v0, 3, 1")
    B(f"v_lshl_add_u32 {v(T+2)}, {v(T)}, 1, {v(T+2)}")
    B(f"v_lshlrev_b32 {v(T+2)}, 4, {v(T+2)}")
    B(f"v_lshl_add_u32 {v(vAK0)}, {v(T+1)}, 10, {v(T+2)}")
    B(f"v_xor_b32 {v(vAK1)}, 16, {v(vAK0)}")
    B(f"v_bfe_u32 {v(T+2)}, v0, 2, 2")
    B(f"v_lshl_add_u32 {v(T+2)}, {v(T+1)}, 3, {v(T+2)}")
    B(f"v_lshlrev_b32 {v(vAV)}, 6, {v(T+2)}")
    B(f"v_and_b32 {v(T+2)}, 1, v0")
    B(f"v_lshl_add_u32 {v(vAV)}, {v(T+2)}, 5, {v(vAV)}")
    B(f"v_bfe_u32 {v(T+2)}, v0, 4, 1")
    B(f"v_lshl_add_u32 {v(vAV)}, {v(T+2)}, 4, {v(vAV)}")
    B(f"v_bfe_u32 {v(T+2)}, v0, 1, 1")
    B(f"v_lshl_add_u32 {v(vAV)}, {v(T+2)}, 3, {v(vAV)}")
    B(f"v_and_b32 {v(T+2)}, 15, v0")
    B(f"v_and_b32 {v(T+3)}, 48, v0")
    B(f"v_lshl_add_u32 {v(vOO)}, {v(T+2)}, 6, {v(T+3)}")
    B(f"v_and_b32 {v(T+2)}, 7, v0")
    B(f"v_lshlrev_b32_e64 {v(T+2)}, {v(T+2)}, 1")
    B(f"v_bfe_i32 {v(T+3)}, {v(T+2)}, 0, 1")
    B(f"v_and_b32 {v(ONES)}, 0x3f803f80, {v(T+3)}")
    B(f"v_and_b32 {v(ONES+1)}, 0x3f803f80, {v(T+3)}")
    B(f"v_bfe_i32 {v(T+3)}, {v(T+2)}, 4, 1")
    B(f"v_and_b32 {v(ONES+2)}, 0x3f803f80, {v(T+3)}")
    B(f"v_and_b32 {v(ONES+3)}, 0x3f803f80, {v(T+3)}")
    B(f"v_mov_b32 {v(vTS)}, {hex(f2u(LOG2E))}")
    for r in range(O, RS + 16, 2): B(f"v_mov_b64 {v(r,2)}, 0")
    def take(k):
        E(late[:k]); del late[:k]
    take(opt.pre_n)
    A("s_waitcnt lgkmcnt(0)")
    A(stamp("kernarg"))
    if opt.qfirst:
        E(srd_base(SQ, 0)); E(qload(0))
        E(srd_base(SK, 2)); E(kload(s(sBASE)))
    else:
        E(srd_base(SK, 2)); E(kload(s(sBASE)))
        E(srd_base(SQ, 0)); E(qload(0))
    A(f"s_load_dword {s(sTS)}, {s(sARG+6,2)}, {s(sT3)}")
    E(srd_base(SV, 4)); E(srd_base(SO, 8)); E(srd_base(SW, 12)); E(srd_dbg())
    def qat(where):
        o = []
        for i, w_ in ((1, opt.q1at), (2, opt.q2at), (3, opt.q3at)):
            if w_ == where: o += qload(i)
        return o
    if qat("A"): take(8); E(qat("A"))
    A("s_branch L_main")
    partA = L
    L = []
    A = L.append
    def bar_l(): nbar["l"] += 1; return "s_barrier"
    def dma8(srd, so_reg, lds, tag, extra=""):
        o = []
        for hlf in range(2):
            if isinstance(lds, tuple): o.append(f"s_add_u32 m0, {s(lds[0])}, {lds[1] + 4096*hlf}")
            else: o.append(f"s_mov_b32 m0, {lds + 4096*hlf}")
            if hlf: o.append(f"s_add_u32 {s(sT0)}, {s(so_reg)}, 4096")
            else: o.append("s_nop 0")
            for k in range(4):
                o.append(f"buffer_load_dwordx4 {v(vLIN)}, {s(srd,4)}, {s(sT0 if hlf else so_reg)} offen offset:{1024*k}{extra} lds")
        o[-1] += f" ;#{tag}"
        return o
    def vstage(st):
        return [f"s_add_u32 {s(sVOFF)}, {s(sCH)}, {8192*st}", f"s_and_b32 {s(sVOFF)}, {s(sVOFF)}, 0x1ffff"] + \
               dma8(SV, sVOFF, 32768 + 8192 * (st % 4), f"V{st}")
    def kstage(st):
        return [f"s_add_u32 {s(sKOFF)}, {s(sCH)}, {8192*st}", f"s_and_b32 {s(sKOFF)}, {s(sKOFF)}, 0x1ffff"] + \
               dma8(SW, sKOFF, 8192 * (st % 4), f"K{st}", " sc1")
    def rawk(st):
        o = []
        for hlf in range(2):
            o.append(f"s_add_u32 {s(sT0)}, {s(sCH)}, {8192*st + 4096*hlf}")
            o.append(f"s_and_b32 {s(sT0)}, {s(sT0)}, 0x1ffff")
            for f in range(2):
                o += [f"s_mov_b32 m0, {8192*st + 4096*hlf + 1008*f}", "s_nop 0"]
                for k in range(2):
                    o.append(f"buffer_load_dwordx4 {v(vKL)}, {s(SK,4)}, {s(sT0)} offen offset:{2048*k + 16*f} lds")
        o[-1] += f" ;#R{st}"
        return o
    def publish(st, base):
        o = [f"ds_read_b128 {v(base+4*k,4)}, {v(vLIN)} offset:{8192*st + 1024*k}" for k in range(8)]
        o += [f"s_add_u32 {s(sT0)}, {s(sCH)}, {8192*st}", f"s_add_u32 {s(sT3)}, {s(sCH)}, {8192*st+4096}", "s_waitcnt lgkmcnt(0)"]
        o += [f"buffer_store_dwordx4 {v(base+4*k,4)}, {v(vLIN)}, {s(SW,4)}, {s(sT0 if k < 4 else sT3)} offen offset:{1024*(k%4)} sc1" for k in range(8)]
        return o
    A("L_loader:")
    if opt.lprio: A(f"s_setprio {opt.lprio}")
    A("s_mov_b64 vcc, -1")
    A(f"s_lshl_b32 {s(sT0)}, {s(sHEAD)}, 2")
    A(f"v_mov_b32 {v(vFL)}, {s(sT0)}")
    A(f"s_add_u32 {s(sT0)}, {s(sT0)}, {s(sJ)}")
    A(f"v_lshl_add_u32 {v(vFO)}, v0, 8, {s(sT0)}")
    A(f"v_mov_b32 {v(vONE)}, 1")
    A(f"v_and_b32 {v(T+4)}, 7, v0")
    A(f"v_lshlrev_b32 {v(T+4)}, 7, {v(T+4)}")
    A(f"v_lshrrev_b32 {v(T+5)}, 3, v0")
    A(f"v_lshlrev_b32 {v(T+5)}, 12, {v(T+5)}")
    A(f"v_mov_b32 {v(vOO)}, -1")
    A("s_waitcnt lgkmcnt(0)")
    A(f"s_load_dword {s(sTS)}, {s(sARG+6,2)}, {s(sT3)}")
    E(srd_base(SK, 2)); E(srd_base(SQ, 0)); E(srd_base(SV, 4)); E(srd_base(SO, 8)); E(srd_base(SW, 12)); E(srd_dbg())
    E(vstage(0))
    A("s_waitcnt lgkmcnt(0)")
    A(bar_l())
    E(t_check("L_loader_slow"))
    E(rawk(1))
    if opt.pfpages:
        A(f"s_getpc_b64 {s(sT0,2)}")
        A("L_pc1:")
        A(f"s_add_u32 {s(sT0)}, {s(sT0)}, L_main-L_pc1+4096")
        A(f"s_addc_u32 {s(sT1)}, {s(sT1)}, 0")
        A(f"v_mov_b32 {v(T+3)}, {s(sT1)}")
        A(f"v_or_b32 {v(T+2)}, {s(sT0)}, {v(T+4)}")
        A(f"v_add_co_u32 {v(T+2)}, {s(sT2,2)}, {v(T+2)}, {v(T+5)}")
        A("s_nop 1")
        A(f"v_addc_co_u32 {v(T+3)}, {s(sT2,2)}, 0, {v(T+3)}, {s(sT2,2)}")
        A(f"global_load_dword {v(vX)}, {v(T+2,2)}, off")
    A("s_waitcnt vmcnt(@V0)"); A(bar_l())
    E(vstage(1))
    A("@HOP 1")
    A("s_waitcnt vmcnt(@R1)")
    E(rawk(2))
    A(bar_l())
    A("s_waitcnt vmcnt(@V1)")
    E(rawk(3))
    A(bar_l())
    E(vstage(2))
    A("s_waitcnt vmcnt(@R2)"); A(bar_l())
    A("s_waitcnt vmcnt(@R3)")
    E(vstage(3))
    A(bar_l())
    A("@HOP 1")
    A("s_waitcnt vmcnt(@V2)"); A(bar_l())
    E(vstage(4))
    A("s_waitcnt vmcnt(@V3)"); A(bar_l())
    A(f"buffer_store_byte {v(vONE)}, {v(vFO)}, {s(SD,4)}, 0 offen sc1")
    A(f"s_mov_b32 {s(sCNT2)}, {1 if opt.force_help else 256}")
    A("L_spin:")
    A(f"buffer_load_dword {v(vFR)}, {v(vFL)}, {s(SD,4)}, 0 offen sc1")
    A("s_waitcnt vmcnt(0)")
    A(f"v_readfirstlane_b32 {s(sFLAG)}, {v(vFR)}")
    A(f"s_sub_u32 {s(sCNT2)}, {s(sCNT2)}, 1")
    A("s_nop 2")
    A(f"s_cmp_eq_u32 {s(sFLAG)}, {FLAGOK}")
    A("s_cbranch_scc1 L_ready")
    A(f"s_cmp_lg_u32 {s(sCNT2)}, 0")
    A("s_cbranch_scc1 L_spin")
    A("s_branch L_help")
    A("L_ready:")
    E(kstage(4)); E(vstage(5)); E(kstage(5))
    if opt.tlbw:
        A(f"buffer_load_dword {v(vX)}, {v(vFL)}, {s(SO,4)}, {s(sCQ)} offen")
    A("@HOP 1")
    A("s_waitcnt vmcnt(@K4)"); A(bar_l())
    A(f"s_mov_b32 {s(sCNT)}, 10")
    A(f"s_mov_b32 {s(sSLOT)}, 8192")
    A("L_lloop:")
    A(f"s_add_u32 {s(sSLOT)}, {s(sSLOT)}, 8192")
    A(f"s_and_b32 {s(sSLOT)}, {s(sSLOT)}, 0x7fff")
    A(f"s_add_u32 {s(sVOFF)}, {s(sVOFF)}, 8192")
    A(f"s_and_b32 {s(sVOFF)}, {s(sVOFF)}, 0x1ffff")
    E(dma8(SV, sVOFF, (sSLOT, 32768), "V"))
    E(dma8(SW, sVOFF, (sSLOT, 0), "K", " sc1"))
    A("@LOOPHOPS")
    A("s_waitcnt vmcnt(16)")
    A("s_barrier"); nbar["l"] += 10
    A(f"s_sub_u32 {s(sCNT)}, {s(sCNT)}, 1")
    A(f"s_cmp_lg_u32 {s(sCNT)}, 0")
    A("s_cbranch_scc1 L_lloop")
    A("L_loader_slow:")
    A("s_waitcnt vmcnt(0)")
    A(bar_l())
    A("s_endpgm")
    loader = resolve_waits(L)
    L = list(partA)
    nA = len(L)
    A = L.append
    def bar_c(): nbar["c"] += 1; return "s_barrier"
    def dspin(lbl, ticks):
        E([f"{lbl}:", "s_memrealtime s[100:101]", "s_waitcnt lgkmcnt(0)", "s_sub_u32 s100, s100, s98",
           f"s_cmp_lt_u32 s100, {ticks}", f"s_cbranch_scc1 {lbl}"])
    A("L_main:")
    A(stamp("jumped"))
    take(len(late) // 2); E(qat("B")); take(len(late)); E(qat("C"))
    A("s_waitcnt vmcnt(@K0)")
    A(stamp("K0"))
    E(norm_k())
    E(kwrite(0))
    E(qat("K0"))
    A("s_waitcnt vmcnt(@Q0)")
    A(stamp("Q0"))
    E(qat("Q0"))
    h, tl = norm_tile(Q, "swap", True, T, [SB + 32, SB + 34, SB + 36, SB + 38])
    E(h)
    A("s_waitcnt lgkmcnt(0)")
    A(bar_c())
    A(stamp("BK"))
    for jj in range(2): A(k_read(jj, 0)); A(k_read(jj, 1))
    tc = t_check("L_slow")
    E(tc[:3]); A(f"v_mul_f32 {v(vTS)}, {s(sTS)}, {v(vTS)}"); E(tc[3:])
    E(tl)
    A("s_waitcnt lgkmcnt(0)")
    m0 = mf_step(-1, opt)
    A(k_read(2, 0))
    A(m0["q1"])
    A(k_read(2, 1)); A(k_read(3, 0)); A(k_read(3, 1))
    A(m0["q2"])
    E(qat("S")); A(f"s_nop {10 - len(qat('S'))}")
    A(stamp("step0"))
    slots, blocks = {}, {}
    def add(n, key, x): slots.setdefault((n, key), []).append(x)
    def blk(n, key, x): blocks.setdefault((n, key), []).extend(x)
    for jj in range(3, 62):
        n = 4 * jj
        add(n+1, "q2", "s_waitcnt lgkmcnt(0)")
        add(n+1, "r1", k_read(jj+1, 0)); add(n+1, "r2", k_read(jj+1, 1))
        add(n+2, "r1", v_read(jj+1, 0, 0))
        add(n+2, "p2", "s_waitcnt lgkmcnt(1)")
        add(n+2, "r2", v_read(jj+1, 0, 1))
        add(n+3, "r1", v_read(jj+1, 1, 0)); add(n+3, "r2", v_read(jj+1, 1, 1))
    blk(0, "r1", [bar_c()] + vreads(0) + vreads(1))
    blk(1, "q1", ["s_waitcnt lgkmcnt(8)"])
    add(1, "q2", "s_waitcnt lgkmcnt(0)")
    for key, x in zip(("p1", "r1", "p2", "r2"), vreads(2)): add(1, key, x)
    for key, x in zip(("p1", "r1", "p2", "r2"), vreads(3)): add(2, key, x)
    add(3, "q2", "s_waitcnt lgkmcnt(0)")
    for n in range(1, 8):
        for x in qat(str(n)): add(n, "q1", x)
    for i in (1, 2, 3):
        add(4 * i - 2, "q2", f"s_waitcnt vmcnt(@Q{i})")
        blk(4 * i - 2, "p1", norm_q(i, [KR, KR + 2, KR + 4, KR + 6]))
    def pub(n, st, key, n2, key2):
        z = kstore(st); add(n - 1, "q1", z[0]); add(n, "q1", z[1]); add(n, key, z[2]); add(n2, key2, z[3])
    r_ = kraw(0); add(7, "r1", r_[0]); add(7, "r2", r_[1])
    add(8, "q2", "s_waitcnt lgkmcnt(0)")
    pub(8, 0, "r1", 9, "r1"); pub(14, 1, "p1", 15, "p1"); pub(19, 2, "p2", 20, "p1"); pub(23, 3, "p2", 24, "p1")
    add(11, "p1", bar_c())
    r_ = kraw(1); add(11, "r1", r_[0]); add(11, "r2", r_[1])
    add(12, "q2", "s_waitcnt lgkmcnt(0)")
    blk(12, "p1", norm_k())
    w = kwrite(1); add(12, "r1", w[0]); add(12, "r2", w[1])
    add(13, "p1", bar_c())
    add(16, "p1", bar_c())
    r_ = kraw(2); add(16, "r1", r_[0]); add(16, "r2", r_[1])
    blk(19, "p1", norm_k())
    w = kwrite(2); add(20, "r1", w[0]); add(20, "r2", w[1])
    add(21, "p1", bar_c())
    r_ = kraw(3); add(21, "p2", r_[0]); add(22, "p1", r_[1])
    blk(23, "p1", norm_k())
    w = kwrite(3); add(24, "r1", w[0]); add(24, "r2", w[1])
    add(29, "p1", bar_c())
    add(opt.bflag, "p1", "s_waitcnt vmcnt(0)")
    add(opt.bflag, "p1", bar_c())
    for st in range(4, 16): add(16 * st - 3, "p1", bar_c())
    add(244, "r1", k_read(63, 0)); add(244, "r2", k_read(63, 1))
    add(248, "r1", v_read(63, 0, 0)); add(248, "r2", v_read(63, 0, 1))
    add(249, "q2", "s_waitcnt lgkmcnt(2)")
    add(249, "r1", v_read(63, 1, 0)); add(249, "r2", v_read(63, 1, 1))
    add(250, "q2", "s_waitcnt lgkmcnt(2)")
    add(250, "r1", "s_waitcnt lgkmcnt(0)")
    for i, n in ((0, 251), (1, 253)):
        blk(n, "p1", epi_valu(T + 2 * i, O + 16 * i, RS + 4 * i))
        st = epi_store(i, O + 16 * i); add(n, "p1", st[0]); add(n, "r1", st[1])
    if opt.amp >= 0 and opt.ampstep < 255 and not opt.ampat: add(opt.ampstep, "p2", "s_memrealtime s[96:97]")
    if opt.amp >= 0 and opt.ampfrom >= 0: add(opt.ampfrom, "p2", "s_memrealtime s[94:95]")
    for nn in opt.stepstamps.split(","): add(int(nn), "p2", stamp(f"step{nn}"))
    E(emit_steps(0, 255, opt, slots, blocks, skip={(0, "p1"), (0, "r1"), (0, "p2"), (0, "r2")}))
    m = mf_step(255, opt); m2 = mf_step(256, opt); ex = exps(255)
    A("; ---- step 255")
    A(m["p1"]); E(ex[0:3]); A(m["r1"]); E(ex[3:4]); A(m["p2"]); E(ex[4:7]); A(m["r2"]); E(ex[7:10])
    e2 = epi_valu(T + 4, O + 32, RS + 8)
    E(e2[:10])
    A(m2["p1"]); E(ex[10:13]); A(m2["r1"]); E(ex[13:16])
    E(e2[10:12])
    A(m2["r2"]); E(e2[12:14]); A(m2["p2"]); E(e2[14:])
    E(epi_store(2, O + 32))
    e3 = epi_valu(T + 6, O + 48, RS + 12)
    E(e3)
    E(epi_store(3, O + 48))
    assert nbar["c"] == nbar["l"], nbar
    if opt.stamps:
        A(stamp("stored"))
        A("s_waitcnt vmcnt(0)")
        A(stamp("done"))
        A("s_waitcnt lgkmcnt(0)")
        for i in range(len(STAMP_NAMES)): A(f"v_writelane_b32 {v(T)}, {s(62+2*i)}, {i}")
        A(f"s_lshl_b32 {s(sT0)}, s2, 2")
        A(f"s_add_u32 {s(sT0)}, {s(sT0)}, {s(sW)}")
        A(f"s_lshl_b32 {s(sT0)}, {s(sT0)}, 8")
        A(f"s_add_u32 {s(sT0)}, {s(sT0)}, 0x8000000")
        A(f"v_lshlrev_b32 {v(T+1)}, 2, v0")
        A(f"v_add_u32 {v(T+1)}, {s(sT0)}, {v(T+1)}")
        A(f"global_store_dword {v(T+1)}, {v(T)}, {s(sARG+12,2)}")
    if opt.spin: dspin("L_dspin", opt.spin)
    if opt.amp >= 0:
        if opt.amp != 999:
            A(f"s_cmp_lg_u32 s2, {opt.amp}"); A("s_cbranch_scc1 L_end")
        if opt.ampstep >= 255:
            A("s_waitcnt vmcnt(0)"); A("s_memrealtime s[96:97]"); A("s_waitcnt lgkmcnt(0)"); A("s_sub_u32 s96, s96, 2500")
        if opt.ampsub: A(f"s_sub_u32 s96, s96, {opt.ampsub}")
        A(f"s_sub_u32 s96, s96, {'s94' if opt.ampfrom >= 0 else 's98'}"); A("s_max_i32 s96, s96, 0"); A("s_mul_i32 s96, s96, 10"); A("s_add_u32 s96, s96, 4000")
        dspin("L_dspin", "s96")
    A("L_end:")
    A("s_endpgm")
    A("L_code_end:")
    L = resolve_waits(L)
    partA, partB = L[:nA], L[nA:]
    L = []
    A = L.append
    A("L_help:")
    A(f"s_mov_b32 {s(sCNT2)}, 48")
    A(f"s_add_u32 {s(sT3)}, {s(sCH)}, {32768-2048}")
    A("L_help_loop:")
    A(f"s_add_u32 {s(sT3)}, {s(sT3)}, 2048")
    A(f"s_and_b32 {s(sT3)}, {s(sT3)}, 0x1ffff")
    E(kload(s(sT3)))
    A("s_waitcnt vmcnt(0)")
    E(norm_k())
    A(f"buffer_store_dwordx4 {v(KR,4)}, {v(vLIN)}, {s(SW,4)}, {s(sT3)} offen sc1")
    A(f"buffer_store_dwordx4 {v(KR+4,4)}, {v(vLIN)}, {s(SW,4)}, {s(sT3)} offen offset:1024 sc1")
    A("s_waitcnt vmcnt(0)")
    A(f"s_sub_u32 {s(sCNT2)}, {s(sCNT2)}, 1")
    A(f"s_cmp_lg_u32 {s(sCNT2)}, 0")
    A("s_cbranch_scc1 L_help_loop")
    A("s_branch L_ready")
    A("L_slow:")
    A("s_waitcnt vmcnt(0) lgkmcnt(0)")
    A("s_barrier")
    for i in range(4): E(norm_q(i, [T + 2, T + 4, T + 6]))
    MX = SB + 16
    for i in range(4): A(f"v_mov_b32 {v(MX+i)}, 0xff800000")
    A(f"v_add_u32 {v(vAV)}, {s(sWL)}, {v(vAV)}")
    A(f"s_add_u32 m0, {s(sWL)}, 32768")
    A(f"s_mov_b32 {s(sKOFF)}, 0")
    A("L_slow_kv:")
    A(f"buffer_load_dwordx4 {v(KR,4)}, {v(vQL)}, {s(SK,4)}, {s(sKOFF)} offen")
    A(f"buffer_load_dwordx4 {v(KR+4,4)}, {v(vQL)}, {s(SK,4)}, {s(sKOFF)} offen offset:32")
    A(f"buffer_load_dwordx4 {v(vLIN)}, {s(SV,4)}, {s(sKOFF)} offen lds")
    A(f"buffer_load_dwordx4 {v(vLIN)}, {s(SV,4)}, {s(sKOFF)} offen offset:1024 lds")
    A("s_waitcnt vmcnt(0)")
    E(vreads(0))
    h, tl = norm_tile(KR, "swap", False, T, [T + 2, T + 4, T + 6]); E(h); E(tl)
    A("s_waitcnt lgkmcnt(0)")
    A("s_nop 1")
    for i in range(4):
        sb = SB
        A(f"v_mfma_f32_32x32x16_bf16 {v(sb,16)}, {v(KR,4)}, {v(Q+8*i,4)}, 0")
        A(f"v_mfma_f32_32x32x16_bf16 {v(sb,16)}, {v(KR+4,4)}, {v(Q+8*i+4,4)}, {v(sb,16)}")
        A("s_nop 15")
        A(f"v_max3_f32 {v(T)}, {v(sb)}, {v(sb+1)}, {v(MX+i)}")
        for r in range(2, 16, 2): A(f"v_max3_f32 {v(T)}, {v(sb+r)}, {v(sb+r+1)}, {v(T)}")
        A(f"v_mov_b32 {v(T+1)}, {v(T)}")
        A("s_nop 1")
        A(f"v_permlane32_swap_b32 {v(T)}, {v(T+1)}")
        A("s_nop 0")
        A(f"v_max_f32 {v(T)}, {v(T)}, {v(T+1)}")
        A(f"v_sub_f32 {v(T+2)}, {v(MX+i)}, {v(T)}")
        A(f"v_exp_f32 {v(T+2)}, {v(T+2)}")
        A(f"v_mov_b32 {v(MX+i)}, {v(T)}")
        for r in range(16): A(f"v_sub_f32 {v(sb+r)}, {v(sb+r)}, {v(T)}")
        for r in range(16): A(f"v_exp_f32 {v(sb+r)}, {v(sb+r)}")
        for r in range(16): A(f"v_mul_f32 {v(O+16*i+r)}, {v(O+16*i+r)}, {v(T+2)}")
        A(f"v_mul_f32 {v(RS+4*i)}, {v(RS+4*i)}, {v(T+2)}")
        A("s_nop 1")
        A(f"v_smfmac_f32_32x32x32_bf16 {v(O+16*i,16)}, {a(aV,4)}, {v(sb,8)}, {v(vIDX)}")
        A(f"v_smfmac_f32_16x16x64_bf16 {v(RS+4*i,4)}, {v(ONES,4)}, {v(sb,8)}, {v(vIDX)}")
        A(f"v_smfmac_f32_32x32x32_bf16 {v(O+16*i,16)}, {a(aV+4,4)}, {v(sb+8,8)}, {v(vIDX)}")
        A(f"v_smfmac_f32_16x16x64_bf16 {v(RS+4*i,4)}, {v(ONES,4)}, {v(sb+8,8)}, {v(vIDX)}")
    A("s_nop 15")
    A(f"s_add_u32 {s(sKOFF)}, {s(sKOFF)}, 2048")
    A(f"s_cmp_lt_u32 {s(sKOFF)}, 0x20000")
    A("s_cbranch_scc1 L_slow_kv")
    for i in range(4):
        E(epi_valu(T + 2 * (i % 2), O + 16 * i, RS + 4 * i)); E(epi_store(i, O + 16 * i))
    A("s_endpgm")
    return partA + loader + [".p2align 12"] + partB + L

HEAD = open("standalone__qk_norm__prompt.s.ref").read().split("; Override launch")[0]

def isize(lines):
    import subprocess, tempfile
    ins = [x for x in lines if not (x.endswith(":") or x.startswith((".", ";", "@")))]
    src = '.amdgcn_target "amdgcn-amd-amdhsa--gfx950"\n.text\n' + "\n".join(x for x in lines if not x.startswith((".", "@"))) + "\n"
    d = tempfile.mkdtemp()
    open(d + "/a.s", "w").write(src)
    subprocess.run(["clang", "-x", "assembler", "-target", "amdgcn-amd-amdhsa", "-mcpu=gfx950", "-c", d + "/a.s", "-o", d + "/a.o"], check=True)
    o = subprocess.run(["llvm-objdump", "-d", "--mcpu=gfx950", d + "/a.o"], capture_output=True, text=True).stdout
    sz = [4 * len(m.group(1).split()) for m in re.finditer(r"// [0-9A-F]{12}: ([0-9A-F ]+)", o)]
    assert len(sz) == len(ins), (len(sz), len(ins))
    return sz

def place_pads(L, hop):
    sz = iter(isize(L))
    out, off, npad, active, pre = [], 0, 0, False, 0
    for i, x in enumerate(L):
        out.append(x)
        if x == "L_main:": active, pre, off = hop, off, 0
        if x == "L_code_end:": active = False; total = off
        if x.endswith(":") or x.startswith((".", ";", "@")): continue
        off += next(sz)
        if active and off >= 4096 * (npad + 1):
            nxt = next(y for y in L[i+1:] if not y.startswith(";"))
            good = x.startswith(("v_mfma", "v_smfmac")) and nxt.startswith("v_exp")
            if good or off - 4096 * (npad + 1) > 52:
                npad += 1
                out += [f"L_pad{npad}:", f"@PAD{npad}"]
                off += 4
    res, nxtpad, tgt, nh = [], 1, {}, 0
    for x in out:
        if x.startswith("@HOP"):
            k = min(int(x.split()[1]), npad - nxtpad + 1)
            if k > 0:
                nh += 1
                for p in range(nxtpad, nxtpad + k): tgt[p] = f"L_pad{p+1}" if p + 1 < nxtpad + k else f"L_hop{nh}"
                res += [f"s_branch L_pad{nxtpad}", f"L_hop{nh}:"]
                nxtpad += k
        elif x == "@LOOPHOPS":
            c = 10
            for p in range(nxtpad, npad + 1):
                tgt[p] = "L_hopx"
                res += [f"s_cmp_eq_u32 {s(sCNT)}, {c}", f"s_cbranch_scc1 L_pad{p}"]
                c -= HOPSTRIDE
                assert c >= 0
            res.append("L_hopx:")
        elif x.startswith("@PAD"): res.append(f"s_cbranch_vccnz {tgt[int(x[4:])]}")
        else: res.append(x)
    sys.stderr.write(f"entry+loader {pre} bytes, main {total} bytes, {npad} pads\n")
    return res

def render(opt):
    body = [x for x in gen(opt) if not x.startswith("; stamp")]
    body = place_pads(body, opt.hop)
    o = HEAD
    o += "; Override launch geometry by editing the next line (default: block=256,\n"
    o += f"; @launch grid=(256,1,1) block=(320,1,1) lds={opt.ldsb}\n"
    o += f""".amdgcn_target "amdgcn-amd-amdhsa--gfx950"
.text
.globl {NAME}_kernel
.p2align 8
.type {NAME}_kernel,@function
{NAME}_kernel:
"""
    for x in body:
        o += (x if x.endswith(":") or x.startswith(".") else "    " + x) + "\n"
    o += f""".section .rodata,"a"
.p2align 6
.amdhsa_kernel {NAME}_kernel
  .amdhsa_next_free_vgpr {NV+NA}
  .amdhsa_next_free_sgpr 102
  .amdhsa_accum_offset {NV}
  .amdhsa_group_segment_fixed_size 0
  .amdhsa_kernarg_size 56
  .amdhsa_user_sgpr_count 2
  .amdhsa_user_sgpr_kernarg_segment_ptr 1
  .amdhsa_system_sgpr_workgroup_id_x 1
.end_amdhsa_kernel
"""
    return o

if __name__ == "__main__":
    opt = Opt()
    out = sys.argv[1]
    for kv in sys.argv[2:]:
        k, val = kv.split("=")
        cur = getattr(opt, k)
        setattr(opt, k, type(cur)(val) if not isinstance(cur, bool) else val in ("1", "True"))
    open(out, "w").write(render(opt))
    if opt.stamps: open(out + ".stamps", "w").write(" ".join(STAMP_NAMES))
```

```python
import sys, struct, re
NAME = "standalone__qk_norm__prompt"

def f2u(x): return struct.unpack("<I", struct.pack("<f", x))[0]
LOG2E = 1.4426950408889634

class Opt:
    thresh = 16.0
    cinit = "4.0"
    force_help = 0
    stamps = 0
    cyc = False
    pfkb = 12
    hop = True
    lprio = 3
    qrot = True
    krot = True
    qfirst = False
    tlbw = False
    q1at = 'K0'
    q2at = 'S'
    q3at = '4'
    bflag = 33
    pfpages = True
    ldsb = 65536
    b3 = 37
    pre_n = 24
    osc = 'nt'
    spin = 0
    amp = -1
    ampstep = 2
    ampfrom = -1
    ampat = ''
    ampsub = 0
    stepstamps = "1,7,14,30,62,126,190,247"

SQ, SK, SV, SO, SW, SD = 4, 8, 12, 16, 20, 24
sW, sJ, sHEAD, sTS = 28, 29, 30, 31
sBASE, sVOFF, sKOFF, sCNT = 32, 33, 34, 35
sARG = 36
sT0, sT1, sT2, sT3 = 50, 51, 52, 53
sFLAG = 54
sWL = 55
sT4 = 56
sCQ = 57
sCH = 58
sSLOT = 59
sCNT2 = 60
sEPS = 61
vQL, vLIN, vAV, vKW, vIDX, vKL, vAK0, vAK1, vOO, vTS, vX = 1, 2, 3, 4, 5, 6, 7, 8, 9, 10, 11
T = 12
ONES = 20
KR = 24
Q = 32
O = 64
RS = 128
SB = 144
NV = 192
NSB = 3
vFO, vONE, vFL, vFR, vTHREE = 3, 5, 7, 8, 4
sRET = sBASE
aK = 0
aV = 32
NA = 64

def v(a, n=1): return f"v{a}" if n == 1 else f"v[{a}:{a+n-1}]"
def a(x, n=1): return f"a{x}" if n == 1 else f"a[{x}:{x+n-1}]"
def s(x, n=1): return f"s{x}" if n == 1 else f"s[{x}:{x+n-1}]"

def norm_tile(t, mode, isq, tmp, U):
    x, y = tmp, tmp + 1
    unp = []
    for i in range(8):
        w = U[i % len(U)]
        unp.append([f"v_lshlrev_b32 {v(w)}, 16, {v(t+i)}", f"v_and_b32 {v(w+1)}, 0xffff0000, {v(t+i)}"])
    early = [z for i in range(len(U)) for z in unp[i]]
    used = [0]
    def pad(n):
        o = early[used[0]:used[0] + n]; used[0] += len(o)
        if len(o) < n: o.append(f"s_nop {n-len(o)-1}")
        return o
    o = [f"v_dot2_f32_bf16 {v(x)}, {v(t+i)}, {v(t+i)}, {'0' if i==0 else v(x)}" for i in range(8)]
    o += pad(3)
    if mode == "swap":
        o += [f"v_mov_b32 {v(y)}, {v(x)}"] + pad(2) + [f"v_permlane32_swap_b32 {v(x)}, {v(y)}"] + pad(1)
        o += [f"v_add_f32 {v(x)}, {v(x)}, {v(y)}"]
    else:
        o.append(f"v_add_f32_dpp {v(x)}, {v(x)}, {v(x)} quad_perm:[1,0,3,2] row_mask:0xf bank_mask:0xf")
    o += [f"v_sqrt_f32 {v(x)}, {v(x)}"] + pad(1) + [f"v_add_f32 {v(x)}, {s(sEPS)}, {v(x)}", f"v_rcp_f32 {v(x)}, {v(x)}"] + pad(1)
    tail = []
    if isq: tail.append(f"v_mul_f32 {v(x)}, {v(vTS)}, {v(x)}")
    for i in range(8):
        w = U[i % len(U)]
        tail += [z for k, z in enumerate(unp[i]) if 2 * i + k >= used[0]]
        tail += [f"v_pk_mul_f32 {v(w,2)}, {v(w,2)}, {v(x,2)} op_sel_hi:[1,0]",
                 f"v_cvt_pk_bf16_f32 {v(t+i)}, {v(w)}, {v(w+1)}"]
    return o, tail
def norm_k(): h, t = norm_tile(KR, "dpp", False, T, [T + 2, T + 4, T + 6]); return h + t
def norm_q(i, U): h, t = norm_tile(Q + 8 * i, "swap", True, T, U); return h + t

def epi_valu(tmp, oreg, rsreg):
    o = [f"v_rcp_f32 {v(tmp)}, {v(rsreg)}", "s_nop 0"]
    for r in range(0, 16, 2):
        o.append(f"v_pk_mul_f32 {v(oreg+r,2)}, {v(oreg+r,2)}, {v(tmp,2)} op_sel_hi:[1,0]")
    for r in range(8):
        o.append(f"v_cvt_pk_bf16_f32 {v(oreg+r)}, {v(oreg+2*r)}, {v(oreg+2*r+1)}")
    for r in range(4):
        o.append(f"v_permlane16_swap_b32 {v(oreg+r)}, {v(oreg+4+r)}")
    return o
OSC = ""
QOFS = [sVOFF, sCNT, sFLAG, sSLOT]
def epi_store(i, oreg):
    so = s(QOFS[i])
    return [f"buffer_store_dwordx4 {v(oreg,4)}, {v(vOO)}, {s(SO,4)}, {so} offen {OSC}",
            f"buffer_store_dwordx4 {v(oreg+4,4)}, {v(vOO)}, {s(SO,4)}, {so} offen offset:1024 {OSC}"]

def tile_of(n):
    if 248 <= n < 256: return 62 + (n - 248) % 2, (n - 248) // 2
    if 0 <= n < 16: return n % 4, n // 4
    return n // 4, n % 4
def buf_of(jj): return 2 if jj == 63 else (jj if jj in (2, 3) else jj % 2)

def resolve_waits(L):
    out = []
    for i, x in enumerate(L):
        m = re.search(r"vmcnt\(@(\w+)\)", x)
        if m:
            n = 0
            for y in reversed(L[:i]):
                if y.startswith(("buffer_", "global_")):
                    if y.endswith(";#" + m.group(1)): break
                    n += 1
            else:
                raise Exception("tag not found " + x)
            assert n < 64
            x = x.replace(m.group(0), f"vmcnt({n})") + "   ; " + m.group(1)
        out.append(x)
    return out

def mf_step(n, opt):
    n1, n0 = n + 1, n - 1
    j1, i1 = tile_of(n1)
    j0, i0 = tile_of(n0)
    nxt, prv = SB + 16 * (n1 % NSB), SB + 16 * (n0 % NSB)
    kf, vf = aK + 8 * buf_of(j1), aV + 8 * buf_of(j0)
    return {
        "q1": f"v_mfma_f32_32x32x16_bf16 {v(nxt,16)}, {a(kf,4)}, {v(Q+8*i1,4)}, {opt.cinit}",
        "q2": f"v_mfma_f32_32x32x16_bf16 {v(nxt,16)}, {a(kf+4,4)}, {v(Q+8*i1+4,4)}, {v(nxt,16)}",
        "p1": f"v_smfmac_f32_32x32x32_bf16 {v(O+16*i0,16)}, {a(vf,4)}, {v(prv,8)}, {v(vIDX)}",
        "r1": f"v_smfmac_f32_16x16x64_bf16 {v(RS+4*i0,4)}, {v(ONES,4)}, {v(prv,8)}, {v(vIDX)}",
        "p2": f"v_smfmac_f32_32x32x32_bf16 {v(O+16*i0,16)}, {a(vf+4,4)}, {v(prv+8,8)}, {v(vIDX)}",
        "r2": f"v_smfmac_f32_16x16x64_bf16 {v(RS+4*i0,4)}, {v(ONES,4)}, {v(prv+8,8)}, {v(vIDX)}"}

ORDER = ["q1", "q2", "p1", "r1", "p2", "r2"]
PAT = [4, 4, 3, 1, 3, 1]

def k_read(jj, f):
    return f"ds_read_b128 {a(aK+8*buf_of(jj)+4*f,4)}, {v(vAK0+f)} offset:{(jj%16)*2048}"
def v_read(jj, m, t):
    return f"ds_read_b64_tr_b16 {a(aV+8*buf_of(jj)+4*m+2*t,2)}, {v(vAV)} offset:{32768+(jj%16)*2048+1024*m+256*t}"
def vreads(jj): return [v_read(jj, m_, t_) for m_ in range(2) for t_ in range(2)]
def exps(n):
    cur = SB + 16 * (n % NSB)
    return [f"v_exp_f32 {v(cur+e)}, {v(cur+e)}" for e in range(16)]

def emit_steps(n_lo, n_hi, opt, slots, blocks, skip=()):
    out = []
    for n in range(n_lo, n_hi):
        m = mf_step(n, opt)
        ex = exps(n)
        k = 0
        for key, c in zip(ORDER, PAT):
            out += blocks.get((n, key), [])
            if (n, key) not in skip: out.append(m[key])
            out += slots.get((n, key), [])
            out += ex[k:k+c]
            k += c
    return out

STAMP_NAMES = []
HOPSTRIDE = 2
def gen(opt):
    global OSC
    OSC = opt.osc.replace('_', ' ')
    STAMP_NAMES.clear()
    def stamp(name):
        if opt.ampat == name: return "s_memrealtime s[96:97]"
        if not opt.stamps or (opt.stamps == 2 and name not in ("entry", "done")): return "; stamp " + name
        i = len(STAMP_NAMES); STAMP_NAMES.append(name)
        assert i < 17
        return f"{'s_memtime' if opt.cyc else 's_memrealtime'} {s(62+2*i,2)}"
    def kload(so):
        return [f"buffer_load_dwordx4 {v(KR,4)}, {v(vKL)}, {s(SK,4)}, {so} offen",
                f"buffer_load_dwordx4 {v(KR+4,4)}, {v(vKL)}, {s(SK,4)}, {so} offen offset:16 ;#K0"]
    def qload(i):
        so = s(QOFS[i])
        return [f"buffer_load_dwordx4 {v(Q+8*i,4)}, {v(vQL)}, {s(SQ,4)}, {so} offen",
                f"buffer_load_dwordx4 {v(Q+8*i+4,4)}, {v(vQL)}, {s(SQ,4)}, {so} offen offset:32 ;#Q{i}"]
    def kwrite(st):
        return [f"ds_write_b128 {v(vKW)}, {v(KR,4)} offset:{8192*st}",
                f"ds_write_b128 {v(vKW)}, {v(KR+4,4)} offset:{8192*st+1024}"]
    def kstore(st):
        return [f"s_add_u32 {s(sT0)}, {s(sBASE)}, {8192*st}", f"s_and_b32 {s(sT0)}, {s(sT0)}, 0x1ffff",
                f"buffer_store_dwordx4 {v(KR,4)}, {v(vLIN)}, {s(SW,4)}, {s(sT0)} offen sc1",
                f"buffer_store_dwordx4 {v(KR+4,4)}, {v(vLIN)}, {s(SW,4)}, {s(sT0)} offen offset:1024 sc1 ;#S{st}"]
    def kraw(st):
        return [f"ds_read_b128 {v(KR,4)}, {v(vKW)} offset:{8192*st}",
                f"ds_read_b128 {v(KR+4,4)}, {v(vKW)} offset:{8192*st+1024}"]
    def srd_base(srd, arg):
        return [f"s_add_u32 {s(srd)}, {s(sARG+arg)}, {s(sT2)}", f"s_addc_u32 {s(srd+1)}, {s(sARG+arg+1)}, 0"]
    def srd_dbg(): return [f"s_mov_b32 {s(SD)}, {s(sARG+10)}", f"s_mov_b32 {s(SD+1)}, {s(sARG+11)}"]
    def t_check(lbl):
        return [f"s_lshr_b32 {s(sTS)}, {s(sTS)}, {s(sT1)}", f"s_lshl_b32 {s(sTS)}, {s(sTS)}, 16",
                f"s_and_b32 {s(sT0)}, {s(sTS)}, 0x7fffffff",
                f"s_cmp_gt_u32 {s(sT0)}, {hex(f2u(opt.thresh))}",
                f"s_cbranch_scc1 {lbl}"]
    nbar = {"c": 0, "l": 0}
    L = []
    A = L.append
    def E(x): L.extend(x)
    A("s_cmp_ge_u32 s2, 256")
    A("s_cbranch_scc1 L_end")
    A(stamp("entry"))
    if opt.spin or opt.amp >= 0: A("s_memrealtime s[98:99]")
    A(f"s_load_dwordx8 {s(sARG,8)}, s[0:1], 0")
    A(f"s_load_dwordx4 {s(sARG+8,4)}, s[0:1], 32")
    A(f"s_load_dwordx2 {s(sARG+12,2)}, s[0:1], 48")
    if opt.pfkb:
        A(f"s_getpc_b64 {s(sT0,2)}")
        A(f"v_lshlrev_b32 {v(T+2)}, 7, v0")
        A(f"v_min_u32 {v(T+2)}, {opt.pfkb*1024}, {v(T+2)}")
        A(f"v_mov_b32 {v(T+3)}, {s(sT1)}")
        A(f"v_add_co_u32 {v(T+2)}, vcc, {s(sT0)}, {v(T+2)}")
    A(f"v_lshrrev_b32 {v(T)}, 6, v0")
    A(f"v_and_b32 v0, 63, v0")
    if opt.pfkb:
        A(f"v_addc_co_u32 {v(T+3)}, vcc, 0, {v(T+3)}, vcc")
        A(f"global_load_dword {v(vX)}, {v(T+2,2)}, off")
    A(f"v_readfirstlane_b32 {s(sW)}, {v(T)}")
    A(f"s_and_b32 {s(sT0)}, s2, 7")
    A(f"s_lshr_b32 {s(sT1)}, s2, 3")
    A(f"s_and_b32 {s(sJ)}, {s(sT1)}, 3")
    A(f"s_lshr_b32 {s(sT1)}, {s(sT1)}, 2")
    A(f"s_lshl_b32 {s(sT0)}, {s(sT0)}, 3")
    A(f"s_add_u32 {s(sHEAD)}, {s(sT0)}, {s(sT1)}")
    A(f"s_lshl_b32 {s(sT2)}, {s(sHEAD)}, 17")
    A(f"s_lshl_b32 {s(sCQ)}, {s(sJ)}, 15")
    if opt.krot:
        A(f"s_and_b32 {s(sCH)}, {s(sHEAD)}, 3")
        A(f"s_lshl_b32 {s(sCH)}, {s(sCH)}, 13")
        A(f"s_add_u32 {s(sCH)}, {s(sCH)}, {s(sCQ)}")
    else:
        A(f"s_mov_b32 {s(sCH)}, {s(sCQ)}")
    A(f"s_and_b32 {s(sT3)}, {s(sHEAD)}, 30")
    A(f"s_lshl_b32 {s(sT3)}, {s(sT3)}, 1")
    A(f"s_and_b32 {s(sT1)}, {s(sHEAD)}, 1")
    A(f"s_lshl_b32 {s(sT1)}, {s(sT1)}, 4")
    A(f"v_bfe_u32 {v(T+2)}, v0, 4, 1")
    A(f"v_xor_b32 {v(T+2)}, {v(T+2)}, v0")
    A(f"v_lshlrev_b32 {v(vKL)}, 5, {v(T+2)}")
    A(f"v_lshlrev_b32 {v(vLIN)}, 4, v0")
    for srd in (SK, SQ, SV, SO, SW):
        A(f"s_mov_b32 {s(srd+2)}, 0x20000")
        A(f"s_mov_b32 {s(srd+3)}, 0x20000")
    A(f"s_mov_b32 {s(SD+2)}, 256")
    A(f"s_mov_b32 {s(SD+3)}, 0x20000")
    A(f"s_mov_b32 {s(sEPS)}, {hex(f2u(1e-6))}")
    A(f"s_cmp_ge_u32 {s(sW)}, 4")
    A("s_cbranch_scc1 L_loader")
    A("s_mov_b64 vcc, 0")
    A(f"s_lshl_b32 {s(sWL)}, {s(sW)}, 11")
    A(f"s_lshl_b32 {s(sT4)}, {s(sW)}, 13")
    A(f"s_add_u32 {s(sT4)}, {s(sT4)}, {s(sCQ)}")
    for i in range(4):
        if opt.qrot:
            A(f"s_add_u32 {s(QOFS[i])}, {s(sWL)}, {2048*i}")
            A(f"s_and_b32 {s(QOFS[i])}, {s(QOFS[i])}, 0x1fff")
            A(f"s_add_u32 {s(QOFS[i])}, {s(QOFS[i])}, {s(sT4)}")
        else:
            A(f"s_add_u32 {s(QOFS[i])}, {s(sT4)}, {2048*i}")
    A(f"s_add_u32 {s(sBASE)}, {s(sCH)}, {s(sWL)}")
    A(f"v_and_b32 {v(T)}, 31, v0")
    A(f"v_lshrrev_b32 {v(T+1)}, 5, v0")
    A(f"v_lshlrev_b32 {v(vQL)}, 6, {v(T)}")
    A(f"v_lshl_add_u32 {v(vQL)}, {v(T+1)}, 4, {v(vQL)}")
    late = []
    B = late.append
    B(f"v_mov_b32 {v(vIDX)}, 0xdddddddd")
    B(f"v_add_u32 {v(vKW)}, {s(sWL)}, {v(vLIN)}")
    B(f"v_bfe_u32 {v(T+2)}, v0, 3, 1")
    B(f"v_lshl_add_u32 {v(T+2)}, {v(T)}, 1, {v(T+2)}")
    B(f"v_lshlrev_b32 {v(T+2)}, 4, {v(T+2)}")
    B(f"v_lshl_add_u32 {v(vAK0)}, {v(T+1)}, 10, {v(T+2)}")
    B(f"v_xor_b32 {v(vAK1)}, 16, {v(vAK0)}")
    B(f"v_bfe_u32 {v(T+2)}, v0, 2, 2")
    B(f"v_lshl_add_u32 {v(T+2)}, {v(T+1)}, 3, {v(T+2)}")
    B(f"v_lshlrev_b32 {v(vAV)}, 6, {v(T+2)}")
    B(f"v_and_b32 {v(T+2)}, 1, v0")
    B(f"v_lshl_add_u32 {v(vAV)}, {v(T+2)}, 5, {v(vAV)}")
    B(f"v_bfe_u32 {v(T+2)}, v0, 4, 1")
    B(f"v_lshl_add_u32 {v(vAV)}, {v(T+2)}, 4, {v(vAV)}")
    B(f"v_bfe_u32 {v(T+2)}, v0, 1, 1")
    B(f"v_lshl_add_u32 {v(vAV)}, {v(T+2)}, 3, {v(vAV)}")
    B(f"v_and_b32 {v(T+2)}, 15, v0")
    B(f"v_and_b32 {v(T+3)}, 48, v0")
    B(f"v_lshl_add_u32 {v(vOO)}, {v(T+2)}, 6, {v(T+3)}")
    B(f"v_and_b32 {v(T+2)}, 7, v0")
    B(f"v_lshlrev_b32_e64 {v(T+2)}, {v(T+2)}, 1")
    B(f"v_bfe_i32 {v(T+3)}, {v(T+2)}, 0, 1")
    B(f"v_and_b32 {v(ONES)}, 0x3f803f80, {v(T+3)}")
    B(f"v_and_b32 {v(ONES+1)}, 0x3f803f80, {v(T+3)}")
    B(f"v_bfe_i32 {v(T+3)}, {v(T+2)}, 4, 1")
    B(f"v_and_b32 {v(ONES+2)}, 0x3f803f80, {v(T+3)}")
    B(f"v_and_b32 {v(ONES+3)}, 0x3f803f80, {v(T+3)}")
    B(f"v_mov_b32 {v(vTS)}, {hex(f2u(LOG2E))}")
    for r in range(O, RS + 16, 2): B(f"v_mov_b64 {v(r,2)}, 0")
    def take(k):
        E(late[:k]); del late[:k]
    take(opt.pre_n)
    A("s_waitcnt lgkmcnt(0)")
    A(stamp("kernarg"))
    if opt.qfirst:
        E(srd_base(SQ, 0)); E(qload(0))
        E(srd_base(SK, 2)); E(kload(s(sBASE)))
    else:
        E(srd_base(SK, 2)); E(kload(s(sBASE)))
        E(srd_base(SQ, 0)); E(qload(0))
    A(f"s_load_dword {s(sTS)}, {s(sARG+6,2)}, {s(sT3)}")
    E(srd_base(SV, 4)); E(srd_base(SO, 8)); E(srd_base(SW, 12)); E(srd_dbg())
    def qat(where):
        o = []
        for i, w_ in ((1, opt.q1at), (2, opt.q2at), (3, opt.q3at)):
            if w_ == where: o += qload(i)
        return o
    if qat("A"): take(8); E(qat("A"))
    A("s_branch L_main")
    partA = L
    L = []
    A = L.append
    def bar_l(): nbar["l"] += 1; return "s_barrier"
    def dma8(srd, so_reg, lds, tag, extra=""):
        o = []
        for hlf in range(2):
            if isinstance(lds, tuple): o.append(f"s_add_u32 m0, {s(lds[0])}, {lds[1] + 4096*hlf}")
            else: o.append(f"s_mov_b32 m0, {lds + 4096*hlf}")
            if hlf: o.append(f"s_add_u32 {s(sT0)}, {s(so_reg)}, 4096")
            else: o.append("s_nop 0")
            for k in range(4):
                o.append(f"buffer_load_dwordx4 {v(vLIN)}, {s(srd,4)}, {s(sT0 if hlf else so_reg)} offen offset:{1024*k}{extra} lds")
        o[-1] += f" ;#{tag}"
        return o
    def vstage(st):
        return [f"s_add_u32 {s(sVOFF)}, {s(sCH)}, {8192*st}", f"s_and_b32 {s(sVOFF)}, {s(sVOFF)}, 0x1ffff"] + \
               dma8(SV, sVOFF, 32768 + 8192 * (st % 4), f"V{st}")
    def kstage(st):
        return [f"s_add_u32 {s(sKOFF)}, {s(sCH)}, {8192*st}", f"s_and_b32 {s(sKOFF)}, {s(sKOFF)}, 0x1ffff"] + \
               dma8(SW, sKOFF, 8192 * (st % 4), f"K{st}", " sc1")
    def rawk(st):
        o = []
        for hlf in range(2):
            o.append(f"s_add_u32 {s(sT0)}, {s(sCH)}, {8192*st + 4096*hlf}")
            o.append(f"s_and_b32 {s(sT0)}, {s(sT0)}, 0x1ffff")
            for f in range(2):
                o += [f"s_mov_b32 m0, {8192*st + 4096*hlf + 1008*f}", "s_nop 0"]
                for k in range(2):
                    o.append(f"buffer_load_dwordx4 {v(vKL)}, {s(SK,4)}, {s(sT0)} offen offset:{2048*k + 16*f} lds")
        o[-1] += f" ;#R{st}"
        return o
    def publish(st, base):
        o = [f"ds_read_b128 {v(base+4*k,4)}, {v(vLIN)} offset:{8192*st + 1024*k}" for k in range(8)]
        o += [f"s_add_u32 {s(sT0)}, {s(sCH)}, {8192*st}", f"s_add_u32 {s(sT3)}, {s(sCH)}, {8192*st+4096}", "s_waitcnt lgkmcnt(0)"]
        o += [f"buffer_store_dwordx4 {v(base+4*k,4)}, {v(vLIN)}, {s(SW,4)}, {s(sT0 if k < 4 else sT3)} offen offset:{1024*(k%4)} sc1" for k in range(8)]
        return o
    A("L_loader:")
    if opt.lprio: A(f"s_setprio {opt.lprio}")
    A("s_mov_b64 vcc, -1")
    A(f"s_lshl_b32 {s(sT0)}, {s(sHEAD)}, 2")
    A(f"v_mov_b32 {v(vFL)}, {s(sT0)}")
    A(f"s_add_u32 {s(sT0)}, {s(sT0)}, {s(sJ)}")
    A(f"v_lshl_add_u32 {v(vFO)}, v0, 8, {s(sT0)}")
    A(f"v_mov_b32 {v(vONE)}, 1")
    A(f"v_mov_b32 {v(vTHREE)}, 3")
    A(f"v_and_b32 {v(T+4)}, 7, v0")
    A(f"v_lshlrev_b32 {v(T+4)}, 7, {v(T+4)}")
    A(f"v_lshrrev_b32 {v(T+5)}, 3, v0")
    A(f"v_lshlrev_b32 {v(T+5)}, 12, {v(T+5)}")
    A(f"v_mov_b32 {v(vOO)}, -1")
    A("s_waitcnt lgkmcnt(0)")
    A(f"s_load_dword {s(sTS)}, {s(sARG+6,2)}, {s(sT3)}")
    E(srd_base(SK, 2)); E(srd_base(SQ, 0)); E(srd_base(SV, 4)); E(srd_base(SO, 8)); E(srd_base(SW, 12)); E(srd_dbg())
    E(vstage(0))
    A("s_waitcnt lgkmcnt(0)")
    A(bar_l())
    E(t_check("L_loader_slow"))
    E(rawk(1))
    if opt.pfpages:
        A(f"s_getpc_b64 {s(sT0,2)}")
        A("L_pc1:")
        A(f"s_add_u32 {s(sT0)}, {s(sT0)}, L_main-L_pc1+4096")
        A(f"s_addc_u32 {s(sT1)}, {s(sT1)}, 0")
        A(f"v_mov_b32 {v(T+3)}, {s(sT1)}")
        A(f"v_or_b32 {v(T+2)}, {s(sT0)}, {v(T+4)}")
        A(f"v_add_co_u32 {v(T+2)}, {s(sT2,2)}, {v(T+2)}, {v(T+5)}")
        A("s_nop 1")
        A(f"v_addc_co_u32 {v(T+3)}, {s(sT2,2)}, 0, {v(T+3)}, {s(sT2,2)}")
        A(f"global_load_dword {v(vX)}, {v(T+2,2)}, off")
    A("s_waitcnt vmcnt(@V0)"); A(bar_l())
    E(vstage(1))
    A("@HOP 1")
    A("s_waitcnt vmcnt(@R1)"); A(bar_l())
    A("s_waitcnt vmcnt(@V1)")
    E(rawk(2))
    A(bar_l())
    E(vstage(2))
    A("@HOP 1")
    A("s_waitcnt vmcnt(@R2)"); A(bar_l())
    E(rawk(3))
    A("s_waitcnt vmcnt(@V2)"); A(bar_l())
    E(vstage(3))
    A(bar_l())
    A(f"buffer_store_byte {v(vONE)}, {v(vFO)}, {s(SD,4)}, 0 offen sc1")
    A("s_waitcnt vmcnt(@R3)"); A(bar_l())
    E(vstage(4))
    A("s_waitcnt vmcnt(@V3)"); A(bar_l())
    def poll(k, mask):
        o = [f"s_mov_b32 {s(sRET)}, {k}", f"s_mov_b32 {s(sCNT2)}, {1 if opt.force_help == k else 256}",
             f"L_spin{k}:",
             f"buffer_load_dword {v(vFR)}, {v(vFL)}, {s(SD,4)}, 0 offen sc1",
             "s_waitcnt vmcnt(0)",
             f"v_readfirstlane_b32 {s(sFLAG)}, {v(vFR)}",
             f"s_sub_u32 {s(sCNT2)}, {s(sCNT2)}, 1",
             "s_nop 2",
             f"s_and_b32 {s(sFLAG)}, {s(sFLAG)}, {hex(mask)}",
             f"s_cmp_eq_u32 {s(sFLAG)}, {hex(mask + (4 if opt.force_help == k else 0))}",
             f"s_cbranch_scc1 L_ready{k}",
             f"s_cmp_lg_u32 {s(sCNT2)}, 0",
             f"s_cbranch_scc1 L_spin{k}",
             "s_branch L_help",
             f"L_ready{k}:"]
        return o
    E(poll(1, 0x01010101))
    E(kstage(4)); E(vstage(5)); E(kstage(5))
    A("@HOP 1")
    A("s_waitcnt vmcnt(@K4)"); A(bar_l())
    A(f"buffer_store_byte {v(vTHREE)}, {v(vFO)}, {s(SD,4)}, 0 offen sc1")
    E(vstage(6))
    A("@HOP 1")
    A("s_waitcnt vmcnt(@K5)"); A(bar_l())
    A(f"s_cmp_eq_u32 {s(sRET)}, 3")
    A("s_cbranch_scc1 L_ready2")
    E(poll(2, 0x02020202))
    E(kstage(6)); E(vstage(7)); E(kstage(7))
    A("s_waitcnt vmcnt(@K6)"); A(bar_l())
    A(f"s_mov_b32 {s(sCNT)}, 8")
    A(f"s_mov_b32 {s(sSLOT)}, 24576")
    A("L_lloop:")
    A(f"s_add_u32 {s(sSLOT)}, {s(sSLOT)}, 8192")
    A(f"s_and_b32 {s(sSLOT)}, {s(sSLOT)}, 0x7fff")
    A(f"s_add_u32 {s(sVOFF)}, {s(sVOFF)}, 8192")
    A(f"s_and_b32 {s(sVOFF)}, {s(sVOFF)}, 0x1ffff")
    E(dma8(SV, sVOFF, (sSLOT, 32768), "V"))
    E(dma8(SW, sVOFF, (sSLOT, 0), "K", " sc1"))
    A("@LOOPHOPS")
    A("s_waitcnt vmcnt(16)")
    A("s_barrier"); nbar["l"] += 8
    A(f"s_sub_u32 {s(sCNT)}, {s(sCNT)}, 1")
    A(f"s_cmp_lg_u32 {s(sCNT)}, 0")
    A("s_cbranch_scc1 L_lloop")
    A("L_loader_slow:")
    A("s_waitcnt vmcnt(0)")
    A(bar_l())
    A("s_endpgm")
    loader = resolve_waits(L)
    L = list(partA)
    nA = len(L)
    A = L.append
    def bar_c(): nbar["c"] += 1; return "s_barrier"
    def dspin(lbl, ticks):
        E([f"{lbl}:", "s_memrealtime s[100:101]", "s_waitcnt lgkmcnt(0)", "s_sub_u32 s100, s100, s98",
           f"s_cmp_lt_u32 s100, {ticks}", f"s_cbranch_scc1 {lbl}"])
    A("L_main:")
    A(stamp("jumped"))
    take(len(late) // 2); E(qat("B")); take(len(late)); E(qat("C"))
    A("s_waitcnt vmcnt(@K0)")
    A(stamp("K0"))
    E(norm_k())
    E(kwrite(0))
    E(qat("K0"))
    A("s_waitcnt vmcnt(@Q0)")
    A(stamp("Q0"))
    E(qat("Q0"))
    h, tl = norm_tile(Q, "swap", True, T, [SB + 32, SB + 34, SB + 36, SB + 38])
    E(h)
    A("s_waitcnt lgkmcnt(0)")
    A(bar_c())
    A(stamp("BK"))
    for jj in range(2): A(k_read(jj, 0)); A(k_read(jj, 1))
    tc = t_check("L_slow")
    E(tc[:3]); A(f"v_mul_f32 {v(vTS)}, {s(sTS)}, {v(vTS)}"); E(tc[3:])
    E(tl)
    A("s_waitcnt lgkmcnt(0)")
    m0 = mf_step(-1, opt)
    A(k_read(2, 0))
    A(m0["q1"])
    A(k_read(2, 1)); A(k_read(3, 0)); A(k_read(3, 1))
    A(m0["q2"])
    E(qat("S")); A(f"s_nop {10 - len(qat('S'))}")
    A(stamp("step0"))
    slots, blocks = {}, {}
    def add(n, key, x): slots.setdefault((n, key), []).append(x)
    def blk(n, key, x): blocks.setdefault((n, key), []).extend(x)
    for jj in range(3, 62):
        n = 4 * jj
        add(n+1, "q2", "s_waitcnt lgkmcnt(0)")
        add(n+1, "r1", k_read(jj+1, 0)); add(n+1, "r2", k_read(jj+1, 1))
        add(n+2, "r1", v_read(jj+1, 0, 0))
        add(n+2, "p2", "s_waitcnt lgkmcnt(1)")
        add(n+2, "r2", v_read(jj+1, 0, 1))
        add(n+3, "r1", v_read(jj+1, 1, 0)); add(n+3, "r2", v_read(jj+1, 1, 1))
    blk(0, "r1", [bar_c()] + vreads(0) + vreads(1))
    blk(1, "q1", ["s_waitcnt lgkmcnt(8)"])
    add(1, "q2", "s_waitcnt lgkmcnt(0)")
    for key, x in zip(("p1", "r1", "p2", "r2"), vreads(2)): add(1, key, x)
    for key, x in zip(("p1", "r1", "p2", "r2"), vreads(3)): add(2, key, x)
    add(3, "q2", "s_waitcnt lgkmcnt(0)")
    for n in range(1, 8):
        for x in qat(str(n)): add(n, "q1", x)
    for i in (1, 2, 3):
        add(4 * i - 2, "q2", f"s_waitcnt vmcnt(@Q{i})")
        blk(4 * i - 2, "p1", norm_q(i, [KR, KR + 2, KR + 4, KR + 6]))
    def pub(n, st, key, n2, key2):
        z = kstore(st); add(n - 1, "q1", z[0]); add(n, "q1", z[1]); add(n, key, z[2]); add(n2, key2, z[3])
    add(11, "p1", bar_c())
    r_ = kraw(1); add(11, "r1", r_[0]); add(11, "r2", r_[1])
    add(12, "q2", "s_waitcnt lgkmcnt(0)")
    blk(12, "p1", norm_k())
    w = kwrite(1); add(12, "r1", w[0]); add(12, "r2", w[1])
    add(13, "p1", bar_c())
    pub(16, 1, "r1", 17, "p1")
    r_ = kraw(0); add(20, "r1", r_[0]); add(20, "r2", r_[1])
    pub(21, 0, "p1", 22, "p1")
    for st in (2, 3):
        n = 16 * st
        if st == 3:
            add(opt.bflag, "p1", "s_waitcnt vmcnt(@S0)")
            add(opt.bflag, "p1", bar_c())
        add(n - 8, "p1", bar_c())
        r_ = kraw(st); add(n - 8, "r1", r_[0]); add(n - 8, "r2", r_[1])
        blk(n - 5, "p1", norm_k())
        w = kwrite(st); add(n - 4, "r1", w[0]); add(n - 4, "r2", w[1])
        add(n - 3, "p1", bar_c())
        pub(n - 2, st, "p1", n - 1, "p1")
    add(61, "p1", "s_waitcnt vmcnt(0)")
    for st in range(4, 16): add(16 * st - 3, "p1", bar_c())
    add(244, "r1", k_read(63, 0)); add(244, "r2", k_read(63, 1))
    add(248, "r1", v_read(63, 0, 0)); add(248, "r2", v_read(63, 0, 1))
    add(249, "q2", "s_waitcnt lgkmcnt(2)")
    add(249, "r1", v_read(63, 1, 0)); add(249, "r2", v_read(63, 1, 1))
    add(250, "q2", "s_waitcnt lgkmcnt(2)")
    add(250, "r1", "s_waitcnt lgkmcnt(0)")
    for i, n in ((0, 251), (1, 253)):
        blk(n, "p1", epi_valu(T + 2 * i, O + 16 * i, RS + 4 * i))
        st = epi_store(i, O + 16 * i); add(n, "p1", st[0]); add(n, "r1", st[1])
    if opt.amp >= 0 and opt.ampstep < 255 and not opt.ampat: add(opt.ampstep, "p2", "s_memrealtime s[96:97]")
    if opt.amp >= 0 and opt.ampfrom >= 0: add(opt.ampfrom, "p2", "s_memrealtime s[94:95]")
    for nn in opt.stepstamps.split(","): add(int(nn), "p2", stamp(f"step{nn}"))
    E(emit_steps(0, 255, opt, slots, blocks, skip={(0, "p1"), (0, "r1"), (0, "p2"), (0, "r2")}))
    m = mf_step(255, opt); m2 = mf_step(256, opt); ex = exps(255)
    A("; ---- step 255")
    A(m["p1"]); E(ex[0:3]); A(m["r1"]); E(ex[3:4]); A(m["p2"]); E(ex[4:7]); A(m["r2"]); E(ex[7:10])
    e2 = epi_valu(T + 4, O + 32, RS + 8)
    E(e2[:10])
    A(m2["p1"]); E(ex[10:13]); A(m2["r1"]); E(ex[13:16])
    E(e2[10:12])
    A(m2["r2"]); E(e2[12:14]); A(m2["p2"]); E(e2[14:])
    E(epi_store(2, O + 32))
    e3 = epi_valu(T + 6, O + 48, RS + 12)
    E(e3)
    E(epi_store(3, O + 48))
    assert nbar["c"] == nbar["l"], nbar
    if opt.stamps:
        A(stamp("stored"))
        A("s_waitcnt vmcnt(0)")
        A(stamp("done"))
        A("s_waitcnt lgkmcnt(0)")
        for i in range(len(STAMP_NAMES)): A(f"v_writelane_b32 {v(T)}, {s(62+2*i)}, {i}")
        A(f"s_lshl_b32 {s(sT0)}, s2, 2")
        A(f"s_add_u32 {s(sT0)}, {s(sT0)}, {s(sW)}")
        A(f"s_lshl_b32 {s(sT0)}, {s(sT0)}, 8")
        A(f"s_add_u32 {s(sT0)}, {s(sT0)}, 0x8000000")
        A(f"v_lshlrev_b32 {v(T+1)}, 2, v0")
        A(f"v_add_u32 {v(T+1)}, {s(sT0)}, {v(T+1)}")
        A(f"global_store_dword {v(T+1)}, {v(T)}, {s(sARG+12,2)}")
    if opt.spin: dspin("L_dspin", opt.spin)
    if opt.amp >= 0:
        if opt.amp != 999:
            A(f"s_cmp_lg_u32 s2, {opt.amp}"); A("s_cbranch_scc1 L_end")
        if opt.ampstep >= 255:
            A("s_waitcnt vmcnt(0)"); A("s_memrealtime s[96:97]"); A("s_waitcnt lgkmcnt(0)"); A("s_sub_u32 s96, s96, 2500")
        if opt.ampsub: A(f"s_sub_u32 s96, s96, {opt.ampsub}")
        A(f"s_sub_u32 s96, s96, {'s94' if opt.ampfrom >= 0 else 's98'}"); A("s_max_i32 s96, s96, 0"); A("s_mul_i32 s96, s96, 10"); A("s_add_u32 s96, s96, 4000")
        dspin("L_dspin", "s96")
    A("L_end:")
    A("s_endpgm")
    A("L_code_end:")
    L = resolve_waits(L)
    partA, partB = L[:nA], L[nA:]
    L = []
    A = L.append
    A("L_help:")
    A(f"s_mov_b32 {s(sCNT2)}, 48")
    A(f"s_add_u32 {s(sT3)}, {s(sCH)}, {32768-2048}")
    A("L_help_loop:")
    A(f"s_add_u32 {s(sT3)}, {s(sT3)}, 2048")
    A(f"s_and_b32 {s(sT3)}, {s(sT3)}, 0x1ffff")
    E(kload(s(sT3)))
    A("s_waitcnt vmcnt(0)")
    E(norm_k())
    A(f"buffer_store_dwordx4 {v(KR,4)}, {v(vLIN)}, {s(SW,4)}, {s(sT3)} offen sc1")
    A(f"buffer_store_dwordx4 {v(KR+4,4)}, {v(vLIN)}, {s(SW,4)}, {s(sT3)} offen offset:1024 sc1")
    A("s_waitcnt vmcnt(0)")
    A(f"s_sub_u32 {s(sCNT2)}, {s(sCNT2)}, 1")
    A(f"s_cmp_lg_u32 {s(sCNT2)}, 0")
    A("s_cbranch_scc1 L_help_loop")
    A(f"s_cmp_eq_u32 {s(sRET)}, 2")
    A("s_cbranch_scc1 L_ready2")
    A(f"s_mov_b32 {s(sRET)}, 3")
    A("s_branch L_ready1")
    A("L_slow:")
    A("s_waitcnt vmcnt(0) lgkmcnt(0)")
    A("s_barrier")
    for i in range(4): E(norm_q(i, [T + 2, T + 4, T + 6]))
    MX = SB + 16
    for i in range(4): A(f"v_mov_b32 {v(MX+i)}, 0xff800000")
    A(f"v_add_u32 {v(vAV)}, {s(sWL)}, {v(vAV)}")
    A(f"s_add_u32 m0, {s(sWL)}, 32768")
    A(f"s_mov_b32 {s(sKOFF)}, 0")
    A("L_slow_kv:")
    A(f"buffer_load_dwordx4 {v(KR,4)}, {v(vQL)}, {s(SK,4)}, {s(sKOFF)} offen")
    A(f"buffer_load_dwordx4 {v(KR+4,4)}, {v(vQL)}, {s(SK,4)}, {s(sKOFF)} offen offset:32")
    A(f"buffer_load_dwordx4 {v(vLIN)}, {s(SV,4)}, {s(sKOFF)} offen lds")
    A(f"buffer_load_dwordx4 {v(vLIN)}, {s(SV,4)}, {s(sKOFF)} offen offset:1024 lds")
    A("s_waitcnt vmcnt(0)")
    E(vreads(0))
    h, tl = norm_tile(KR, "swap", False, T, [T + 2, T + 4, T + 6]); E(h); E(tl)
    A("s_waitcnt lgkmcnt(0)")
    A("s_nop 1")
    for i in range(4):
        sb = SB
        A(f"v_mfma_f32_32x32x16_bf16 {v(sb,16)}, {v(KR,4)}, {v(Q+8*i,4)}, 0")
        A(f"v_mfma_f32_32x32x16_bf16 {v(sb,16)}, {v(KR+4,4)}, {v(Q+8*i+4,4)}, {v(sb,16)}")
        A("s_nop 15")
        A(f"v_max3_f32 {v(T)}, {v(sb)}, {v(sb+1)}, {v(MX+i)}")
        for r in range(2, 16, 2): A(f"v_max3_f32 {v(T)}, {v(sb+r)}, {v(sb+r+1)}, {v(T)}")
        A(f"v_mov_b32 {v(T+1)}, {v(T)}")
        A("s_nop 1")
        A(f"v_permlane32_swap_b32 {v(T)}, {v(T+1)}")
        A("s_nop 0")
        A(f"v_max_f32 {v(T)}, {v(T)}, {v(T+1)}")
        A(f"v_sub_f32 {v(T+2)}, {v(MX+i)}, {v(T)}")
        A(f"v_exp_f32 {v(T+2)}, {v(T+2)}")
        A(f"v_mov_b32 {v(MX+i)}, {v(T)}")
        for r in range(16): A(f"v_sub_f32 {v(sb+r)}, {v(sb+r)}, {v(T)}")
        for r in range(16): A(f"v_exp_f32 {v(sb+r)}, {v(sb+r)}")
        for r in range(16): A(f"v_mul_f32 {v(O+16*i+r)}, {v(O+16*i+r)}, {v(T+2)}")
        A(f"v_mul_f32 {v(RS+4*i)}, {v(RS+4*i)}, {v(T+2)}")
        A("s_nop 1")
        A(f"v_smfmac_f32_32x32x32_bf16 {v(O+16*i,16)}, {a(aV,4)}, {v(sb,8)}, {v(vIDX)}")
        A(f"v_smfmac_f32_16x16x64_bf16 {v(RS+4*i,4)}, {v(ONES,4)}, {v(sb,8)}, {v(vIDX)}")
        A(f"v_smfmac_f32_32x32x32_bf16 {v(O+16*i,16)}, {a(aV+4,4)}, {v(sb+8,8)}, {v(vIDX)}")
        A(f"v_smfmac_f32_16x16x64_bf16 {v(RS+4*i,4)}, {v(ONES,4)}, {v(sb+8,8)}, {v(vIDX)}")
    A("s_nop 15")
    A(f"s_add_u32 {s(sKOFF)}, {s(sKOFF)}, 2048")
    A(f"s_cmp_lt_u32 {s(sKOFF)}, 0x20000")
    A("s_cbranch_scc1 L_slow_kv")
    for i in range(4):
        E(epi_valu(T + 2 * (i % 2), O + 16 * i, RS + 4 * i)); E(epi_store(i, O + 16 * i))
    A("s_endpgm")
    return partA + loader + [".p2align 12"] + partB + L

HEAD = open("standalone__qk_norm__prompt.s.ref").read().split("; Override launch")[0]

def isize(lines):
    import subprocess, tempfile
    ins = [x for x in lines if not (x.endswith(":") or x.startswith((".", ";", "@")))]
    src = '.amdgcn_target "amdgcn-amd-amdhsa--gfx950"\n.text\n' + "\n".join(x for x in lines if not x.startswith((".", "@"))) + "\n"
    d = tempfile.mkdtemp()
    open(d + "/a.s", "w").write(src)
    subprocess.run(["clang", "-x", "assembler", "-target", "amdgcn-amd-amdhsa", "-mcpu=gfx950", "-c", d + "/a.s", "-o", d + "/a.o"], check=True)
    o = subprocess.run(["llvm-objdump", "-d", "--mcpu=gfx950", d + "/a.o"], capture_output=True, text=True).stdout
    sz = [4 * len(m.group(1).split()) for m in re.finditer(r"// [0-9A-F]{12}: ([0-9A-F ]+)", o)]
    assert len(sz) == len(ins), (len(sz), len(ins))
    return sz

def place_pads(L, hop):
    sz = iter(isize(L))
    out, off, npad, active, pre = [], 0, 0, False, 0
    for i, x in enumerate(L):
        out.append(x)
        if x == "L_main:": active, pre, off = hop, off, 0
        if x == "L_code_end:": active = False; total = off
        if x.endswith(":") or x.startswith((".", ";", "@")): continue
        off += next(sz)
        if active and off >= 4096 * (npad + 1):
            nxt = next(y for y in L[i+1:] if not y.startswith(";"))
            good = x.startswith(("v_mfma", "v_smfmac")) and nxt.startswith("v_exp")
            if good or off - 4096 * (npad + 1) > 52:
                npad += 1
                out += [f"L_pad{npad}:", f"@PAD{npad}"]
                off += 4
    res, nxtpad, tgt, nh = [], 1, {}, 0
    for x in out:
        if x.startswith("@HOP"):
            k = min(int(x.split()[1]), npad - nxtpad + 1)
            if k > 0:
                nh += 1
                for p in range(nxtpad, nxtpad + k): tgt[p] = f"L_pad{p+1}" if p + 1 < nxtpad + k else f"L_hop{nh}"
                res += [f"s_branch L_pad{nxtpad}", f"L_hop{nh}:"]
                nxtpad += k
        elif x == "@LOOPHOPS":
            c = 8
            for p in range(nxtpad, npad + 1):
                tgt[p] = "L_hopx"
                res += [f"s_cmp_eq_u32 {s(sCNT)}, {c}", f"s_cbranch_scc1 L_pad{p}"]
                c -= HOPSTRIDE
                assert c >= 0
            res.append("L_hopx:")
        elif x.startswith("@PAD"): res.append(f"s_cbranch_vccnz {tgt[int(x[4:])]}")
        else: res.append(x)
    sys.stderr.write(f"entry+loader {pre} bytes, main {total} bytes, {npad} pads\n")
    return res

def render(opt):
    body = [x for x in gen(opt) if not x.startswith("; stamp")]
    body = place_pads(body, opt.hop)
    o = HEAD
    o += "; Override launch geometry by editing the next line (default: block=256,\n"
    o += f"; @launch grid=(256,1,1) block=(320,1,1) lds={opt.ldsb}\n"
    o += f""".amdgcn_target "amdgcn-amd-amdhsa--gfx950"
.text
.globl {NAME}_kernel
.p2align 8
.type {NAME}_kernel,@function
{NAME}_kernel:
"""
    for x in body:
        o += (x if x.endswith(":") or x.startswith(".") else "    " + x) + "\n"
    o += f""".section .rodata,"a"
.p2align 6
.amdhsa_kernel {NAME}_kernel
  .amdhsa_next_free_vgpr {NV+NA}
  .amdhsa_next_free_sgpr 102
  .amdhsa_accum_offset {NV}
  .amdhsa_group_segment_fixed_size 0
  .amdhsa_kernarg_size 56
  .amdhsa_user_sgpr_count 2
  .amdhsa_user_sgpr_kernarg_segment_ptr 1
  .amdhsa_system_sgpr_workgroup_id_x 1
.end_amdhsa_kernel
"""
    return o

if __name__ == "__main__":
    opt = Opt()
    out = sys.argv[1]
    for kv in sys.argv[2:]:
        k, val = kv.split("=")
        cur = getattr(opt, k)
        setattr(opt, k, type(cur)(val) if not isinstance(cur, bool) else val in ("1", "True"))
    open(out, "w").write(render(opt))
    if opt.stamps: open(out + ".stamps", "w").write(" ".join(STAMP_NAMES))
```

```python
import sys, struct, re
NAME = "standalone__qk_norm__prompt"

def f2u(x): return struct.unpack("<I", struct.pack("<f", x))[0]
LOG2E = 1.4426950408889634

class Opt:
    thresh = 16.0
    cinit = "4.0"
    force_help = 0
    stamps = 0
    cyc = False
    pfkb = 12
    hop = True
    lprio = 3
    qrot = True
    krot = True
    qfirst = False
    tlbw = False
    q1at = 'K0'
    q2at = 'S'
    q3at = '4'
    bflag = 33
    pfpages = True
    ldsb = 65536
    b3 = 37
    pre_n = 24
    osc = 'nt'
    spin = 0
    amp = -1
    ampstep = 2
    ampfrom = -1
    ampcyc = False
    ampat = ''
    ampsub = 0
    stepstamps = "1,7,14,30,62,126,190,247"

SQ, SK, SV, SO, SW, SD = 4, 8, 12, 16, 20, 24
sW, sJ, sHEAD, sTS = 28, 29, 30, 31
sBASE, sVOFF, sKOFF, sCNT = 32, 33, 34, 35
sARG = 36
sT0, sT1, sT2, sT3 = 50, 51, 52, 53
sFLAG = 54
sWL = 55
sT4 = 56
sCQ = 57
sCH = 58
sSLOT = 59
sCNT2 = 60
sEPS = 61
vQL, vLIN, vAV, vKW, vIDX, vKL, vAK0, vAK1, vOO, vTS, vX = 1, 2, 3, 4, 5, 6, 7, 8, 9, 10, 11
T = 12
ONES = 20
KR = 24
Q = 32
O = 64
RS = 128
SB = 144
NV = 192
NSB = 3
vFO, vONE, vFL, vFR, vTHREE = 3, 5, 7, 8, 4
sRET = sBASE
aK = 0
aV = 32
NA = 64

def v(a, n=1): return f"v{a}" if n == 1 else f"v[{a}:{a+n-1}]"
def a(x, n=1): return f"a{x}" if n == 1 else f"a[{x}:{x+n-1}]"
def s(x, n=1): return f"s{x}" if n == 1 else f"s[{x}:{x+n-1}]"

def norm_tile(t, mode, isq, tmp, U):
    x, y = tmp, tmp + 1
    unp = []
    for i in range(8):
        w = U[i % len(U)]
        unp.append([f"v_lshlrev_b32 {v(w)}, 16, {v(t+i)}", f"v_and_b32 {v(w+1)}, 0xffff0000, {v(t+i)}"])
    early = [z for i in range(len(U)) for z in unp[i]]
    used = [0]
    def pad(n):
        o = early[used[0]:used[0] + n]; used[0] += len(o)
        if len(o) < n: o.append(f"s_nop {n-len(o)-1}")
        return o
    o = [f"v_dot2_f32_bf16 {v(x)}, {v(t+i)}, {v(t+i)}, {'0' if i==0 else v(x)}" for i in range(8)]
    o += pad(3)
    if mode == "swap":
        o += [f"v_mov_b32 {v(y)}, {v(x)}"] + pad(2) + [f"v_permlane32_swap_b32 {v(x)}, {v(y)}"] + pad(1)
        o += [f"v_add_f32 {v(x)}, {v(x)}, {v(y)}"]
    else:
        o.append(f"v_add_f32_dpp {v(x)}, {v(x)}, {v(x)} quad_perm:[1,0,3,2] row_mask:0xf bank_mask:0xf")
    o += [f"v_sqrt_f32 {v(x)}, {v(x)}"] + pad(1) + [f"v_add_f32 {v(x)}, {s(sEPS)}, {v(x)}", f"v_rcp_f32 {v(x)}, {v(x)}"] + pad(1)
    tail = []
    if isq: tail.append(f"v_mul_f32 {v(x)}, {v(vTS)}, {v(x)}")
    for i in range(8):
        w = U[i % len(U)]
        tail += [z for k, z in enumerate(unp[i]) if 2 * i + k >= used[0]]
        tail += [f"v_pk_mul_f32 {v(w,2)}, {v(w,2)}, {v(x,2)} op_sel_hi:[1,0]",
                 f"v_cvt_pk_bf16_f32 {v(t+i)}, {v(w)}, {v(w+1)}"]
    return o, tail
def norm_k(): h, t = norm_tile(KR, "dpp", False, T, [T + 2, T + 4, T + 6]); return h + t
def norm_q(i, U): h, t = norm_tile(Q + 8 * i, "swap", True, T, U); return h + t

def epi_valu(tmp, oreg, rsreg):
    o = [f"v_rcp_f32 {v(tmp)}, {v(rsreg)}", "s_nop 0"]
    for r in range(0, 16, 2):
        o.append(f"v_pk_mul_f32 {v(oreg+r,2)}, {v(oreg+r,2)}, {v(tmp,2)} op_sel_hi:[1,0]")
    for r in range(8):
        o.append(f"v_cvt_pk_bf16_f32 {v(oreg+r)}, {v(oreg+2*r)}, {v(oreg+2*r+1)}")
    for r in range(4):
        o.append(f"v_permlane16_swap_b32 {v(oreg+r)}, {v(oreg+4+r)}")
    return o
OSC = ""
QOFS = [sVOFF, sCNT, sFLAG, sSLOT]
def epi_store(i, oreg):
    so = s(QOFS[i])
    return [f"buffer_store_dwordx4 {v(oreg,4)}, {v(vOO)}, {s(SO,4)}, {so} offen {OSC}",
            f"buffer_store_dwordx4 {v(oreg+4,4)}, {v(vOO)}, {s(SO,4)}, {so} offen offset:1024 {OSC}"]

def tile_of(n):
    if 248 <= n < 256: return 62 + (n - 248) % 2, (n - 248) // 2
    if 0 <= n < 16: return n % 4, n // 4
    return n // 4, n % 4
def buf_of(jj): return 2 if jj == 63 else (jj if jj in (2, 3) else jj % 2)

def resolve_waits(L):
    out = []
    for i, x in enumerate(L):
        m = re.search(r"vmcnt\(@(\w+)\)", x)
        if m:
            n = 0
            for y in reversed(L[:i]):
                if y.startswith(("buffer_", "global_")):
                    if y.endswith(";#" + m.group(1)): break
                    n += 1
            else:
                raise Exception("tag not found " + x)
            assert n < 64
            x = x.replace(m.group(0), f"vmcnt({n})") + "   ; " + m.group(1)
        out.append(x)
    return out

def mf_step(n, opt):
    n1, n0 = n + 1, n - 1
    j1, i1 = tile_of(n1)
    j0, i0 = tile_of(n0)
    nxt, prv = SB + 16 * (n1 % NSB), SB + 16 * (n0 % NSB)
    kf, vf = aK + 8 * buf_of(j1), aV + 8 * buf_of(j0)
    return {
        "q1": f"v_mfma_f32_32x32x16_bf16 {v(nxt,16)}, {a(kf,4)}, {v(Q+8*i1,4)}, {opt.cinit}",
        "q2": f"v_mfma_f32_32x32x16_bf16 {v(nxt,16)}, {a(kf+4,4)}, {v(Q+8*i1+4,4)}, {v(nxt,16)}",
        "p1": f"v_smfmac_f32_32x32x32_bf16 {v(O+16*i0,16)}, {a(vf,4)}, {v(prv,8)}, {v(vIDX)}",
        "r1": f"v_smfmac_f32_16x16x64_bf16 {v(RS+4*i0,4)}, {v(ONES,4)}, {v(prv,8)}, {v(vIDX)}",
        "p2": f"v_smfmac_f32_32x32x32_bf16 {v(O+16*i0,16)}, {a(vf+4,4)}, {v(prv+8,8)}, {v(vIDX)}",
        "r2": f"v_smfmac_f32_16x16x64_bf16 {v(RS+4*i0,4)}, {v(ONES,4)}, {v(prv+8,8)}, {v(vIDX)}"}

ORDER = ["q1", "q2", "p1", "r1", "p2", "r2"]
PAT = [4, 4, 3, 1, 3, 1]

def k_read(jj, f):
    return f"ds_read_b128 {a(aK+8*buf_of(jj)+4*f,4)}, {v(vAK0+f)} offset:{(jj%16)*2048}"
def v_read(jj, m, t):
    return f"ds_read_b64_tr_b16 {a(aV+8*buf_of(jj)+4*m+2*t,2)}, {v(vAV)} offset:{32768+(jj%16)*2048+1024*m+256*t}"
def vreads(jj): return [v_read(jj, m_, t_) for m_ in range(2) for t_ in range(2)]
def exps(n):
    cur = SB + 16 * (n % NSB)
    return [f"v_exp_f32 {v(cur+e)}, {v(cur+e)}" for e in range(16)]

def emit_steps(n_lo, n_hi, opt, slots, blocks, skip=()):
    out = []
    for n in range(n_lo, n_hi):
        m = mf_step(n, opt)
        ex = exps(n)
        k = 0
        for key, c in zip(ORDER, PAT):
            out += blocks.get((n, key), [])
            if (n, key) not in skip: out.append(m[key])
            out += slots.get((n, key), [])
            out += ex[k:k+c]
            k += c
    return out

STAMP_NAMES = []
HOPSTRIDE = 2
def gen(opt):
    global OSC
    OSC = opt.osc.replace('_', ' ')
    STAMP_NAMES.clear()
    def stamp(name):
        if opt.ampat == name: return "s_memrealtime s[96:97]"
        if not opt.stamps or (opt.stamps == 2 and name not in ("entry", "done")): return "; stamp " + name
        i = len(STAMP_NAMES); STAMP_NAMES.append(name)
        assert i < 17
        return f"{'s_memtime' if opt.cyc else 's_memrealtime'} {s(62+2*i,2)}"
    def kload(so):
        return [f"buffer_load_dwordx4 {v(KR,4)}, {v(vKL)}, {s(SK,4)}, {so} offen",
                f"buffer_load_dwordx4 {v(KR+4,4)}, {v(vKL)}, {s(SK,4)}, {so} offen offset:16 ;#K0"]
    def qload(i):
        so = s(QOFS[i])
        return [f"buffer_load_dwordx4 {v(Q+8*i,4)}, {v(vQL)}, {s(SQ,4)}, {so} offen",
                f"buffer_load_dwordx4 {v(Q+8*i+4,4)}, {v(vQL)}, {s(SQ,4)}, {so} offen offset:32 ;#Q{i}"]
    def kwrite(st):
        return [f"ds_write_b128 {v(vKW)}, {v(KR,4)} offset:{8192*st}",
                f"ds_write_b128 {v(vKW)}, {v(KR+4,4)} offset:{8192*st+1024}"]
    def kstore(st):
        return [f"s_add_u32 {s(sT0)}, {s(sBASE)}, {8192*st}", f"s_and_b32 {s(sT0)}, {s(sT0)}, 0x1ffff",
                f"buffer_store_dwordx4 {v(KR,4)}, {v(vLIN)}, {s(SW,4)}, {s(sT0)} offen sc1",
                f"buffer_store_dwordx4 {v(KR+4,4)}, {v(vLIN)}, {s(SW,4)}, {s(sT0)} offen offset:1024 sc1 ;#S{st}"]
    def kraw(st):
        return [f"ds_read_b128 {v(KR,4)}, {v(vKW)} offset:{8192*st}",
                f"ds_read_b128 {v(KR+4,4)}, {v(vKW)} offset:{8192*st+1024}"]
    def srd_base(srd, arg):
        return [f"s_add_u32 {s(srd)}, {s(sARG+arg)}, {s(sT2)}", f"s_addc_u32 {s(srd+1)}, {s(sARG+arg+1)}, 0"]
    def srd_dbg(): return [f"s_mov_b32 {s(SD)}, {s(sARG+10)}", f"s_mov_b32 {s(SD+1)}, {s(sARG+11)}"]
    def t_check(lbl):
        return [f"s_lshr_b32 {s(sTS)}, {s(sTS)}, {s(sT1)}", f"s_lshl_b32 {s(sTS)}, {s(sTS)}, 16",
                f"s_and_b32 {s(sT0)}, {s(sTS)}, 0x7fffffff",
                f"s_cmp_gt_u32 {s(sT0)}, {hex(f2u(opt.thresh))}",
                f"s_cbranch_scc1 {lbl}"]
    nbar = {"c": 0, "l": 0}
    L = []
    A = L.append
    def E(x): L.extend(x)
    A("s_cmp_ge_u32 s2, 256")
    A("s_cbranch_scc1 L_end")
    A(stamp("entry"))
    if opt.spin or opt.amp >= 0: A("s_memrealtime s[98:99]")
    A(f"s_load_dwordx8 {s(sARG,8)}, s[0:1], 0")
    A(f"s_load_dwordx4 {s(sARG+8,4)}, s[0:1], 32")
    A(f"s_load_dwordx2 {s(sARG+12,2)}, s[0:1], 48")
    if opt.pfkb:
        A(f"s_getpc_b64 {s(sT0,2)}")
        A(f"v_lshlrev_b32 {v(T+2)}, 7, v0")
        A(f"v_min_u32 {v(T+2)}, {opt.pfkb*1024}, {v(T+2)}")
        A(f"v_mov_b32 {v(T+3)}, {s(sT1)}")
        A(f"v_add_co_u32 {v(T+2)}, vcc, {s(sT0)}, {v(T+2)}")
    A(f"v_lshrrev_b32 {v(T)}, 6, v0")
    A(f"v_and_b32 v0, 63, v0")
    if opt.pfkb:
        A(f"v_addc_co_u32 {v(T+3)}, vcc, 0, {v(T+3)}, vcc")
        A(f"global_load_dword {v(vX)}, {v(T+2,2)}, off")
    A(f"v_readfirstlane_b32 {s(sW)}, {v(T)}")
    A(f"s_and_b32 {s(sT0)}, s2, 7")
    A(f"s_lshr_b32 {s(sT1)}, s2, 3")
    A(f"s_and_b32 {s(sJ)}, {s(sT1)}, 3")
    A(f"s_lshr_b32 {s(sT1)}, {s(sT1)}, 2")
    A(f"s_lshl_b32 {s(sT0)}, {s(sT0)}, 3")
    A(f"s_add_u32 {s(sHEAD)}, {s(sT0)}, {s(sT1)}")
    A(f"s_lshl_b32 {s(sT2)}, {s(sHEAD)}, 17")
    A(f"s_lshl_b32 {s(sCQ)}, {s(sJ)}, 15")
    if opt.krot:
        A(f"s_and_b32 {s(sCH)}, {s(sHEAD)}, 3")
        A(f"s_lshl_b32 {s(sCH)}, {s(sCH)}, 13")
        A(f"s_add_u32 {s(sCH)}, {s(sCH)}, {s(sCQ)}")
    else:
        A(f"s_mov_b32 {s(sCH)}, {s(sCQ)}")
    A(f"s_and_b32 {s(sT3)}, {s(sHEAD)}, 30")
    A(f"s_lshl_b32 {s(sT3)}, {s(sT3)}, 1")
    A(f"s_and_b32 {s(sT1)}, {s(sHEAD)}, 1")
    A(f"s_lshl_b32 {s(sT1)}, {s(sT1)}, 4")
    A(f"v_bfe_u32 {v(T+2)}, v0, 4, 1")
    A(f"v_xor_b32 {v(T+2)}, {v(T+2)}, v0")
    A(f"v_lshlrev_b32 {v(vKL)}, 5, {v(T+2)}")
    A(f"v_lshlrev_b32 {v(vLIN)}, 4, v0")
    for srd in (SK, SQ, SV, SO, SW):
        A(f"s_mov_b32 {s(srd+2)}, 0x20000")
        A(f"s_mov_b32 {s(srd+3)}, 0x20000")
    A(f"s_mov_b32 {s(SD+2)}, 256")
    A(f"s_mov_b32 {s(SD+3)}, 0x20000")
    A(f"s_mov_b32 {s(sEPS)}, {hex(f2u(1e-6))}")
    A(f"s_cmp_ge_u32 {s(sW)}, 4")
    A("s_cbranch_scc1 L_loader")
    A("s_mov_b64 vcc, 0")
    A(f"s_lshl_b32 {s(sWL)}, {s(sW)}, 11")
    A(f"s_lshl_b32 {s(sT4)}, {s(sW)}, 13")
    A(f"s_add_u32 {s(sT4)}, {s(sT4)}, {s(sCQ)}")
    for i in range(4):
        if opt.qrot:
            A(f"s_add_u32 {s(QOFS[i])}, {s(sWL)}, {2048*i}")
            A(f"s_and_b32 {s(QOFS[i])}, {s(QOFS[i])}, 0x1fff")
            A(f"s_add_u32 {s(QOFS[i])}, {s(QOFS[i])}, {s(sT4)}")
        else:
            A(f"s_add_u32 {s(QOFS[i])}, {s(sT4)}, {2048*i}")
    A(f"s_add_u32 {s(sBASE)}, {s(sCH)}, {s(sWL)}")
    A(f"v_and_b32 {v(T)}, 31, v0")
    A(f"v_lshrrev_b32 {v(T+1)}, 5, v0")
    A(f"v_lshlrev_b32 {v(vQL)}, 6, {v(T)}")
    A(f"v_lshl_add_u32 {v(vQL)}, {v(T+1)}, 4, {v(vQL)}")
    late = []
    B = late.append
    B(f"v_mov_b32 {v(vIDX)}, 0xdddddddd")
    B(f"v_add_u32 {v(vKW)}, {s(sWL)}, {v(vLIN)}")
    B(f"v_bfe_u32 {v(T+2)}, v0, 3, 1")
    B(f"v_lshl_add_u32 {v(T+2)}, {v(T)}, 1, {v(T+2)}")
    B(f"v_lshlrev_b32 {v(T+2)}, 4, {v(T+2)}")
    B(f"v_lshl_add_u32 {v(vAK0)}, {v(T+1)}, 10, {v(T+2)}")
    B(f"v_xor_b32 {v(vAK1)}, 16, {v(vAK0)}")
    B(f"v_bfe_u32 {v(T+2)}, v0, 2, 2")
    B(f"v_lshl_add_u32 {v(T+2)}, {v(T+1)}, 3, {v(T+2)}")
    B(f"v_lshlrev_b32 {v(vAV)}, 6, {v(T+2)}")
    B(f"v_and_b32 {v(T+2)}, 1, v0")
    B(f"v_lshl_add_u32 {v(vAV)}, {v(T+2)}, 5, {v(vAV)}")
    B(f"v_bfe_u32 {v(T+2)}, v0, 4, 1")
    B(f"v_lshl_add_u32 {v(vAV)}, {v(T+2)}, 4, {v(vAV)}")
    B(f"v_bfe_u32 {v(T+2)}, v0, 1, 1")
    B(f"v_lshl_add_u32 {v(vAV)}, {v(T+2)}, 3, {v(vAV)}")
    B(f"v_and_b32 {v(T+2)}, 15, v0")
    B(f"v_and_b32 {v(T+3)}, 48, v0")
    B(f"v_lshl_add_u32 {v(vOO)}, {v(T+2)}, 6, {v(T+3)}")
    B(f"v_and_b32 {v(T+2)}, 7, v0")
    B(f"v_lshlrev_b32_e64 {v(T+2)}, {v(T+2)}, 1")
    B(f"v_bfe_i32 {v(T+3)}, {v(T+2)}, 0, 1")
    B(f"v_and_b32 {v(ONES)}, 0x3f803f80, {v(T+3)}")
    B(f"v_and_b32 {v(ONES+1)}, 0x3f803f80, {v(T+3)}")
    B(f"v_bfe_i32 {v(T+3)}, {v(T+2)}, 4, 1")
    B(f"v_and_b32 {v(ONES+2)}, 0x3f803f80, {v(T+3)}")
    B(f"v_and_b32 {v(ONES+3)}, 0x3f803f80, {v(T+3)}")
    B(f"v_mov_b32 {v(vTS)}, {hex(f2u(LOG2E))}")
    for r in range(O, RS + 16, 2): B(f"v_mov_b64 {v(r,2)}, 0")
    def take(k):
        E(late[:k]); del late[:k]
    take(opt.pre_n)
    A("s_waitcnt lgkmcnt(0)")
    A(stamp("kernarg"))
    if opt.qfirst:
        E(srd_base(SQ, 0)); E(qload(0))
        E(srd_base(SK, 2)); E(kload(s(sBASE)))
    else:
        E(srd_base(SK, 2)); E(kload(s(sBASE)))
        E(srd_base(SQ, 0)); E(qload(0))
    A(f"s_load_dword {s(sTS)}, {s(sARG+6,2)}, {s(sT3)}")
    E(srd_base(SV, 4)); E(srd_base(SO, 8)); E(srd_base(SW, 12)); E(srd_dbg())
    def qat(where):
        o = []
        for i, w_ in ((1, opt.q1at), (2, opt.q2at), (3, opt.q3at)):
            if w_ == where: o += qload(i)
        return o
    if qat("A"): take(8); E(qat("A"))
    A("s_branch L_main")
    partA = L
    L = []
    A = L.append
    def bar_l(): nbar["l"] += 1; return "s_barrier"
    def dma8(srd, so_reg, lds, tag, extra=""):
        o = []
        for hlf in range(2):
            if isinstance(lds, tuple): o.append(f"s_add_u32 m0, {s(lds[0])}, {lds[1] + 4096*hlf}")
            else: o.append(f"s_mov_b32 m0, {lds + 4096*hlf}")
            if hlf: o.append(f"s_add_u32 {s(sT0)}, {s(so_reg)}, 4096")
            else: o.append("s_nop 0")
            for k in range(4):
                o.append(f"buffer_load_dwordx4 {v(vLIN)}, {s(srd,4)}, {s(sT0 if hlf else so_reg)} offen offset:{1024*k}{extra} lds")
        o[-1] += f" ;#{tag}"
        return o
    def vstage(st):
        return [f"s_add_u32 {s(sVOFF)}, {s(sCH)}, {8192*st}", f"s_and_b32 {s(sVOFF)}, {s(sVOFF)}, 0x1ffff"] + \
               dma8(SV, sVOFF, 32768 + 8192 * (st % 4), f"V{st}")
    def kstage(st):
        return [f"s_add_u32 {s(sKOFF)}, {s(sCH)}, {8192*st}", f"s_and_b32 {s(sKOFF)}, {s(sKOFF)}, 0x1ffff"] + \
               dma8(SW, sKOFF, 8192 * (st % 4), f"K{st}", " sc1")
    def rawk(st):
        o = []
        for hlf in range(2):
            o.append(f"s_add_u32 {s(sT0)}, {s(sCH)}, {8192*st + 4096*hlf}")
            o.append(f"s_and_b32 {s(sT0)}, {s(sT0)}, 0x1ffff")
            for f in range(2):
                o += [f"s_mov_b32 m0, {8192*st + 4096*hlf + 1008*f}", "s_nop 0"]
                for k in range(2):
                    o.append(f"buffer_load_dwordx4 {v(vKL)}, {s(SK,4)}, {s(sT0)} offen offset:{2048*k + 16*f} lds")
        o[-1] += f" ;#R{st}"
        return o
    def publish(st, base):
        o = [f"ds_read_b128 {v(base+4*k,4)}, {v(vLIN)} offset:{8192*st + 1024*k}" for k in range(8)]
        o += [f"s_add_u32 {s(sT0)}, {s(sCH)}, {8192*st}", f"s_add_u32 {s(sT3)}, {s(sCH)}, {8192*st+4096}", "s_waitcnt lgkmcnt(0)"]
        o += [f"buffer_store_dwordx4 {v(base+4*k,4)}, {v(vLIN)}, {s(SW,4)}, {s(sT0 if k < 4 else sT3)} offen offset:{1024*(k%4)} sc1" for k in range(8)]
        return o
    A("L_loader:")
    if opt.lprio: A(f"s_setprio {opt.lprio}")
    A("s_mov_b64 vcc, -1")
    A(f"s_lshl_b32 {s(sT0)}, {s(sHEAD)}, 2")
    A(f"v_mov_b32 {v(vFL)}, {s(sT0)}")
    A(f"s_add_u32 {s(sT0)}, {s(sT0)}, {s(sJ)}")
    A(f"v_lshl_add_u32 {v(vFO)}, v0, 8, {s(sT0)}")
    A(f"v_mov_b32 {v(vONE)}, 1")
    A(f"v_mov_b32 {v(vTHREE)}, 3")
    A(f"v_and_b32 {v(T+4)}, 7, v0")
    A(f"v_lshlrev_b32 {v(T+4)}, 7, {v(T+4)}")
    A(f"v_lshrrev_b32 {v(T+5)}, 3, v0")
    A(f"v_lshlrev_b32 {v(T+5)}, 12, {v(T+5)}")
    A(f"v_mov_b32 {v(vOO)}, -1")
    A("s_waitcnt lgkmcnt(0)")
    A(f"s_load_dword {s(sTS)}, {s(sARG+6,2)}, {s(sT3)}")
    E(srd_base(SK, 2)); E(srd_base(SQ, 0)); E(srd_base(SV, 4)); E(srd_base(SO, 8)); E(srd_base(SW, 12)); E(srd_dbg())
    E(vstage(0))
    A("s_waitcnt lgkmcnt(0)")
    A(bar_l())
    E(t_check("L_loader_slow"))
    E(rawk(1))
    if opt.pfpages:
        A(f"s_getpc_b64 {s(sT0,2)}")
        A("L_pc1:")
        A(f"s_add_u32 {s(sT0)}, {s(sT0)}, L_main-L_pc1+4096")
        A(f"s_addc_u32 {s(sT1)}, {s(sT1)}, 0")
        A(f"v_mov_b32 {v(T+3)}, {s(sT1)}")
        A(f"v_or_b32 {v(T+2)}, {s(sT0)}, {v(T+4)}")
        A(f"v_add_co_u32 {v(T+2)}, {s(sT2,2)}, {v(T+2)}, {v(T+5)}")
        A("s_nop 1")
        A(f"v_addc_co_u32 {v(T+3)}, {s(sT2,2)}, 0, {v(T+3)}, {s(sT2,2)}")
        A(f"global_load_dword {v(vX)}, {v(T+2,2)}, off")
    A("s_waitcnt vmcnt(@V0)"); A(bar_l())
    E(vstage(1))
    A("@HOP 1")
    A("s_waitcnt vmcnt(@R1)"); A(bar_l())
    A("s_waitcnt vmcnt(@V1)")
    E(rawk(2))
    A(bar_l())
    E(vstage(2))
    A("@HOP 1")
    A("s_waitcnt vmcnt(@R2)"); A(bar_l())
    E(rawk(3))
    A("s_waitcnt vmcnt(@V2)"); A(bar_l())
    E(vstage(3))
    A(bar_l())
    A(f"buffer_store_byte {v(vONE)}, {v(vFO)}, {s(SD,4)}, 0 offen sc1")
    A("s_waitcnt vmcnt(@R3)"); A(bar_l())
    E(vstage(4))
    A("s_waitcnt vmcnt(@V3)"); A(bar_l())
    def poll(k, mask):
        o = [f"s_mov_b32 {s(sRET)}, {k}", f"s_mov_b32 {s(sCNT2)}, {1 if opt.force_help == k else 256}",
             f"L_spin{k}:",
             f"buffer_load_dword {v(vFR)}, {v(vFL)}, {s(SD,4)}, 0 offen sc1",
             "s_waitcnt vmcnt(0)",
             f"v_readfirstlane_b32 {s(sFLAG)}, {v(vFR)}",
             f"s_sub_u32 {s(sCNT2)}, {s(sCNT2)}, 1",
             "s_nop 2",
             f"s_and_b32 {s(sFLAG)}, {s(sFLAG)}, {hex(mask)}",
             f"s_cmp_eq_u32 {s(sFLAG)}, {hex(mask + (4 if opt.force_help == k else 0))}",
             f"s_cbranch_scc1 L_ready{k}",
             f"s_cmp_lg_u32 {s(sCNT2)}, 0",
             f"s_cbranch_scc1 L_spin{k}",
             "s_branch L_help",
             f"L_ready{k}:"]
        return o
    E(poll(1, 0x01010101))
    E(kstage(4)); E(vstage(5)); E(kstage(5))
    A("@HOP 1")
    A("s_waitcnt vmcnt(@K4)"); A(bar_l())
    A(f"buffer_store_byte {v(vTHREE)}, {v(vFO)}, {s(SD,4)}, 0 offen sc1")
    E(vstage(6))
    A("@HOP 1")
    A("s_waitcnt vmcnt(@K5)"); A(bar_l())
    A(f"s_cmp_eq_u32 {s(sRET)}, 3")
    A("s_cbranch_scc1 L_ready2")
    E(poll(2, 0x02020202))
    E(kstage(6)); E(vstage(7)); E(kstage(7))
    A("s_waitcnt vmcnt(@K6)"); A(bar_l())
    A(f"s_mov_b32 {s(sCNT)}, 8")
    A(f"s_mov_b32 {s(sSLOT)}, 24576")
    A("L_lloop:")
    A(f"s_add_u32 {s(sSLOT)}, {s(sSLOT)}, 8192")
    A(f"s_and_b32 {s(sSLOT)}, {s(sSLOT)}, 0x7fff")
    A(f"s_add_u32 {s(sVOFF)}, {s(sVOFF)}, 8192")
    A(f"s_and_b32 {s(sVOFF)}, {s(sVOFF)}, 0x1ffff")
    E(dma8(SV, sVOFF, (sSLOT, 32768), "V"))
    E(dma8(SW, sVOFF, (sSLOT, 0), "K", " sc1"))
    A("@LOOPHOPS")
    A("s_waitcnt vmcnt(16)")
    A("s_barrier"); nbar["l"] += 8
    A(f"s_sub_u32 {s(sCNT)}, {s(sCNT)}, 1")
    A(f"s_cmp_lg_u32 {s(sCNT)}, 0")
    A("s_cbranch_scc1 L_lloop")
    A("L_loader_slow:")
    A("s_waitcnt vmcnt(0)")
    A(bar_l())
    A("s_endpgm")
    loader = resolve_waits(L)
    L = list(partA)
    nA = len(L)
    A = L.append
    def bar_c(): nbar["c"] += 1; return "s_barrier"
    def dspin(lbl, ticks):
        E([f"{lbl}:", "s_memrealtime s[100:101]", "s_waitcnt lgkmcnt(0)", "s_sub_u32 s100, s100, s98",
           f"s_cmp_lt_u32 s100, {ticks}", f"s_cbranch_scc1 {lbl}"])
    A("L_main:")
    A(stamp("jumped"))
    take(len(late) // 2); E(qat("B")); take(len(late)); E(qat("C"))
    A("s_waitcnt vmcnt(@K0)")
    A(stamp("K0"))
    E(norm_k())
    E(kwrite(0))
    E(qat("K0"))
    A("s_waitcnt vmcnt(@Q0)")
    A(stamp("Q0"))
    E(qat("Q0"))
    h, tl = norm_tile(Q, "swap", True, T, [SB + 32, SB + 34, SB + 36, SB + 38])
    E(h)
    A("s_waitcnt lgkmcnt(0)")
    A(bar_c())
    A(stamp("BK"))
    for jj in range(2): A(k_read(jj, 0)); A(k_read(jj, 1))
    tc = t_check("L_slow")
    E(tc[:3]); A(f"v_mul_f32 {v(vTS)}, {s(sTS)}, {v(vTS)}"); E(tc[3:])
    E(tl)
    A("s_waitcnt lgkmcnt(0)")
    m0 = mf_step(-1, opt)
    A(k_read(2, 0))
    A(m0["q1"])
    A(k_read(2, 1)); A(k_read(3, 0)); A(k_read(3, 1))
    A(m0["q2"])
    E(qat("S")); A(f"s_nop {10 - len(qat('S'))}")
    A(stamp("step0"))
    slots, blocks = {}, {}
    def add(n, key, x): slots.setdefault((n, key), []).append(x)
    def blk(n, key, x): blocks.setdefault((n, key), []).extend(x)
    for jj in range(3, 62):
        n = 4 * jj
        add(n+1, "q2", "s_waitcnt lgkmcnt(0)")
        add(n+1, "r1", k_read(jj+1, 0)); add(n+1, "r2", k_read(jj+1, 1))
        add(n+2, "r1", v_read(jj+1, 0, 0))
        add(n+2, "p2", "s_waitcnt lgkmcnt(1)")
        add(n+2, "r2", v_read(jj+1, 0, 1))
        add(n+3, "r1", v_read(jj+1, 1, 0)); add(n+3, "r2", v_read(jj+1, 1, 1))
    blk(0, "r1", [bar_c()] + vreads(0) + vreads(1))
    blk(1, "q1", ["s_waitcnt lgkmcnt(8)"])
    add(1, "q2", "s_waitcnt lgkmcnt(0)")
    for key, x in zip(("p1", "r1", "p2", "r2"), vreads(2)): add(1, key, x)
    for key, x in zip(("p1", "r1", "p2", "r2"), vreads(3)): add(2, key, x)
    add(3, "q2", "s_waitcnt lgkmcnt(0)")
    for n in range(1, 8):
        for x in qat(str(n)): add(n, "q1", x)
    for i in (1, 2, 3):
        add(4 * i - 2, "q2", f"s_waitcnt vmcnt(@Q{i})")
        blk(4 * i - 2, "p1", norm_q(i, [KR, KR + 2, KR + 4, KR + 6]))
    def pub(n, st, key, n2, key2):
        z = kstore(st); add(n - 1, "q1", z[0]); add(n, "q1", z[1]); add(n, key, z[2]); add(n2, key2, z[3])
    add(11, "p1", bar_c())
    r_ = kraw(1); add(11, "r1", r_[0]); add(11, "r2", r_[1])
    add(12, "q2", "s_waitcnt lgkmcnt(0)")
    blk(12, "p1", norm_k())
    w = kwrite(1); add(12, "r1", w[0]); add(12, "r2", w[1])
    add(13, "p1", bar_c())
    pub(16, 1, "r1", 17, "p1")
    r_ = kraw(0); add(20, "r1", r_[0]); add(20, "r2", r_[1])
    pub(21, 0, "p1", 22, "p1")
    for st in (2, 3):
        n = 16 * st
        if st == 3:
            add(opt.bflag, "p1", "s_waitcnt vmcnt(@S0)")
            add(opt.bflag, "p1", bar_c())
        add(n - 8, "p1", bar_c())
        r_ = kraw(st); add(n - 8, "r1", r_[0]); add(n - 8, "r2", r_[1])
        blk(n - 5, "p1", norm_k())
        w = kwrite(st); add(n - 4, "r1", w[0]); add(n - 4, "r2", w[1])
        add(n - 3, "p1", bar_c())
        pub(n - 2, st, "p1", n - 1, "p1")
    add(61, "p1", "s_waitcnt vmcnt(0)")
    for st in range(4, 16): add(16 * st - 3, "p1", bar_c())
    add(244, "r1", k_read(63, 0)); add(244, "r2", k_read(63, 1))
    add(248, "r1", v_read(63, 0, 0)); add(248, "r2", v_read(63, 0, 1))
    add(249, "q2", "s_waitcnt lgkmcnt(2)")
    add(249, "r1", v_read(63, 1, 0)); add(249, "r2", v_read(63, 1, 1))
    add(250, "q2", "s_waitcnt lgkmcnt(2)")
    add(250, "r1", "s_waitcnt lgkmcnt(0)")
    for i, n in ((0, 251), (1, 253)):
        blk(n, "p1", epi_valu(T + 2 * i, O + 16 * i, RS + 4 * i))
        st = epi_store(i, O + 16 * i); add(n, "p1", st[0]); add(n, "r1", st[1])
    if opt.amp >= 0 and opt.ampstep < 255 and not opt.ampat: add(opt.ampstep, "p2", ("s_memtime" if opt.ampcyc else "s_memrealtime") + " s[96:97]")
    if opt.amp >= 0 and opt.ampfrom >= 0: add(opt.ampfrom, "p2", ("s_memtime" if opt.ampcyc else "s_memrealtime") + " s[94:95]")
    for nn in opt.stepstamps.split(","): add(int(nn), "p2", stamp(f"step{nn}"))
    E(emit_steps(0, 255, opt, slots, blocks, skip={(0, "p1"), (0, "r1"), (0, "p2"), (0, "r2")}))
    m = mf_step(255, opt); m2 = mf_step(256, opt); ex = exps(255)
    A("; ---- step 255")
    A(m["p1"]); E(ex[0:3]); A(m["r1"]); E(ex[3:4]); A(m["p2"]); E(ex[4:7]); A(m["r2"]); E(ex[7:10])
    e2 = epi_valu(T + 4, O + 32, RS + 8)
    E(e2[:10])
    A(m2["p1"]); E(ex[10:13]); A(m2["r1"]); E(ex[13:16])
    E(e2[10:12])
    A(m2["r2"]); E(e2[12:14]); A(m2["p2"]); E(e2[14:])
    E(epi_store(2, O + 32))
    e3 = epi_valu(T + 6, O + 48, RS + 12)
    E(e3)
    E(epi_store(3, O + 48))
    assert nbar["c"] == nbar["l"], nbar
    if opt.stamps:
        A(stamp("stored"))
        A("s_waitcnt vmcnt(0)")
        A(stamp("done"))
        A("s_waitcnt lgkmcnt(0)")
        for i in range(len(STAMP_NAMES)): A(f"v_writelane_b32 {v(T)}, {s(62+2*i)}, {i}")
        A(f"s_lshl_b32 {s(sT0)}, s2, 2")
        A(f"s_add_u32 {s(sT0)}, {s(sT0)}, {s(sW)}")
        A(f"s_lshl_b32 {s(sT0)}, {s(sT0)}, 8")
        A(f"s_add_u32 {s(sT0)}, {s(sT0)}, 0x8000000")
        A(f"v_lshlrev_b32 {v(T+1)}, 2, v0")
        A(f"v_add_u32 {v(T+1)}, {s(sT0)}, {v(T+1)}")
        A(f"global_store_dword {v(T+1)}, {v(T)}, {s(sARG+12,2)}")
    if opt.spin: dspin("L_dspin", opt.spin)
    if opt.amp >= 0:
        if opt.amp != 999:
            A(f"s_cmp_lg_u32 s2, {opt.amp}"); A("s_cbranch_scc1 L_end")
        if opt.ampstep >= 255:
            A("s_waitcnt vmcnt(0)"); A("s_memrealtime s[96:97]"); A("s_waitcnt lgkmcnt(0)"); A("s_sub_u32 s96, s96, 2500")
        if opt.ampsub: A(f"s_sub_u32 s96, s96, {opt.ampsub}")
        A(f"s_sub_u32 s96, s96, {'s94' if opt.ampfrom >= 0 else 's98'}"); A("s_max_i32 s96, s96, 0"); A(f"s_mul_i32 s96, s96, {1 if opt.ampcyc else 10}"); A("s_add_u32 s96, s96, 4000")
        dspin("L_dspin", "s96")
    A("L_end:")
    A("s_endpgm")
    A("L_code_end:")
    L = resolve_waits(L)
    partA, partB = L[:nA], L[nA:]
    L = []
    A = L.append
    A("L_help:")
    A(f"s_mov_b32 {s(sCNT2)}, 48")
    A(f"s_add_u32 {s(sT3)}, {s(sCH)}, {32768-2048}")
    A("L_help_loop:")
    A(f"s_add_u32 {s(sT3)}, {s(sT3)}, 2048")
    A(f"s_and_b32 {s(sT3)}, {s(sT3)}, 0x1ffff")
    E(kload(s(sT3)))
    A("s_waitcnt vmcnt(0)")
    E(norm_k())
    A(f"buffer_store_dwordx4 {v(KR,4)}, {v(vLIN)}, {s(SW,4)}, {s(sT3)} offen sc1")
    A(f"buffer_store_dwordx4 {v(KR+4,4)}, {v(vLIN)}, {s(SW,4)}, {s(sT3)} offen offset:1024 sc1")
    A("s_waitcnt vmcnt(0)")
    A(f"s_sub_u32 {s(sCNT2)}, {s(sCNT2)}, 1")
    A(f"s_cmp_lg_u32 {s(sCNT2)}, 0")
    A("s_cbranch_scc1 L_help_loop")
    A(f"s_cmp_eq_u32 {s(sRET)}, 2")
    A("s_cbranch_scc1 L_ready2")
    A(f"s_mov_b32 {s(sRET)}, 3")
    A("s_branch L_ready1")
    A("L_slow:")
    A("s_waitcnt vmcnt(0)")
    for i in range(4): E(qload(i))
    A("s_waitcnt vmcnt(0) lgkmcnt(0)")
    A("s_barrier")
    for i in range(4): E(norm_q(i, [T + 2, T + 4, T + 6]))
    MX = SB + 16
    for i in range(4): A(f"v_mov_b32 {v(MX+i)}, 0xff800000")
    A(f"v_add_u32 {v(vAV)}, {s(sWL)}, {v(vAV)}")
    A(f"s_add_u32 m0, {s(sWL)}, 32768")
    A(f"s_mov_b32 {s(sKOFF)}, 0")
    A("L_slow_kv:")
    A(f"buffer_load_dwordx4 {v(KR,4)}, {v(vQL)}, {s(SK,4)}, {s(sKOFF)} offen")
    A(f"buffer_load_dwordx4 {v(KR+4,4)}, {v(vQL)}, {s(SK,4)}, {s(sKOFF)} offen offset:32")
    A(f"buffer_load_dwordx4 {v(vLIN)}, {s(SV,4)}, {s(sKOFF)} offen lds")
    A(f"buffer_load_dwordx4 {v(vLIN)}, {s(SV,4)}, {s(sKOFF)} offen offset:1024 lds")
    A("s_waitcnt vmcnt(0)")
    E(vreads(0))
    h, tl = norm_tile(KR, "swap", False, T, [T + 2, T + 4, T + 6]); E(h); E(tl)
    A("s_waitcnt lgkmcnt(0)")
    A("s_nop 1")
    for i in range(4):
        sb = SB
        A(f"v_mfma_f32_32x32x16_bf16 {v(sb,16)}, {v(KR,4)}, {v(Q+8*i,4)}, 0")
        A(f"v_mfma_f32_32x32x16_bf16 {v(sb,16)}, {v(KR+4,4)}, {v(Q+8*i+4,4)}, {v(sb,16)}")
        A("s_nop 15")
        A(f"v_max3_f32 {v(T)}, {v(sb)}, {v(sb+1)}, {v(MX+i)}")
        for r in range(2, 16, 2): A(f"v_max3_f32 {v(T)}, {v(sb+r)}, {v(sb+r+1)}, {v(T)}")
        A(f"v_mov_b32 {v(T+1)}, {v(T)}")
        A("s_nop 1")
        A(f"v_permlane32_swap_b32 {v(T)}, {v(T+1)}")
        A("s_nop 0")
        A(f"v_max_f32 {v(T)}, {v(T)}, {v(T+1)}")
        A(f"v_sub_f32 {v(T+2)}, {v(MX+i)}, {v(T)}")
        A(f"v_exp_f32 {v(T+2)}, {v(T+2)}")
        A(f"v_mov_b32 {v(MX+i)}, {v(T)}")
        for r in range(16): A(f"v_sub_f32 {v(sb+r)}, {v(sb+r)}, {v(T)}")
        for r in range(16): A(f"v_exp_f32 {v(sb+r)}, {v(sb+r)}")
        for r in range(16): A(f"v_mul_f32 {v(O+16*i+r)}, {v(O+16*i+r)}, {v(T+2)}")
        A(f"v_mul_f32 {v(RS+4*i)}, {v(RS+4*i)}, {v(T+2)}")
        A("s_nop 1")
        A(f"v_smfmac_f32_32x32x32_bf16 {v(O+16*i,16)}, {a(aV,4)}, {v(sb,8)}, {v(vIDX)}")
        A(f"v_smfmac_f32_16x16x64_bf16 {v(RS+4*i,4)}, {v(ONES,4)}, {v(sb,8)}, {v(vIDX)}")
        A(f"v_smfmac_f32_32x32x32_bf16 {v(O+16*i,16)}, {a(aV+4,4)}, {v(sb+8,8)}, {v(vIDX)}")
        A(f"v_smfmac_f32_16x16x64_bf16 {v(RS+4*i,4)}, {v(ONES,4)}, {v(sb+8,8)}, {v(vIDX)}")
    A("s_nop 15")
    A(f"s_add_u32 {s(sKOFF)}, {s(sKOFF)}, 2048")
    A(f"s_cmp_lt_u32 {s(sKOFF)}, 0x20000")
    A("s_cbranch_scc1 L_slow_kv")
    for i in range(4):
        E(epi_valu(T + 2 * (i % 2), O + 16 * i, RS + 4 * i)); E(epi_store(i, O + 16 * i))
    A("s_endpgm")
    return partA + loader + [".p2align 12"] + partB + L

HEAD = open("standalone__qk_norm__prompt.s.ref").read().split("; Override launch")[0]

def isize(lines):
    import subprocess, tempfile
    ins = [x for x in lines if not (x.endswith(":") or x.startswith((".", ";", "@")))]
    src = '.amdgcn_target "amdgcn-amd-amdhsa--gfx950"\n.text\n' + "\n".join(x for x in lines if not x.startswith((".", "@"))) + "\n"
    d = tempfile.mkdtemp()
    open(d + "/a.s", "w").write(src)
    subprocess.run(["clang", "-x", "assembler", "-target", "amdgcn-amd-amdhsa", "-mcpu=gfx950", "-c", d + "/a.s", "-o", d + "/a.o"], check=True)
    o = subprocess.run(["llvm-objdump", "-d", "--mcpu=gfx950", d + "/a.o"], capture_output=True, text=True).stdout
    sz = [4 * len(m.group(1).split()) for m in re.finditer(r"// [0-9A-F]{12}: ([0-9A-F ]+)", o)]
    assert len(sz) == len(ins), (len(sz), len(ins))
    return sz

def place_pads(L, hop):
    sz = iter(isize(L))
    out, off, npad, active, pre = [], 0, 0, False, 0
    for i, x in enumerate(L):
        out.append(x)
        if x == "L_main:": active, pre, off = hop, off, 0
        if x == "L_code_end:": active = False; total = off
        if x.endswith(":") or x.startswith((".", ";", "@")): continue
        off += next(sz)
        if active and off >= 4096 * (npad + 1):
            nxt = next(y for y in L[i+1:] if not y.startswith(";"))
            good = x.startswith(("v_mfma", "v_smfmac")) and nxt.startswith("v_exp")
            if good or off - 4096 * (npad + 1) > 52:
                npad += 1
                out += [f"L_pad{npad}:", f"@PAD{npad}"]
                off += 4
    res, nxtpad, tgt, nh = [], 1, {}, 0
    for x in out:
        if x.startswith("@HOP"):
            k = min(int(x.split()[1]), npad - nxtpad + 1)
            if k > 0:
                nh += 1
                for p in range(nxtpad, nxtpad + k): tgt[p] = f"L_pad{p+1}" if p + 1 < nxtpad + k else f"L_hop{nh}"
                res += [f"s_branch L_pad{nxtpad}", f"L_hop{nh}:"]
                nxtpad += k
        elif x == "@LOOPHOPS":
            c = 8
            for p in range(nxtpad, npad + 1):
                tgt[p] = "L_hopx"
                res += [f"s_cmp_eq_u32 {s(sCNT)}, {c}", f"s_cbranch_scc1 L_pad{p}"]
                c -= HOPSTRIDE
                assert c >= 0
            res.append("L_hopx:")
        elif x.startswith("@PAD"): res.append(f"s_cbranch_vccnz {tgt[int(x[4:])]}")
        else: res.append(x)
    sys.stderr.write(f"entry+loader {pre} bytes, main {total} bytes, {npad} pads\n")
    return res

def render(opt):
    body = [x for x in gen(opt) if not x.startswith("; stamp")]
    body = place_pads(body, opt.hop)
    o = HEAD
    o += "; Override launch geometry by editing the next line (default: block=256,\n"
    o += f"; @launch grid=(256,1,1) block=(320,1,1) lds={opt.ldsb}\n"
    o += f""".amdgcn_target "amdgcn-amd-amdhsa--gfx950"
.text
.globl {NAME}_kernel
.p2align 8
.type {NAME}_kernel,@function
{NAME}_kernel:
"""
    for x in body:
        o += (x if x.endswith(":") or x.startswith(".") else "    " + x) + "\n"
    o += f""".section .rodata,"a"
.p2align 6
.amdhsa_kernel {NAME}_kernel
  .amdhsa_next_free_vgpr {NV+NA}
  .amdhsa_next_free_sgpr 102
  .amdhsa_accum_offset {NV}
  .amdhsa_group_segment_fixed_size 0
  .amdhsa_kernarg_size 56
  .amdhsa_user_sgpr_count 2
  .amdhsa_user_sgpr_kernarg_segment_ptr 1
  .amdhsa_system_sgpr_workgroup_id_x 1
.end_amdhsa_kernel
"""
    return o

if __name__ == "__main__":
    opt = Opt()
    out = sys.argv[1]
    for kv in sys.argv[2:]:
        k, val = kv.split("=")
        cur = getattr(opt, k)
        setattr(opt, k, type(cur)(val) if not isinstance(cur, bool) else val in ("1", "True"))
    open(out, "w").write(render(opt))
    if opt.stamps: open(out + ".stamps", "w").write(" ".join(STAMP_NAMES))
```

```python
from gen import *
import gen
def desc_a(name, nvgpr, nagpr, lds=0):
    return f'''
.section .rodata,"a"
.p2align 6
.amdhsa_kernel {name}
  .amdhsa_next_free_vgpr {nvgpr+nagpr}
  .amdhsa_next_free_sgpr 40
  .amdhsa_accum_offset {nvgpr}
  .amdhsa_group_segment_fixed_size {lds}
  .amdhsa_kernarg_size 16
  .amdhsa_user_sgpr_count 2
  .amdhsa_user_sgpr_kernarg_segment_ptr 1
  .amdhsa_system_sgpr_workgroup_id_x 1
.end_amdhsa_kernel
.text
'''
def build_a(tests, fname, iters=2000, waves=(1,2,4), grid=256, nagpr=64):
    out = HDR; names=[]; cmd=[]
    for t in tests:
        name, body, nv = t[0], t[1], t[2]
        pre = t[3] if len(t)>3 else ""
        pre += "\n".join(f"    v_accvgpr_write_b32 a{i}, v{8+i}" for i in range(nagpr))
        lds = t[4] if len(t)>4 else 0
        for w in waves:
            if 512//(((nv+nagpr+7)//8)*8) < w: continue
            n = f"{name}_w{w}"
            out += f".set WPW_{n}, {4*w}\n"
            out += kernel(n, body, iters, nv, pre) + desc_a(n, nv, nagpr, lds)
            names.append((n,nv+nagpr,lds))
            cmd.append(f"{n} {grid} {256*w}")
    out += meta(names)
    open(fname+".s","w").write(out)
    open(fname+".args","w").write(" ".join(cmd))
```

```python
from gen2 import *
T=[]
def mix(m, nexp=8, U=32):
    out=[]
    for u in range(U):
        out.append(m(u))
        for e in range(nexp): out.append(f"v_exp_f32 v{40+e%16}, v{24+e%16}")
    return "\n".join("    "+x for x in out)
def m32(a,b,d): return lambda i: f"v_mfma_f32_32x32x16_bf16 v[{d+18*(i%2)}:{d+15+18*(i%2)}], v[{a}:{a+3}], v[{b}:{b+3}], v[{d+18*(i%2)}:{d+15+18*(i%2)}]"
def s32(a,b,d,x): return lambda i: f"v_smfmac_f32_32x32x32_bf16 v[{d}:{d+15}], v[{a}:{a+3}], v[{b}:{b+7}], v{x}"
def s16(a,b,d,x): return lambda i: f"v_smfmac_f32_16x16x64_bf16 v[{d}:{d+3}], v[{a}:{a+3}], v[{b}:{b+7}], v{x}"
ms={"m_00":m32(8,12,64),"m_02":m32(8,14,64),"m_20":m32(10,16,64),"m_22":m32(10,14,66),
    "s32_000":s32(8,12,64,20),"s32_020":s32(8,14,64,22),"s32_021":s32(8,14,64,23),"s32_201":s32(6,12,64,21),"s32_d2":s32(8,12,66,21),"s32_all":s32(6,12,66,23),
    "s16_000":s16(8,12,64,20),"s16_020":s16(8,14,64,23),"s16_200":s16(6,12,66,21),"s16_ovl":s16(12,12,64,12)}
for k,f in ms.items(): T.append((k, mix(f), 112))
build_a(T, "t29", iters=200, waves=(1,))
```
